```python
import torch

def _softmax(x, axis=-1):
    return torch.softmax(x, dim=axis)

def _gelu(x):
    return torch.nn.functional.gelu(x, approximate='tanh')

def _silu(x):
    return torch.nn.functional.silu(x)

def _sigmoid(x):
    return torch.sigmoid(x)

def _layernorm(x, axis=-1, eps=1e-05):
    m = x.mean(dim=axis, keepdim=True)
    v = x.var(dim=axis, keepdim=True, unbiased=False)
    return (x - m) / torch.sqrt(v + eps)

def _scatter_add(tgt, idx, src, axis=0):
    return tgt.clone().index_add_(axis, idx, src)

def _segment_sum(src, seg, n):
    out = torch.zeros((n,) + src.shape[1:], dtype=src.dtype)
    return out.index_add_(0, seg, src)

def _pad(x, pw):
    flat = tuple((v for pair in reversed(pw) for v in pair))
    return torch.nn.functional.pad(x, flat)
kernel_name = 'gated_mix__ssm_conv_h3__memory_aug_recurrent_mem_tr__prompt'

def setup_inputs():

    _w = lambda a: (lambda t: t.to(torch.bfloat16) if t.is_floating_point() else t)(torch.as_tensor(a))

    def _A_setup():
        B, S, D = (1, 2048, 1024)
        ks = 4
        return {'q': _w((lambda *s: torch.randn(*s, dtype=torch.bfloat16) * 0.05)(B, S, D)), 'k': _w((lambda *s: torch.randn(*s, dtype=torch.bfloat16) * 0.4)(B, S, D)), 'v': _w((lambda *s: torch.randn(*s, dtype=torch.bfloat16) * 0.4)(B, S, D)), 'shift_k': _w((lambda *s: torch.randn(*s, dtype=torch.bfloat16) * 0.4)(D, ks) * 0.5), 'ssm_k': _w((lambda *s: torch.randn(*s, dtype=torch.bfloat16) * 0.4)(D, S) * (1.0 / S ** 0.5)), 'ssm_D': _w((lambda *s: torch.randn(*s, dtype=torch.bfloat16) * 0.4)(D))}
    _A_in = _A_setup()

    def _B_setup():
        B, S, Dm = (1, 2048, 1024)
        H, Dh = (32, 128)
        M, seg = (8, 32)
        seg = min(seg, S)
        S = S // seg * seg
        return {'x': _w((lambda *s: torch.randn(*s, dtype=torch.bfloat16) * 0.05)(B, S, Dm)), 'mem0': _w((lambda *s: torch.randn(*s, dtype=torch.bfloat16) * 0.4)(B, M, Dm)), 'Wq': _w((lambda *s: torch.randn(*s, dtype=torch.bfloat16) * 6.4)(Dm, H, Dh) * Dm ** (-0.5)), 'Wk': _w((lambda *s: torch.randn(*s, dtype=torch.bfloat16) * 6.4)(Dm, H, Dh) * Dm ** (-0.5)), 'Wv': _w((lambda *s: torch.randn(*s, dtype=torch.bfloat16) * 0.4)(Dm, H, Dh) * Dm ** (-0.5)), 'Wo': _w((lambda *s: torch.randn(*s, dtype=torch.bfloat16) * 0.4)(H, Dh, Dm) * (H * Dh) ** (-0.5)), 'seg_len': seg}
    _B_in = _B_setup()
    return {'A_q': _A_in['q'], 'A_k': _A_in['k'], 'A_v': _A_in['v'], 'A_shift_k': _A_in['shift_k'], 'A_ssm_k': _A_in['ssm_k'], 'A_ssm_D': _A_in['ssm_D'], 'B_x': _B_in['x'], 'B_mem0': _B_in['mem0'], 'B_Wq': _B_in['Wq'], 'B_Wk': _B_in['Wk'], 'B_Wv': _B_in['Wv'], 'B_Wo': _B_in['Wo'], 'B_seg_len': _B_in['seg_len'], 'gate_w': _w((lambda *s: torch.randn(*s, dtype=torch.bfloat16) * 0.05)(1024) * 16.0)}

def reference(A_q, A_k, A_v, A_shift_k, A_ssm_k, A_ssm_D, B_x, B_mem0, B_Wq, B_Wk, B_Wv, B_Wo, B_seg_len, gate_w):

    def _A_ref(q, k, v, shift_k, ssm_k, ssm_D):
        B, S, D = q.shape
        ks = shift_k.shape[-1]
        k_pad = _pad(k, ((0, 0), (ks - 1, 0), (0, 0)))
        k_shift = torch.zeros_like(k)
        for t in range(ks):
            k_shift = k_shift + k_pad[:, t:t + S, :] * shift_k[:, ks - 1 - t][None, None, :]
        kv = k_shift * v
        L = 2 * S
        kv_pad = _pad(kv, ((0, 0), (0, S), (0, 0)))
        kf_pad = _pad(ssm_k, ((0, 0), (0, S)))
        kv_f = (lambda x, axes=(-2, -1): torch.fft.rfft2(x.float(), dim=axes))(kv_pad[:, None, :, :], axes=(1, 2))
        kf_f = (lambda x, axes=(-2, -1): torch.fft.rfft2(x.float(), dim=axes))(kf_pad[:, None, :], axes=(1, 2))
        kf_f = (lambda x, *d: x.permute(*d))(kf_f, 1, 2, 0)
        y_f = kv_f * kf_f[None, :, :, :]
        y = (lambda x, s, axes=(-2, -1): torch.fft.irfft2(x, s=s, dim=axes).to(torch.bfloat16))(y_f, (1, L), axes=(1, 2))[:, 0, :S, :]
        y = y + kv * ssm_D[None, None, :]
        return q * y

    def _B_ref(x, mem0, Wq, Wk, Wv, Wo, seg_len):
        B, S, Dm = x.shape
        H, Dh = (Wq.shape[1], Wq.shape[2])
        M = mem0.shape[1]
        scale = Dh ** (-0.5)
        n_seg = S // seg_len
        L = M + seg_len
        idx = torch.arange(L)
        mask = (idx[:, None] < M) | (idx[:, None] >= idx[None, :])
        mem = mem0
        outs = []
        for s in range(n_seg):
            xs = x[:, s * seg_len:(s + 1) * seg_len, :].clone()
            h = torch.concatenate([mem, xs], axis=1)
            q = torch.einsum('btd,dhe->bhte', h, Wq)
            k = torch.einsum('btd,dhe->bhte', h, Wk)
            v = torch.einsum('btd,dhe->bhte', h, Wv)
            scores = torch.einsum('bhqe,bhke->bhqk', q, k) * scale
            scores = torch.where(mask[None, None], scores, -1000000000.0)
            p = _softmax(scores, axis=-1)
            o = torch.einsum('bhqk,bhke->bhqe', p, v)
            o = torch.einsum('bhte,hed->btd', o, Wo)
            mem = o[:, :M, :].clone()
            outs.append(o[:, M:, :])
        return torch.concatenate(outs, axis=1)
    x = A_q
    g = _sigmoid((x * gate_w).sum(-1, keepdims=True))
    a = _A_ref(x, A_k, A_v, A_shift_k, A_ssm_k, A_ssm_D)
    b = _B_ref(x, B_mem0, B_Wq, B_Wk, B_Wv, B_Wo, B_seg_len)
    return g * a + (1 - g) * b
```

```python
import re
NAME = "gated_mix__ssm_conv_h3__memory_aug_recurrent_mem_tr__prompt"

KA = dict(q=0, k=8, v=16, shift=24, ssmk=32, ssmD=40, bx=48, mem0=56, wq=64, wk=72, wv=80, wo=88,
          seg=96, gate=104, out=112, dbg=120, ws=128)

WS_QX   = 0x0000000
WS_KX   = 0x1000000
WS_VXT  = 0x2000000
WS_O    = 0x3000000
WS_QKVM = 0x4000000
WS_RING = 0x5000000
RING_SLOT = 0xA4000
RING_O = 0x94000
RING_PART = 0x30000
RING_MEM = 0x74000
WS_FILL_BEG = WS_RING
WS_FILL_END = WS_RING + 4 * RING_SLOT
WS_A    = 0x7000000
WS_KV   = 0x7000000
WS_KVT  = 0x7800000
WS_YT   = 0x7C00000
WS_G    = 0x7400000
WS_PARTRING = 0x6000000
WS_SIZE = 0x10000000

class Asm:
    def __init__(self):
        self.lines = []
        self.uid = 0
    def e(self, s):
        for ln in s.strip("\n").split("\n"):
            m = re.search(r"offset:(\d+)", ln)
            if m:
                lim = 4095 if ln.strip().startswith("buffer_") else 65535
                assert int(m.group(1)) <= lim, ln
            self.lines.append("    " + ln.strip())
    def label(self, s):
        self.lines.append(s + ":")
    def raw(self, s):
        self.lines.append(s)
    def nop(self, n):
        while n > 0:
            k = min(n, 16)
            self.e(f"s_nop {k-1}")
            n -= k
    def newlabel(self, p="L"):
        self.uid += 1
        return f".{p}_{self.uid}"
    def text(self):
        return "\n".join(self.lines) + "\n"

def srd(a, dst, src, nbytes):
    a.e(f"""
    s_mov_b32 s{dst}, s{src}
    s_and_b32 s{dst+1}, s{src+1}, 0xffff
    s_mov_b32 s{dst+2}, {hex(nbytes)}
    s_mov_b32 s{dst+3}, 0x00020000
    """)

def kernel_header(a, name):
    a.raw(".text")
    a.raw(f".globl {name}")
    a.raw(".p2align 8")
    a.raw(f".type {name},@function")
    a.label(name)

def kernel_desc(a, name, vgpr, sgpr, accum):
    a.raw('.section .rodata,"a"')
    a.raw(".p2align 6")
    a.raw(f".amdhsa_kernel {name}")
    a.raw(f"  .amdhsa_next_free_vgpr {vgpr}")
    a.raw(f"  .amdhsa_next_free_sgpr {sgpr}")
    a.raw(f"  .amdhsa_accum_offset {accum}")
    a.raw("  .amdhsa_group_segment_fixed_size 0")
    a.raw("  .amdhsa_kernarg_size 136")
    a.raw("  .amdhsa_user_sgpr_count 2")
    a.raw("  .amdhsa_user_sgpr_kernarg_segment_ptr 1")
    a.raw("  .amdhsa_system_sgpr_workgroup_id_x 1")
    a.raw(".end_amdhsa_kernel")
```

```python
from common import *
def q4(r): return f"v[{r}:{r+3}]"
def a4(r): return f"a[{r}:{r+3}]"
def p2(r): return f"v[{r}:{r+1}]"

USZ = 7680; KC = 16 * USZ; KC1 = 4160; KCS = 2 * KC1
RAW = [32, 108]; TAP = 184; UP = 216; STG = 184; EPI = 220; MSK = 24; AD = 16

def body_abr(a, st, verify):
    ln = Lane(a)
    a.e(f"""
    s_load_dwordx8 s[40:47], s[0:1], {KA['q']}
    s_load_dwordx4 s[48:51], s[0:1], {KA['ssmk']}
    s_load_dwordx2 s[52:53], s[0:1], {KA['gate']}
    s_mul_i32 s6, s24, {KCS}
    s_add_u32 s6, s6, {KC}
    s_lshl_b32 s97, s95, 5
    s_add_u32 s97, s97, s99
    s_lshl_b32 s4, s97, 16
    s_lshl_b32 s5, s24, 14
    s_add_u32 s4, s4, s5
    v_lshlrev_b32 v2, 4, v1
    """)
    ln.build(3, [(0, 3, 2048), (4, 2, 16)], 0, ["s4"])
    ln.build(4, [(4, 2, 16)], 0, ["s6"])
    a.e("s_waitcnt lgkmcnt(0)")
    srd(a, 12, 40, 2048 * 1024 * 2)
    srd(a, 16, 42, 2048 * 1024 * 2)
    srd(a, 28, 44, 2048 * 1024 * 2)
    srd(a, 32, 46, 1024 * 8)
    srd(a, 36, 48, 1024 * 2048 * 2)
    srd(a, 56, 52, 2048)
    a.e("""
    s_mov_b32 m0, s6
    s_lshl_b32 s60, s97, 4
    buffer_load_dwordx4 v2, s[56:59], 0 offen lds
    buffer_load_dwordx4 v2, s[56:59], 0 offen offset:1024 lds
    s_add_u32 s61, s60, s24         ; channel
    v_subrev_u32 v5, 4, v2
    """)
    for ks in range(32): a.e(f"buffer_load_dwordx4 {a4(4*ks)}, v3, s[12:15], 0 offen offset:{64*ks}")
    def stage():
        a.e("s_lshl_b32 s4, s61, 12\nv_add_u32 v6, s4, v5")
        for i in range(4):
            a.e(f"buffer_load_dwordx4 {q4(STG+4*i)}, v2, s[36:39], s4 offen offset:{1024*i}")
        a.e(f"buffer_load_dword v{STG+16}, v6, s[36:39], 0 offen")
        for i in range(1, 4):
            a.e(f"buffer_load_dword v{STG+16+i}, v2, s[36:39], s4 offen offset:{1024*i-4}")
    a.e("s_lshl_b32 s4, s24, 19\ns_lshl_b32 s5, s97, 5\ns_add_u32 s4, s4, s5")
    ln.build(7, [(1, 5, 16384), (0, 1, 16)], 0, ["s4"])
    def raw(it):
        R = RAW[it]
        if it: a.e(f"v_add_u32 v7, {1024*2048}, v7")
        for r in range(3):
            a.e(f"v_subrev_u32 v8, {2048*(3-r)}, v7")
            a.e(f"buffer_load_dwordx4 {q4(R+4*r)}, v8, s[16:19], 0 offen")
        for r in range(8):
            if r % 2 == 0: a.e(f"s_mov_b32 s4, {2048*r}")
            a.e(f"buffer_load_dwordx4 {q4(R+12+4*r)}, v7, s[16:19], s4 offen offset:{2048*(r&1)}")
            a.e(f"buffer_load_dwordx4 {q4(R+44+4*r)}, v7, s[28:31], s4 offen offset:{2048*(r&1)}")
    a.e("s_waitcnt vmcnt(32)")
    for ks in range(32): a.e(f"ds_read_b128 {a4(128+4*ks)}, v4 offset:{64*ks}")
    raw(0)
    a.e(f"""
    v_add_u32 v9, s6, v2
    v_and_b32 v12, 31, v1
    v_lshrrev_b32 v13, 5, v1
    v_lshlrev_b32 v14, 3, v13
    v_sub_u32 v14, v12, v14         ; c = m - 8g
    v_add_u32 v15, 10, v14
    v_and_b32 v10, 1, v15
    v_xor_b32 v10, 1, v10
    v_mul_u32_u24 v10, {KC1}, v10
    v_lshrrev_b32 v15, 1, v15
    v_lshl_add_u32 v10, v15, 2, v10
    v_add_u32 v10, s6, v10
    v_mul_u32_u24 v11, 80, v12
    v_lshl_add_u32 v11, v13, 4, v11
    s_mul_i32 s4, s24, {USZ}
    s_sub_u32 s4, s4, {80*31}
    v_add_u32 v11, s4, v11
    """)
    for ks in range(2):
        for d in range(4):
            a.e(f"""
            v_cmp_eq_u32 vcc, {16*ks + 7 - 2*d}, v14
            v_mov_b32 v15, 0xffff
            s_nop 0
            v_cndmask_b32 v{MSK+4*ks+d}, 0, v15, vcc
            v_cmp_eq_u32 vcc, {16*ks + 6 - 2*d}, v14
            v_mov_b32 v15, 0xffff0000
            s_nop 0
            v_cndmask_b32 v{MSK+4*ks+d}, v{MSK+4*ks+d}, v15, vcc
            """)
    a.e("s_waitcnt lgkmcnt(0)")
    for ks in range(32):
        a.e(f"s_waitcnt vmcnt({19 + 31 - ks})")
        a.e(f"v_mfma_f32_16x16x32_bf16 {q4(UP)}, {a4(128+4*ks)}, {a4(4*ks)}, {'0' if ks == 0 else q4(UP)}")
    raw(1)
    a.e(f"""
    v_cvt_pk_bf16_f32 v{UP}, v{UP}, v{UP}
    v_lshlrev_b32 v{UP}, 16, v{UP}
    v_mul_f32 v{UP}, 0xbfb8aa3b, v{UP}
    v_exp_f32 v{UP}, v{UP}
    s_lshl_b32 s4, s97, 7
    v_add_f32 v{UP}, 1.0, v{UP}
    v_rcp_f32 v{UP}, v{UP}
    s_lshl_b32 s5, s24, 5
    v_cvt_pk_bf16_f32 v{UP}, v{UP}, v{UP}
    v_lshlrev_b32 v{UP}, 16, v{UP}
    s_add_u32 s4, s4, s5
    s_add_u32 s4, s4, {WS_G}
    v_lshlrev_b32 v15, 2, v1
    s_mov_b64 exec, 0xff
    buffer_store_dword v{UP}, v15, s[8:11], s4 offen sc1
    s_mov_b64 exec, -1
    """)
    st()
    for r in range(4): a.e(f"v_mov_b32 v{UP+4+r}, 0")
    a.e(f"s_mul_i32 s4, s24, {USZ}\nv_add_u32 v15, s4, v2")
    for cc in range(4):
        for o in (0, 1024, 1536):
            a.e(f"ds_write_b128 v15, {q4(UP+4)} offset:{o}")
        a.e(f"v_add_u32 v15, {4*USZ}, v15")
    a.e(f"""
    s_mov_b64 exec, 0xf
    ds_write_b128 v9, {q4(UP+4)}
    ds_write_b128 v9, {q4(UP+4)} offset:{KC1}
    s_mov_b64 exec, -1
    s_mul_i32 s4, s24, {8*80}
    s_add_u32 s4, s4, 2560
    """)
    ln.build(12, [(0, 1, 8*USZ), (3, 3, 80), (1, 2, 16)], 0, ["s4"])
    a.e("s_lshl_b32 s4, s97, 7")
    ln.build(13, [(0, 1, 64)], 0, ["s4"])
    Lp = a.newlabel("pass"); Lc = a.newlabel("chan"); Lnr = a.newlabel("nr")
    for i in range(4): a.e(f"buffer_load_dwordx4 {q4(UP+4*i)}, v13, s[32:35], 0 offen offset:{16*i}")
    verify()
    for d in range(4):
        for t in range(4):
            for h in range(2):
                src = UP + 4*d + 2*h + (t >> 1)
                a.e(f"v_and_b32 v{TAP+8*d+2*t+h}, 0xffff0000, v{src}" if t & 1 else f"v_lshlrev_b32 v{TAP+8*d+2*t+h}, 16, v{src}")
    VT = UP + 22; OP = UP + 26
    for it in range(2):
        R = RAW[it]
        for d in range(4):
            for r in range(11):
                a.e(f"v_lshlrev_b32 v{UP+2*r}, 16, v{R+4*r+d}\nv_and_b32 v{UP+2*r+1}, 0xffff0000, v{R+4*r+d}")
            for r in range(8):
                vt = VT + 2*(r & 1)
                a.e(f"""
                v_pk_mul_f32 {p2(UP+2*r)}, {p2(UP+2*r)}, {p2(TAP+8*d+6)}
                v_lshlrev_b32 v{vt}, 16, v{R+44+4*r+d}
                v_pk_fma_f32 {p2(UP+2*r)}, {p2(UP+2*r+2)}, {p2(TAP+8*d+4)}, {p2(UP+2*r)}
                v_and_b32 v{vt+1}, 0xffff0000, v{R+44+4*r+d}
                v_pk_fma_f32 {p2(UP+2*r)}, {p2(UP+2*r+4)}, {p2(TAP+8*d+2)}, {p2(UP+2*r)}
                v_pk_fma_f32 {p2(UP+2*r)}, {p2(UP+2*r+6)}, {p2(TAP+8*d)}, {p2(UP+2*r)}
                v_pk_mul_f32 {p2(UP+2*r)}, {p2(UP+2*r)}, {p2(vt)}
                """)
            for h in range(2):
                for i in range(4):
                    a.e(f"v_cvt_pk_bf16_f32 v{OP+4*h+i}, v{UP+2*(7-2*i)+h}, v{UP+2*(6-2*i)+h}")
                a.e(f"ds_write_b128 v12, {q4(OP+4*h)} offset:{(2*d+h)*USZ + it*32*80}")
    stage()
    a.e("s_waitcnt vmcnt(0)")
    a.e("s_waitcnt lgkmcnt(0)\ns_barrier\ns_mov_b32 s64, 0")
    st()
    a.label(Lc)
    a.e(f"""
    s_lshr_b32 s4, s61, 1
    s_lshl_b32 s4, s4, 2
    s_load_dword s65, s[50:51], s4
    s_lshl_b32 s7, s61, 12
    s_add_u32 s7, s7, {WS_YT}
    v_writelane_b32 v{STG+16}, 0, 0
    """)
    for i in range(4):
        r = STG + 4*i
        a.e(f"ds_write_b128 v9, {q4(r)} offset:{64+1024*i}")
        for k in range(4):
            a.e(f"v_alignbit_b32 v{STG+20+4*i+k}, v{r+k}, v{STG+16+i if k == 0 else r+k-1}, 16")
        a.e(f"ds_write_b128 v9, {q4(STG+20+4*i)} offset:{KC1+64+1024*i}")
    a.e(f"""
    s_and_b32 s4, s61, 1
    s_lshl_b32 s4, s4, 4
    s_waitcnt lgkmcnt(0)
    s_lshr_b32 s65, s65, s4
    s_pack_ll_b32_b16 s65, s65, s65
    s_add_u32 s61, s61, 4
    s_cmp_eq_u32 s64, 3
    s_cbranch_scc1 {Lc}_ns
    """)
    stage()
    a.label(Lc + "_ns")
    for r in range(8): a.e(f"v_and_b32 v{AD+r}, s65, v{MSK+r}")
    a.e("v_mov_b32 v14, v10")
    ops = []
    for u in range(128):
        ops.append(('A', u, 0)); ops.append(('B', u, 1))
        if (u >> 1) <= 31: ops.append(('B', u, 0))
    NAr = 6; NBr = 8; cnt = {'A': 0, 'B': 0}; slot = {}
    def issue(op):
        kind, u, nt = op
        if kind == 'A':
            r = 32 + (cnt['A'] % NAr) * 4; cnt['A'] += 1; slot[op] = r
            o = (8 * u) % 256
            a.e(f"ds_read2_b32 a[{r}:{r+1}], v14 offset0:{o} offset1:{o+1}")
            a.e(f"ds_read2_b32 a[{r+2}:{r+3}], v14 offset0:{o+2} offset1:{o+3}")
            if u % 32 == 31: a.e("v_add_u32 v14, 1024, v14")
        else:
            d, ks = u >> 1, 1 - (u & 1)
            r = 56 + (cnt['B'] % NBr) * 4; cnt['B'] += 1; slot[op] = r
            a.e(f"ds_read_b128 {a4(r)}, v11 offset:{80*(63-d) + 32*ks + 2560*nt}")
    LOOK = 7
    cost = [2 if o[0] == 'A' else 1 for o in ops]
    for i in range(LOOK): issue(ops[i])
    for i, op in enumerate(ops):
        if i + LOOK < len(ops): issue(ops[i + LOOK])
        if op[0] == 'B':
            after = sum(cost[i + 1:min(i + LOOK + 1, len(ops))])
            a.e(f"s_waitcnt lgkmcnt({after})")
            u, nt = op[1], op[2]
            fr = slot[('A', u, 0)]; br = slot[op]
            d = f"a[{16*nt}:{16*nt+15}]"
            a.e(f"v_mfma_f32_32x32x16_bf16 {d}, {a4(fr)}, {a4(br)}, {'0' if u == 0 else d}")
            if u < 2: a.e(f"v_mfma_f32_32x32x16_bf16 {d}, {q4(AD+4*(1-u))}, {a4(br)}, {d}")
    for nt in range(2):
        for r in range(16): a.e(f"v_accvgpr_read_b32 v{EPI+r}, a{16*nt+r}")
        for i in range(8): a.e(f"v_cvt_pk_bf16_f32 v{EPI+16+i}, v{EPI+2*i}, v{EPI+2*i+1}")
        a.e("s_nop 0")
        for ii in range(2):
            p = EPI + 16 + 4*ii
            a.e(f"v_permlane32_swap_b32 v{p}, v{p+2}\nv_permlane32_swap_b32 v{p+1}, v{p+3}")
        for ii in range(2):
            a.e(f"buffer_store_dwordx4 {q4(EPI+16+4*ii)}, v2, s[8:11], s7 offen offset:{2048*nt+1024*ii} sc1")
    st()
    a.e(f"""
    v_add_u32 v11, {4*USZ}, v11
    s_add_u32 s64, s64, 1
    s_cmp_lt_u32 s64, 4
    s_waitcnt vmcnt(4)
    s_cbranch_scc1 {Lc}
    """)
```

```python
from common import *
import abr3 as abr
from sched import It, schedule

SPIN = "0x200000"
def q4(r): return f"v[{r}:{r+3}]"
def a4(r): return f"a[{r}:{r+3}]"

def body_bg(a, Lend, verify_issue, verify_check, diag=False, norec=False, stop=0, noabr=0, XW=3, QS=4, GS=4, QD=2, QM=76, GE='', G2=1, FS=4, GB1=14, GB2=50, GP2=92, GST=0, FD=1, OT=0, FS2=12, GFL=72, **kw):
    ln = Lane(a)
    def st(cond=None):
        if not diag: return
        L1 = a.newlabel("st"); L2 = a.newlabel("st")
        a.e(f"""
        s_memrealtime s[72:73]
        s_memtime s[74:75]
        s_waitcnt lgkmcnt(0)
        s_lshl_b64 exec, 1, s96
        s_cmp_lt_u32 s96, 64
        s_cbranch_scc0 {L1}
        v_mov_b32 v250, s72
        v_mov_b32 v252, s74
        s_branch {L2}
        """)
        a.label(L1)
        a.e("v_mov_b32 v251, s72\nv_mov_b32 v253, s74")
        a.label(L2)
        a.e("s_add_u32 s96, s96, 1\ns_min_u32 s96, s96, 127\ns_mov_b64 exec, -1")
    def finish():
        if diag:
            st()
            a.e(f"""
            s_lshl_b32 s4, s98, 5
            s_add_u32 s4, s4, s99
            s_lshl_b32 s4, s4, 10
            s_add_u32 s4, s4, {WS_DIAG + 0x400000}
            v_lshlrev_b32 v4, 2, v1
            s_lshl_b32 s5, s24, 17
            s_add_u32 s4, s4, s5
            buffer_store_dword v250, v4, s[8:11], s4 offen
            buffer_store_dword v251, v4, s[8:11], s4 offen offset:256
            buffer_store_dword v252, v4, s[8:11], s4 offen offset:512
            buffer_store_dword v253, v4, s[8:11], s4 offen offset:768
            """)
        a.e("s_endpgm")
    def wait_dbg(idx, target):
        L = a.newlabel("wc"); D = a.newlabel("wd")
        a.e("s_mov_b32 s62, 0\nv_mov_b32 v5, 0")
        a.label(L)
        a.e(f"""
        buffer_load_dword v4, v5, s[20:23], 0 offen offset:{4*idx} sc1
        s_add_u32 s62, s62, 1
        s_cmp_gt_u32 s62, {SPIN}
        s_cbranch_scc1 {Lend}
        s_waitcnt vmcnt(0)
        v_readfirstlane_b32 s4, v4
        s_cmp_ge_u32 s4, {target}
        s_cbranch_scc1 {D}
        s_sleep 8
        s_branch {L}
        """)
        a.label(D)
    def signal(idx):
        L = a.newlabel("sg")
        a.e(f"""
        s_cmp_lg_u32 s24, 0
        s_cbranch_scc1 {L}
        s_mov_b64 exec, 1
        v_mov_b32 v4, 1
        v_mov_b32 v5, 0
        buffer_atomic_add v4, v5, s[20:23], 0 offen offset:{4*idx} sc1
        s_mov_b64 exec, -1
        """)
        a.label(L)
    def wsetup(stride, base):
        a.e("s_lshl_b32 s6, s24, 14")
        ln.build(240, [(2, 4, stride), (0, 2, 16)], 0, [base])
        ln.build(242, [(4, 2, 512), (2, 2, 64), (0, 2, 16)], 0, ["s6"])
        a.e("v_add_u32 v243, 0x10000, v242")
    def wdma(q, stride):
        for i in range(16):
            a.e(f"""
            s_add_u32 m0, s6, {(q&1)*65536 + i*1024}
            s_mov_b32 s5, {(256*q + 16*i)*stride}
            buffer_load_dwordx4 v240, s[16:19], s5 offen nt lds
            """)
    def wtr(q):
        for k in range(8):
            for t in range(2):
                for h in range(2):
                    r = ((8*q + k)*2 + t)*4 + 2*h
                    a.e(f"ds_read_b64_tr_b16 a[{r}:{r+1}], v{242+(q&1)} offset:{k*2048 + h*256 + 8*t}")
        a.e("s_waitcnt lgkmcnt(0)")
    def wsetup2(base, S=8192):
        a.e(f"""
        s_lshl_b32 s6, s24, 14
        s_mul_i32 s5, s24, {64*S}
        s_add_u32 {base}, {base}, s5
        v_bfe_u32 v2, v1, 4, 1
        v_lshlrev_b32 v2, 2, v2
        v_and_b32 v3, 7, v1
        v_xor_b32 v2, v2, v3
        v_lshlrev_b32 v2, 4, v2
        """)
        ln.build(240, [(3, 2, S), (5, 1, 128)], 0, [base, "v2"])
        a.e("""
        s_lshr_b32 s5, s24, 1
        s_lshl_b32 s5, s5, 9
        v_bfe_u32 v2, v1, 3, 1
        v_xor_b32 v2, s24, v2
        v_and_b32 v2, 1, v2
        v_lshlrev_b32 v2, 6, v2
        """)
        ln.build(242, [(4, 2, 2048), (2, 2, 128), (0, 2, 16)], 0, ["s5", "v2"])
        a.e("v_add_u32 v243, 0x10000, v242")
    def wdma2(q, S=8192):
        for i in range(16):
            a.e(f"""
            s_add_u32 m0, s6, {(q&1)*65536 + i*1024}
            s_mov_b32 s5, {(256*q + 4*i)*S}
            buffer_load_dwordx4 v240, s[16:19], s5 offen nt lds
            """)
    def wtr2(q):
        a.e("s_barrier")
        for k in range(8):
            for t in range(2):
                for h in range(2):
                    r = ((8*q + k)*2 + t)*4 + 2*h
                    a.e(f"ds_read_b64_tr_b16 a[{r}:{r+1}], v{242+(q&1)} offset:{k*8192 + h*1024 + 8*t}")
        a.e("s_waitcnt lgkmcnt(0)\ns_barrier")
    def minred(r, steps):
        for p in ("quad_perm:[1,0,3,2]", "quad_perm:[2,3,0,1]", "row_half_mirror", "row_mirror")[:steps]:
            a.e(f"v_min_u32_dpp v{r}, v{r}, v{r} {p} row_mask:0xf bank_mask:0xf\ns_nop 1")

    Lph2 = a.newlabel("ph2"); Lqkv = a.newlabel("qkv")
    a.e(f"""
    s_lshr_b32 s98, s26, 3
    s_add_u32 s98, s98, 1
    s_and_b32 s98, s98, 3
    s_and_b32 s99, s25, 3
    s_lshl_b32 s99, s99, 3
    s_and_b32 s4, s26, 7
    s_add_u32 s99, s99, s4
    s_mov_b32 s96, 0
    v_and_b32 v1, 63, v0
    v_mov_b32 v250, 0
    v_mov_b32 v251, 0
    """)
    if diag: a.e("v_writelane_b32 v250, s92, 0\ns_mov_b32 s96, 1")
    st()
    def verify():
        verify_issue()
        a.e("s_waitcnt vmcnt(0)")
        verify_check()
    a.e(f"""
    s_bitcmp0_b32 s26, 4
    s_cbranch_scc1 {Lqkv}
    s_bfe_u32 s95, s26, 0x10003
    """)
    if noabr: verify()
    else: abr.body_abr(a, st, verify)
    a.e("s_waitcnt vmcnt(0)\ns_barrier")
    signal(C_CONV)
    st()
    a.e(f"s_cmp_eq_u32 s98, 3\ns_cbranch_scc1 {Lph2}")
    a.label(Lqkv)
    a.e(f"""
    s_lshl_b32 s4, s98, 3
    s_add_u32 s4, s4, {KA['wq']}
    s_load_dwordx2 s[40:41], s[0:1], {KA['q']}
    s_load_dwordx2 s[42:43], s[0:1], s4
    s_lshl_b32 s4, s99, 8
    """)
    wsetup2("s4")
    a.e("s_waitcnt lgkmcnt(0)")
    srd(a, 12, 40, 2048 * 1024 * 2)
    srd(a, 16, 42, 1024 * 4096 * 2)
    wdma2(0); wdma2(1)
    XR = 64; ACC = [192, 208]; OUT = 224
    a.e("v_and_b32 v2, 15, v1\nv_lshrrev_b32 v3, 4, v1\nv_lshlrev_b32 v4, 11, v2")
    for j in range(4):
        a.e(f"""
        v_add_u32 v5, {4*j}, v3
        v_xor_b32 v5, v5, v2
        v_lshl_add_u32 v{8+j}, v5, 4, v4
        v_add_u32 v{12+j}, 0x10000, v{8+j}
        """)
    a.e("s_lshl_b32 s4, s24, 3\ns_and_b32 s4, s4, 8")
    for r in range(8):
        a.e(f"""
        s_add_u32 s5, s4, {r}
        v_xor_b32 v5, s5, v1
        s_add_u32 s5, s6, {(r>>1)*4096}
        v_lshlrev_b32 v5, 4, v5
        v_add_u32 v{16+r}, s5, v5
        """)
    a.e(f"""
    s_cmp_eq_u32 s98, 2
    s_cselect_b32 s4, 11, 10
    s_cselect_b32 s5, 1, 4
    s_lshl_b32 s5, s5, 10
    s_lshl_b32 s4, s24, s4
    v_lshlrev_b32 v24, 4, v1
    v_add_u32 v24, s4, v24
    v_add_u32 v25, s5, v24
    v_mov_b32 v26, 0
    s_and_b32 s4, s99, 7
    s_lshl_b32 s4, s4, 13
    s_lshl_b32 s5, s24, 11
    s_add_u32 s4, s4, s5
    s_add_u32 s4, s4, {XW*0x10000}
    v_lshlrev_b32 v28, 5, v1
    v_add_u32 v28, s4, v28
    s_lshl_b32 s31, s98, 24
    s_lshl_b32 s4, s99, 13
    s_add_u32 s31, s31, s4
    s_mov_b32 s30, {WS_JUNK}
    s_mov_b32 s28, 0                ; block
    s_mov_b32 s29, 0
    s_waitcnt vmcnt(16)
    """)
    wtr2(0)
    wdma2(2)
    a.e("s_waitcnt vmcnt(16)")
    a.e(f"""
    s_lshl_b32 s4, s99, 9
    s_lshl_b32 s5, s24, 7
    s_add_u32 s4, s4, s5
    s_lshl_b32 s5, s98, 14
    s_add_u32 s4, s4, s5
    s_add_u32 s94, s4, {WS_FLAG}
    """)
    wtr2(1)
    verify_issue()
    wdma2(3)
    a.e("s_waitcnt vmcnt(16)")
    verify_check()
    wtr2(2)
    def xdma(k, buf):
        r, hf = k >> 1, k & 1
        L = []
        if k % 4 == 0: L.append(f"s_add_u32 m0, s6, {buf*65536 + (k>>2)*4096}")
        L.append(f"buffer_load_dwordx4 v{16+r}, s[12:15], s29 offen offset:{(r&1)*2048 + hf*1024} lds")
        return L
    def xread(f, buf):
        ks, kt = f >> 1, f & 1
        return f"ds_read_b128 {q4(XR + 4*(f&31))}, v{8 + 4*buf + (ks&3)} offset:{(ks>>2)*256 + kt*32768}"
    for k in range(16):
        L = xdma(k, 0)
        if len(L) == 2: L.insert(1, "s_nop 0")
        for x in L: a.e(x)
    a.e("s_waitcnt vmcnt(16)")
    wtr2(3)
    st()
    Lq = a.newlabel("qa")
    a.e("s_waitcnt vmcnt(0)\ns_barrier\ns_mov_b32 s29, 0x10000")
    for f in range(16): a.e(xread(f, 0))
    for k in range(6):
        L = xdma(k, 1)
        if len(L) == 2: L.insert(1, "s_nop 0")
        for x in L: a.e(x)
    st()
    Lv = a.newlabel("vt"); Lqe = a.newlabel("qe")
    a.e(f"s_cmp_eq_u32 s98, 0\ns_cbranch_scc1 {Lq}")
    a.e(f"s_cmp_eq_u32 s98, 2\ns_cbranch_scc1 {Lv}")
    def epi_cvt(A):
        L = []
        for u in range(2):
            for i in range(2):
                r = A + 8*u + 4*i
                L.append(f"v_cvt_pk_bf16_f32 v{OUT+4*u+2*i}, v{r}, v{r+1}")
                L.append(f"v_cvt_pk_bf16_f32 v{OUT+4*u+2*i+1}, v{r+2}, v{r+3}")
        return L
    def epi_st(u): return f"buffer_store_dwordx4 {q4(OUT+4*u)}, v{24+u}, s[8:11], s30 offen sc1"
    FLAG = ["v_mov_b32 v27, s28", "s_mov_b64 exec, 1", "buffer_store_dword v27, v26, s[8:11], s94 offen sc1", "s_mov_b64 exec, -1"]
    def body(P, vt):
        fa = [[] for _ in range(64)]; fb = [[] for _ in range(64)]; pre = [[] for _ in range(64)]
        for s in range(64):
            if s <= 47: fa[s].append(xread(s + 16, P))
            elif 52 <= s <= 55: fa[s].append(xread(2*(s-52), 1-P)); fa[s].append(xread(2*(s-52)+1, 1-P))
            elif s >= 56: fa[s].append(xread(s - 48, 1-P))
            if s % 4 == 0 and s <= 48: pre[s].append("s_waitcnt lgkmcnt(12)")
        pre[52].append(f"s_waitcnt vmcnt({2 if XW else 1}) lgkmcnt(0)\ns_barrier")
        if XW: fb[21].append("buffer_load_dword v29, v28, s[12:15], s29 offen")
        fb[50] += ["s_add_u32 s29, s29, 0x10000", "s_min_u32 s29, s29, 0x3f0000"]
        for k in range(16):
            s = 53 + 2*k
            L = xdma(k, P if k < 6 else 1 - P)
            if len(L) == 2: fb[(s-1) % 64].append(L[0])
            fb[s % 64].append(L[-1])
        C = epi_cvt(ACC[1-P])
        fb[2] += C[0:2]; fb[4] += C[2:4]; fb[6] += [epi_st(0)]; fa[6] += C[4:5]; fa[7] += C[5:6]; fb[8] += C[6:8]; fb[10] += [epi_st(1)]
        fb[12] += ["s_mov_b32 s30, s31"]; fb[14] += [f"s_add_u32 s31, s31, {32*8192}"]
        fb[44] += [f"s_waitcnt vmcnt({6 if XW else 5})"] + FLAG
        fb[46] += ["s_add_u32 s28, s28, 1"]
        for s in range(64):
            ks, kt = s >> 1, s & 1
            for x in pre[s]: a.e(x)
            if diag and s == 52 and P == 0: st()
            for t in range(2):
                d = q4(ACC[P] + (8*t + 4*kt if vt else 8*kt + 4*t))
                w = a4((2*ks + t)*4); x = q4(XR + 4*(s & 31))
                a.e(f"v_mfma_f32_16x16x32_bf16 {d}, {x if vt else w}, {w if vt else x}, {'0' if ks == 0 else d}")
                for y in (fa if t == 0 else fb)[s]: a.e(y)
    for vt in (False, True):
        if vt: a.label(Lv)
        Ll = a.newlabel("ql")
        a.raw(".p2align 6")
        a.label(Ll)
        body(0, vt); body(1, vt)
        a.e(f"s_cmp_lt_u32 s28, 64\ns_cbranch_scc1 {Ll}")
        if not vt: a.e(f"s_branch {Lqe}")
    a.label(Lqe)
    a.nop(8)
    for x in epi_cvt(ACC[1]): a.e(x)
    a.e(epi_st(0)); a.e(epi_st(1))
    a.e("s_waitcnt vmcnt(0) lgkmcnt(0)")
    for x in FLAG: a.e(x)
    Lfin = a.newlabel("fin")
    a.e(f"s_branch {Lfin if G2 else Lph2}")

    a.label(Lq)
    QB = 0x20000; KB = 0x22000; VB = 0x24000; MB = 0x26000
    K = 128; V = 160; KM = 176; VM = 232; SI = 32; PM = 40; ONE = 44; S0 = 48; S1 = 52; SM = 56; P_ = 48; Z = 52
    EX = [60, 61, 62, 63] + list(range(242, 250))
    a.e(f"""
    s_and_b32 s34, s24, 1           ; qt
    s_lshr_b32 s35, s24, 1          ; dh
    s_lshl_b32 s4, s35, 10
    s_add_u32 s4, s4, 2048
    v_lshlrev_b32 v2, 4, v1
    s_lshl_b32 s5, s24, 10
    s_add_u32 s5, s5, {QB}
    v_add_u32 v24, s5, v2
    s_lshl_b32 s5, s34, 12
    s_add_u32 s5, s5, {QB}
    v_add_u32 v25, s5, v2
    v_add_u32 v31, {KB}, v2
    s_lshl_b32 s5, s35, 12
    v_add_u32 v5, s5, v31
    s_lshl_b32 s43, s24, 11
    """)
    ln.build(3, [(4, 2, 128), (2, 2, 32), (0, 1, 16)], MB)
    ln.build(6, [(2, 2, 128), (0, 2, 16), (4, 2, 4)], MB, ["s4"])
    a.e(f"s_lshl_b32 s4, s99, 9\ns_add_u32 s4, s4, {FL_REC}")
    ln.build(7, [(0, 2, 128)], 0, ["s4"])
    for r in range(VM, VM + 10): a.e(f"v_mov_b32 v{r}, 0")
    for r in range(4): a.e(f"v_mov_b32 v{PM+r}, 0\nv_mov_b32 v{ONE+r}, 0x3f803f80")
    a.e(f"""
    s_lshl_b32 s4, s34, 4
    v_and_b32 v{S0}, 15, v1
    v_add_u32 v{S0}, s4, v{S0}          ; query
    v_lshrrev_b32 v{S0+1}, 4, v1
    v_lshlrev_b32 v{S0+1}, 2, v{S0+1}
    v_mov_b32 v{S0+3}, 0xff800000
    """)
    for i in range(8):
        a.e(f"""
        v_add_u32 v{S0+2}, {16*(i>>2) + (i&3)}, v{S0+1}
        v_cmp_le_u32 vcc, v{S0+2}, v{S0}
        s_nop 1
        v_cndmask_b32 v{SI+i}, v{S0+3}, v{PM}, vcc
        """)
    a.e(f"""
    s_lshl_b32 s4, s99, 7
    s_lshl_b32 s5, s24, 2
    s_add_u32 s4, s4, s5
    s_add_u32 s94, s4, {FL_O}
    s_mov_b32 s46, {FL_K - FL_REC}
    s_mov_b32 s47, {FL_V - FL_REC}
    s_mov_b32 s30, -1
    s_mov_b32 s32, 0                ; k/v bound
    s_mov_b32 s33, {64 if norec else 0}
    s_mov_b32 s42, 0
    s_mov_b32 s53, {WS_JUNK}
    s_mov_b32 s45, 0x3e0293ee
    s_lshl_b32 s36, s99, 13         ; head*8192
    s_add_u32 s36, s36, s43
    s_add_u32 s36, s36, {WS_KX}
    s_add_u32 s43, s43, {KB}
    s_sub_u32 s37, s36, 0x40000
    v_and_b32 v255, 15, v1
    v_bfe_u32 v254, v1, 4, 1
    v_lshlrev_b32 v255, 7, v255
    v_lshl_add_u32 v255, v254, 24, v255
    s_lshl_b32 s39, s99, 12
    s_lshl_b32 s4, s34, {12 if G2 else 17}
    s_lshl_b32 s40, s99, {13 if G2 else 12}
    s_add_u32 s40, s40, s4
    s_lshl_b32 s4, s35, 11
    s_add_u32 s40, s40, s4
    s_add_u32 s40, s40, {WS_KX if G2 else WS_O}
    s_add_u32 s39, s39, {WS_KVM}
    s_lshl_b32 s52, s24, 10
    s_add_u32 s39, s39, s52
    s_add_u32 s52, s52, {MB}
    s_mov_b32 s31, 1
    s_sub_u32 s48, s39, 0x20000
    s_mov_b32 s49, s37
    s_mov_b32 vcc_lo, s27
    s_mov_b32 vcc_hi, 0
    """)
    POLL = "buffer_load_dword v4, v7, s[8:11], 0 offen sc1"
    RDB = "s_nop 0" if norec else "v_readfirstlane_b32 s33, v4"
    MINR = [f"v_min_u32_dpp v4, v4, v4 quad_perm:{p} row_mask:0xf bank_mask:0xf\ns_nop 1" for p in ("[1,0,3,2]", "[2,3,0,1]")]
    def need(bound, blk):
        L = a.newlabel("nd"); D = a.newlabel("ndd")
        a.e(f"""
        s_cmp_gt_u32 s{bound}, {blk}
        s_cbranch_scc1 {D}
        s_mov_b32 s62, 0
        """)
        a.label(L)
        if bound == 33: a.e(POLL)
        else: a.e("buffer_load_dword v29, v7, s[8:11], s46 offen sc1\nbuffer_load_dword v30, v7, s[8:11], s47 offen sc1")
        r = 4 if bound == 33 else 29
        a.e(f"""
        s_add_u32 s62, s62, 1
        s_cmp_gt_u32 s62, {SPIN}
        s_cbranch_scc1 {Lend}
        s_waitcnt vmcnt(0)
        """)
        if bound == 32: a.e("v_min_u32 v29, v29, v30\ns_nop 1")
        minred(r, 2)
        a.e(f"""
        v_readfirstlane_b32 s{bound}, v{r}
        {"s_lshl_b32 s55, s32, 18" if bound == 32 else ""}
        {"s_add_u32 s55, s55, s37" if bound == 32 else ""}
        s_cmp_gt_u32 s{bound}, {blk}
        s_cbranch_scc1 {D}
        s_sleep {QS}
        s_branch {L}
        """)
        a.label(D)
    cold = []
    def side_path(cond, code):
        Lc = a.newlabel("cp"); Lb = a.newlabel("cb")
        def f():
            a.label(Lc)
            code(Lb)
            a.e(f"s_branch {Lb}")
        cold.append(f)
        return [f"s_cbranch_scc{cond} {Lc}", Lb + ":"]
    def local(ins):
        if not G2: return [ins + " sc1"]
        Lc = a.newlabel("cp"); Lb = a.newlabel("cb")
        def f():
            a.label(Lc)
            a.e(f"{ins} sc1\ns_branch {Lb}")
        cold.append(f)
        return [f"s_cbranch_vccnz {Lc}", ins, Lb + ":"]
    def ML(P): return [f"s_add_u32 m0, s52, {4096*P}", "s_nop 0", "buffer_load_dwordx4 v2, s[8:11], s48 offen lds"]
    def QKV(P):
        Q = ACC[1 - P]; L = []
        for ks in range(4):
            L.append(f"ds_read_b128 {q4(Q+4*ks)}, v25 offset:{1024*ks}")
            for kt in range(2): L.append(f"ds_read_b128 {q4(K+16*kt+4*ks)}, v31 offset:{4096*kt + 1024*ks}")
        for ks in range(4): L.append(f"ds_read_b128 {q4(V+4*ks)}, v5 offset:{VB - KB + 1024*ks}")
        return L
    def oflag(): return ["v_max_i32 v27, s30, v26"] + local(FLAG[2][:-4])
    def late(P):
        def f(Lb):
            need(33, "s30")
            emit(ML(P) + ["s_waitcnt vmcnt(0)"])
        return ["s_cmp_eq_u32 s31, 0"] + side_path(1, f)
    def emit(L):
        for y in L:
            if y.endswith(":"): a.label(y[:-1])
            else: a.e(y)
    def qread(f, buf):
        ks, kt = f >> 1, f & 1
        return f"ds_read_b128 {q4(XR + 4*(f&15))}, v{8 + 4*buf + (ks&3)} offset:{(ks>>2)*256 + kt*32768}"
    def qwr(u, P): return f"ds_write_b128 v24, {q4(OUT+4*u)} offset:{u*4096}"
    t0, t1, t2 = EX[10], EX[11], 30
    def mf(d, x, y, c): return f"v_mfma_f32_16x16x32_bf16 {q4(d)}, {q4(x)}, {q4(y)}, {'0' if c is None else q4(c)}"
    class AT:
        def __init__(s, P):
            Q = ACC[1 - P]; O = Q; AO = OUT
            s.km = [f"ds_read_b128 {q4(KM+4*i)}, v3 offset:{4096*P + 512*i}" for i in range(4)]
            s.vm = [f"ds_read_b32 v{VM+2*i}, v6 offset:{4096*P + 512*(i>>1) + 64*(i&1)}" for i in range(4)]
            s.s0 = [mf(S0, K+4*ks, Q+4*ks, S0 if ks else SI) for ks in range(4)]
            s.s1 = [mf(S1, K+16+4*ks, Q+4*ks, S1 if ks else SI+4) for ks in range(4)]
            s.sm = [mf(SM, KM+4*ks, Q+4*ks, SM if ks else None) for ks in range(4)]
            s.m0 = [f"v_max3_f32 v{t0}, v{S0}, v{S0+1}, v{S0+2}", f"v_max3_f32 v{t0}, v{t0}, v{S0+3}, v{S1}", f"v_max3_f32 v{t1}, v{S1+1}, v{S1+2}, v{S1+3}"]
            s.m1 = [f"v_max3_f32 v{t0}, v{t0}, v{SM}, v{SM+1}", f"v_max_f32 v{t2}, v{t0}, v{t1}", f"v_max_f32 v{t1}, v{t0}, v{t1}"]
            s.m2 = [f"v_permlane16_swap_b32 v{t1}, v{t2}", f"v_max_f32 v{t0}, v{t1}, v{t2}", f"v_max_f32 v{t1}, v{t1}, v{t2}"]
            s.m3 = [f"v_permlane32_swap_b32 v{t0}, v{t1}", f"v_max_f32 v{t0}, v{t0}, v{t1}", f"v_mul_f32 v{t0}, s45, v{t0}"]
            src = list(range(S0, S0 + 8)) + [SM, SM + 1]
            s.fma = [f"v_fma_f32 v{EX[i]}, v{src[i]}, s45, -v{t0}" for i in range(10)]
            s.exp = [f"v_exp_f32 v{EX[i]}, v{EX[i]}" for i in range(10)]
            s.cvt = [f"v_cvt_pk_bf16_f32 v{P_+i}, v{EX[2*i]}, v{EX[2*i+1]}" for i in range(4)] + [f"v_cvt_pk_bf16_f32 v{PM}, v{EX[8]}, v{EX[9]}"]
            s.pv = [mf(Z, ONE, P_, None), mf(Z, ONE, PM, Z)]
            for i in range(4): s.pv += [mf(O+4*i, V+4*i, P_, None), mf(O+4*i, VM+2*i, PM, O+4*i)]
            s.rcp = f"v_rcp_f32 v{t0}, v{Z}"
            s.fin = [[f"v_mul_f32 v{O+4*i+r}, v{t0}, v{O+4*i+r}" for r in range(4)] +
                     [f"v_cvt_pk_bf16_f32 v{AO+2*i}, v{O+4*i}, v{O+4*i+1}", f"v_cvt_pk_bf16_f32 v{AO+2*i+1}, v{O+4*i+2}, v{O+4*i+3}"] for i in range(4)]
            s.st = [local(f"buffer_store_dwordx4 {q4(AO+4*u)}, v2, s[8:11], s53 offen offset:{1024*u}") for u in range(2)]
    def qbody(P, vq0, last=False):
        A = AT(P)
        base = []
        for s in range(64):
            ks, kt = s >> 1, s & 1
            for t in range(2):
                d = q4(ACC[P] + 8*kt + 4*t)
                base.append((f"v_mfma_f32_16x16x32_bf16 {d}, {a4((2*ks + t)*4)}, {q4(XR + 4*(s & 15))}, {'0' if ks == 0 else d}",
                             s + 3 if t == 0 and s % 4 == 0 else None))
        X = [It(qread(f, P), f, lds=True, rel=max(0, 2*(f-16)+1), dl=min(8*(f//4) - 10, 96 + (f&3))) for f in range(12, 64)]
        X += [It("s_barrier", "B3", nl=63, nv="x15", after=[(63, 5)], dl=0)]
        X += [It(qread(f, 1-P), f, lds=True, rel=2*(48+f)+1, dl=118 + 8*(f//4)//2) for f in range(12)]
        def dma(ks, buf, first, t0_, step):
            L = []; prev = first
            for n, k in enumerate(ks):
                x = xdma(k, buf)
                if len(x) == 2:
                    L.append(It(x[0], f"m{k}", after=prev, dl=t0_ + step*n - 1)); prev = prev + [(f"m{k}", 1)]
                L.append(It(x[-1], f"x{k}", cost=QD, vm=True, after=prev, dl=t0_ + step*n)); prev = [(f"x{k}", step)]
            return L
        D = dma(range(6, 16), 1 - P, [], 3, 4)
        D += [It("buffer_load_dword v29, v28, s[12:15], s29 offen", "wx", vm=True, after=[("x15", 2)], dl=70),
              It("s_add_u32 s29, s29, 0x10000", dl=90)]
        D += dma(range(6), P, [("B3", 0), ("chk", 0)], 106, 4)
        C = epi_cvt(ACC[1-P])
        E = [It(x, rel=4, dl=10) for x in C[0:4]] + [It(qwr(0, P), "w0", lds=True, dl=10)] + [It(x, dl=14) for x in C[4:8]] + [It(qwr(1, P), "w", lds=True, dl=14)]
        E += [It("s_barrier", "B0", nl="w", nv="kv3", after=[("w", 5)], dl=20)]
        E += [It(x, f"r{i}", lds=True, dl=24 + i) for i, x in enumerate(QKV(P))]
        OF = oflag()
        E += [It(OF[0], dl=40), It(OF[1:], "of", vm=True, nv="st1", dl=42)]
        N32 = It(["s_cmp_gt_u32 s32, s42"] + side_path(0, lambda Lb: need(32, "s42")), "n32", dl=62)
        KV = [It("s_mov_b32 m0, s43", dl=72), It("s_add_u32 s49, s49, 0x40000", dl=72),
              It("buffer_load_dwordx4 v2, s[8:11], s49 offen lds", "kv0", cost=QD, vm=True, dl=74),
              It(f"s_add_u32 s50, s49, {WS_VX - WS_KX}", dl=76),
              It("buffer_load_dwordx4 v2, s[8:11], s49 offen offset:1024 lds", "kv1", cost=QD, vm=True, after=[("kv0", 4)], dl=78),
              It(f"s_add_u32 m0, s43, {VB - KB}", dl=80), It("s_add_u32 s5, s49, 0x40000", dl=80),
              It("buffer_load_dwordx4 v2, s[8:11], s50 offen lds", "kv2", cost=QD, vm=True, after=[("kv1", 4)], dl=82),
              It("s_min_u32 s5, s5, s55", dl=84),
              It("buffer_load_dwordx4 v2, s[8:11], s50 offen offset:1024 lds", "kv3", cost=QD, vm=True, after=[("kv2", 4)], dl=86)]
        M = []
        for ks in range(4):
            M += [It(A.s0[ks], mfma=True, nl=f"r{3*ks+2}", after=[(f"r{3*ks+2}", 6)]), It(A.s1[ks], "s1", mfma=True)]
        if last:
            E += [It("s_barrier", "B2", nl="r15", after=[("r15", 4)], dl=44), N32] + KV
            return schedule(base, [X[:52], E, M], list(range(12)), vq0)
        E += [It(late(P), after=[("r15", 4), ("x15", 0)], dl=44), It("s_barrier", "B2", nl="r15", dl=44)]
        E += [It(x, f"km{i}", lds=True, dl=48) for i, x in enumerate(A.km)]
        Lp = a.newlabel("pp"); Lpb = a.newlabel("pb")
        def pf():
            a.label(Lp); a.e(f"{POLL}\ns_mov_b32 s31, 0\ns_branch {Lpb}")
        cold.append(pf)
        E += [It(ML(1-P)[0], "ma", dl=60), It("s_add_u32 s48, s48, 0x20000", dl=60), It("s_mov_b32 s31, 1", dl=60),
              It(["s_cmp_gt_u32 s33, s42", f"s_cbranch_scc0 {Lp}", ML(1-P)[2], Lpb + ":"], "ml", vm=True, dl=60),
              N32]
        E += [It(x, f"vm{i}", lds=True, dl=70) for i, x in enumerate(A.vm)]
        E += KV + [
              It("buffer_load_dword v29, v255, s[8:11], s5 offen", "wk", vm=True, after=[("kv3", 2)], dl=90)]
        def chk(Lb):
            emit(["s_waitcnt vmcnt(1)"] + MINR + [RDB, "s_cmp_gt_u32 s33, s42", f"s_cbranch_scc0 {Lb}", "s_mov_b32 s31, 1"] + ML(1 - P))
        E += [It(["s_cmp_eq_u32 s31, 0"] + side_path(1, chk), "chk", rel=98, dl=100)]
        M += [It(x, after=[("s1", 4)], dl=56) for x in A.m0]
        M += [It(x, "sm", mfma=True, nl="km3", after=[("km3", 6)]) for x in A.sm]
        M += [It(A.m1[0], after=[("sm", 4), ("n32", 0)], dl=1), It(A.m1[1], dl=1), It(A.m1[2], "p1", dl=1)]
        M += [It(A.m2[0], after=[("p1", 2)], dl=1), It(A.m2[1], dl=1), It(A.m2[2], "p2", dl=1)]
        M += [It(A.m3[0], after=[("p2", 2)], dl=1), It(A.m3[1], dl=1), It(A.m3[2], dl=1)]
        M += [It(x, dl=QM) for x in A.fma] + [It(x, cost=2, dl=QM + 8) for x in A.exp] + [It(x, "cv", dl=QM + 10) for x in A.cvt]
        M += [It(x, f"pv{i}", mfma=True, nl="vm3" if i == 3 else None, after=[("cv", 1)]) for i, x in enumerate(A.pv)]
        M += [It(A.rcp, "rcp", cost=2, after=[("pv1", 4)], dl=110)]
        for i in range(4):
            M += [It(x, after=[(f"pv{3+2*i}", 4), ("rcp", 1)], dl=112 + 3*i) for x in A.fin[i]]
            if i & 1: M += [It(A.st[i >> 1], f"st{i >> 1}", vm=True, after=[("chk", 0)], dl=112 + 3*i)]
        M += [It("s_mov_b32 s53, s40", dl=126), It("s_add_u32 s40, s40, 0x40000", dl=126), It("s_mov_b32 s30, s42", dl=126), It("s_add_u32 s42, s42, 1", dl=126)]
        for c in (M,):
            for it in c:
                if it.dl == 1: it.dl = QM - 8
        return schedule(base, [X, D, E, M], list(range(12)), vq0)
    n0 = len(cold); u0 = a.uid
    _, _, vq, _ = qbody(0, ["kv3", "st1"])
    del cold[n0:]
    vq = vq[vq.index("kv3"):]
    def qemit(P):
        L, lq, vq2, info = qbody(P, vq)
        assert vq2[vq2.index("kv3"):] == vq and lq[-12:] == list(range(12))
        if P == 0: print("q body:", {k: v for k, v in info.items() if k != 'done'}, {k: v for k, v in info['done'].items() if isinstance(k, str)})
        emit(L)
        st()
    need(32, 0)
    a.e("s_waitcnt lgkmcnt(0)")
    if diag:
        for i in range(5): a.e(f"s_mov_b32 s{66+i}, 0")
    Lql = a.newlabel("ql")
    a.raw(".p2align 6")
    a.label(Lql)
    Lql2 = a.newlabel("ql")
    qemit(0)
    a.e(f"s_cmp_eq_u32 s42, 63\ns_cbranch_scc1 {Lql2}")
    qemit(1)
    a.e(f"s_branch {Lql}")
    a.label(Lql2)
    n0 = len(cold)
    emit(qbody(1, vq, True)[0])
    del cold[n0:n0+2]
    st()
    def tail(P):
        A = AT(P)
        emit(late(P))
        st()
        emit(["s_barrier"] + A.km + A.vm + A.m0 + ["s_waitcnt lgkmcnt(4)"] + A.sm + ["s_nop 7"] + A.m1 + ["s_nop 1"] + A.m2 + ["s_nop 1"] + A.m3)
        emit(A.fma + A.exp + A.cvt + ["s_waitcnt lgkmcnt(0)"] + A.pv + [A.rcp, "s_nop 0"] + A.fin[0] + A.fin[1] + A.st[0] + A.fin[2] + A.fin[3] + A.st[1])
        emit(["s_add_u32 s30, s30, 1", "s_mov_b32 s53, s40", "s_waitcnt vmcnt(0)"] + oflag())
    tail(1)
    st()
    emit(["s_add_u32 s48, s48, 0x20000", "s_mov_b32 s31, 0"])
    emit(epi_cvt(ACC[1]) + [qwr(0, 0), qwr(1, 0)] + ["s_waitcnt lgkmcnt(0)", "s_barrier"] + QKV(0))
    n0 = len(cold); A = AT(0); del cold[n0:]
    a.e("s_waitcnt lgkmcnt(4)")
    for ks in range(4): emit([A.s0[ks], A.s1[ks]])
    tail(0)
    if diag:
        for i in range(5): a.e(f"s_lshr_b32 s4, s{66+i}, 6\nv_writelane_b32 v253, s4, {56+i}")
    finish()
    for f in cold: f()

    if G2:
        a.label(Lph2)
        st()
        a.e(f"""
        s_load_dwordx2 s[42:43], s[0:1], {KA['wo']}
        s_lshr_b32 s34, s99, 3
        s_and_b32 s35, s99, 7
        s_lshl_b32 s4, s34, 21
        s_lshl_b32 s5, s35, 8
        s_add_u32 s4, s4, s5
        """)
        wsetup2("s4", 2048)
        a.e("s_waitcnt lgkmcnt(0)")
        srd(a, 16, 42, 4096 * 1024 * 2)
        wdma2(0, 2048); wdma2(1, 2048)
        GA = 192
        a.e(f"""
        v_lshlrev_b32 v2, 4, v1
        v_mov_b32 v8, v2
        s_lshl_b32 s36, s24, 12
        s_lshl_b32 s4, s34, 16
        s_add_u32 s4, s4, s36
        v_add_u32 v9, s4, v2            ; source
        s_lshl_b32 s4, s34, 10
        s_add_u32 s4, s4, {FL_O}
        """)
        ln.build(7, [(0, 3, 128)], 0, ["s4"])
        a.e(f"""
        s_lshl_b32 s4, s35, 2
        s_add_u32 s4, s4, s24
        s_lshl_b32 s5, s4, 9
        s_lshl_b32 s94, s34, 7
        s_add_u32 s94, s94, s5
        s_add_u32 s94, s94, {FL_TK}
        s_lshl_b32 s38, s4, 1
        s_and_b32 s5, s34, 1
        s_or_b32 s38, s38, s5
        s_lshl_b32 s4, s35, 22
        s_lshl_b32 s37, s34, 20
        s_add_u32 s37, s37, s4
        s_lshl_b32 s4, s24, 18
        s_add_u32 s37, s37, s4
        s_add_u32 s37, s37, {WS_P}
        s_mov_b32 s29, {WS_KX}
        s_mov_b32 s28, 0                ; block
        s_mov_b32 s33, 0                ; bound
        s_mov_b32 s39, 0
        v_mov_b32 v26, 0
        s_waitcnt vmcnt(16)
        """)
        wtr2(0); wdma2(2, 2048)
        a.e("s_waitcnt vmcnt(16)")
        wtr2(1); wdma2(3, 2048)
        a.e("s_waitcnt vmcnt(16)")
        wtr2(2)
        a.e("s_waitcnt vmcnt(0)")
        wtr2(3)
        GC = 208
        OPOLL = "buffer_load_dwordx4 v[12:15], v7, s[8:11], 0 offen sc1"
        M4 = ["v_min3_u32 v4, v12, v13, v14", "v_min_u32 v4, v4, v15"]
        def odma(k):
            L = []
            if k % 4 == 0: L += [f"s_add_u32 m0, s36, {(k>>2)*16384}", f"s_add_u32 s31, s29, {(k>>2)*16384}"]
            return L + [f"buffer_load_dwordx4 v9, s[8:11], s31 offen offset:{1024*(k&3)} sc1 lds"]
        def oread(f): return f"ds_read_b128 {q4(64 + 4*(f&31))}, v8 offset:{(f>>3)*8192 + (f&1)*4096 + ((f>>1)&3)*1024}"
        MR = [f"v_min_u32_dpp v4, v4, v4 {p} row_mask:0xf bank_mask:0xf" for p in ("quad_perm:[1,0,3,2]", "quad_perm:[2,3,0,1]", "row_half_mirror")]
        def PST(R): return [f"buffer_store_dwordx4 {q4(R+4*i)}, v2, s[8:11], s30 offen offset:{1024*i} sc1" for i in range(4)]
        Lcold = a.newlabel("cold"); Lgo = a.newlabel("go"); Lbody = a.newlabel("body"); Lhot = a.newlabel("hot"); Lgp = a.newlabel("gp"); Lgx = a.newlabel("gx")
        Lpd = a.newlabel("pd"); Lpb = a.newlabel("pdb"); Lcp = a.newlabel("cpy")
        BR = f"s_cbranch_scc1 {Lhot}"
        def gbody(hot):
            base = []
            for s_ in range(64):
                ks, kt = s_ >> 1, s_ & 1
                for t in range(2):
                    d = q4(GA + 8*kt + 4*t)
                    base.append((f"v_mfma_f32_16x16x32_bf16 {d}, {a4((2*ks + t)*4)}, {q4(64 + 4*(s_ & 31))}, {'0' if ks == 0 else d}",
                                 (s_ + 1 if s_ < 8 else s_ + 3) if t == 0 and s_ % (2 if s_ < 8 else 4) == 0 else None))
            X = []
            for f in range(8, 64):
                if f == 16: X.append(It("s_barrier", "B1", nv="d7", rel=GB1, dl=0))
                if f == 32: X.append(It("s_barrier", "B2", nv="p", rel=GB2, dl=0))
                X.append(It(oread(f), f, lds=True, rel=max(0, 2*(f-32)+1), dl=8*(f//4) - 12))
            X.append(It("v_xor_b32 v8, 0x10000, v8", dl=126))
            def dma(ks, t0_, step, prev):
                D = []
                for n, k in enumerate(ks):
                    x = odma(k)
                    if len(x) == 3: D.append(It(x[:2], f"m{k}", after=prev, dl=t0_ + step*n - 1)); prev = prev + [(f"m{k}", 1)]
                    D.append(It(x[-1], f"x{k}", cost=2, vm=True, after=prev, dl=t0_ + step*n)); prev = [(f"x{k}", step - 1)]
                return D
            def red(n, nv, t0_):
                return [It(M4, n, nv=nv, rel=t0_ - 2, dl=t0_ - 2), It(MR[0], n + "0", after=[(n, 2)], dl=t0_), It(MR[1], n + "1", after=[(n + "0", 2)], dl=t0_ + 2), It(MR[2], n + "2", after=[(n + "1", 2)], dl=t0_ + 4),
                        It("v_readfirstlane_b32 s33, v4", after=[(n + "2", 2)], dl=t0_ + 6)]
            D = dma(range(8, 16), 2, 4, [])
            D += [It(OPOLL, "p", vm=True, after=[("x15", 2)], dl=34), It("s_xor_b32 s36, s36, 0x10000", dl=40), It("s_add_u32 s29, s29, 0x40000", dl=40)]
            D += [It(["s_cmp_lg_u32 s39, 0", f"s_cbranch_scc1 {Lpd}", Lpb + ":"], after=[("B2", 4)], dl=GB2 + 8)]
            D += [It("s_xor_b32 s30, s28, s38", dl=64), It("s_lshl_b32 s30, s30, 12", dl=64), It("s_add_u32 s30, s30, s37", dl=64), It("s_add_u32 s28, s28, 1", dl=64)]
            D += red("r", "p", GB2 + 8)
            D += [It(["s_cmp_gt_u32 s33, s28", BR], "br", dl=GB2 + 16)]
            if hot: D += dma(range(8), 74, 6, [("br", 1)])
            else: D += [It(OPOLL, "p2", vm=True, rel=GP2, dl=GP2)] + red("q", "p2", 120)
            L, _, _, info = schedule(base, [X, D], list(range(8)), [f"d{i}" for i in range(8)])
            print("g body:", {k: v for k, v in info.items() if k != 'done'}, {k: v for k, v in info['done'].items() if isinstance(k, str)})
            i = L.index(BR) + 1
            return L[:i], L[i:]
        h0, c1 = gbody(False); h1, h2 = gbody(True)
        assert h0 == h1
        a.label(Lcold)
        a.e("s_mov_b32 s62, 0")
        a.label(Lgp)
        a.e(f"""
        {OPOLL}
        s_add_u32 s62, s62, 1
        s_cmp_gt_u32 s62, {SPIN}
        s_cbranch_scc1 {Lend}
        s_waitcnt vmcnt(0)
        """)
        emit(M4 + ["s_nop 1"])
        minred(4, 3)
        a.e(f"""
        v_readfirstlane_b32 s33, v4
        s_cmp_gt_u32 s33, s28
        s_cbranch_scc1 {Lgo}
        s_sleep {GS}
        s_branch {Lgp}
        """)
        a.label(Lgo)
        if GST: st()
        for k in range(8): emit(odma(k))
        a.label(Lbody)
        if GST and diag: a.e("s_cmp_eq_u32 s28, 58\ns_cselect_b32 s96, 90, s96\ns_cmp_lt_u32 s28, 58\ns_cselect_b32 s96, 12, s96")
        a.e("s_waitcnt vmcnt(4)\ns_barrier")
        for f in range(8): a.e(oread(f))
        st()
        emit(h0 + c1)
        if GST: st()
        a.e(f"""
        s_cmp_gt_u32 s33, s28
        s_cbranch_scc1 {Lgx}
        s_nop 5
        """)
        emit(PST(GA) + ["s_mov_b32 s39, 0", "s_waitcnt vmcnt(0)"] + FLAG)
        if GST: st()
        a.e(f"""
        s_cmp_lt_u32 s28, 64
        s_cbranch_scc1 {Lcold}
        """)
        finish()
        a.label(Lgx)
        for k in range(8): emit(odma(k))
        a.e(f"s_branch {Lcp}")
        a.label(Lhot)
        emit(h2)
        if GST: st()
        a.label(Lcp)
        a.e("s_mov_b32 s39, 1\ns_nop 2")
        for i in range(8): a.e(f"v_pk_mov_b32 v[{GC+2*i}:{GC+2*i+1}], v[{GA+2*i}:{GA+2*i+1}], v[{GA+2*i}:{GA+2*i+1}] op_sel:[0,1]")
        a.e(f"s_branch {Lbody}")
        a.label(Lpd)
        emit(["s_sub_u32 s4, s28, 1", "v_mov_b32 v27, s4"] + FLAG[1:] + PST(GC) + [f"s_branch {Lpb}"])

        a.label(Lfin)
        st()
        if 'x' in GE: finish()
        a.e(f"""
        s_load_dwordx2 s[44:45], s[0:1], {KA['out']}
        s_sub_u32 s34, s98, 1
        s_lshl_b32 s4, s34, 11
        s_lshr_b32 s5, s99, 2
        s_lshl_b32 s5, s5, 22
        s_add_u32 s4, s4, s5
        s_and_b32 s5, s99, 3
        s_lshl_b32 s5, s5, 18
        s_add_u32 s4, s4, s5
        s_lshl_b32 s38, s99, 1
        v_lshlrev_b32 v2, 4, v1
        v_add_u32 v2, s4, v2            ; partials
        s_lshl_b32 s4, s34, 15
        s_lshl_b32 s5, s99, 6
        s_add_u32 s4, s4, s5
        """)
        ln.build(13, [(0, 4, 2048), (4, 2, 16)], 0, ["s4"])
        a.e("s_lshl_b32 s4, s99, 17\ns_lshl_b32 s5, s34, 10\ns_add_u32 s4, s4, s5")
        ln.build(14, [(4, 2, 32768), (3, 1, 512), (0, 3, 2)], 0, ["s4"])
        for e_ in range(1, 8): a.e(f"v_add_u32 v{14+e_}, {4096*e_}, v14")
        a.e("s_lshl_b32 s4, s34, 6")
        ln.build(22, [(0, 4, 4)], 0, ["s4"])
        a.e(f"s_lshl_b32 s4, s99, 9\ns_add_u32 s4, s4, {FL_TK}")
        ln.build(7, [(0, 2, 128)], 0, ["s4"])
        a.e("s_mov_b32 s28, s24\ns_mov_b32 s33, 0\ns_waitcnt lgkmcnt(0)")
        srd(a, 84, 44, 2048 * 1024 * 2)
        wait_dbg(C_CONV, 64)
        Lf = a.newlabel("fl"); Lfp = a.newlabel("fp"); Lfd = a.newlabel("fd")
        XE = 32; ZE = 36; GE_ = 44; T = 48; PR = 64
        a.label(Lf)
        a.e(f"""
        s_lshl_b32 s57, s28, 16
        s_and_b32 s4, s28, 31
        s_lshl_b32 s4, s4, 4
        s_lshr_b32 s5, s28, 5
        s_lshl_b32 s5, s5, 11
        s_add_u32 s58, s4, s5
        s_add_u32 s58, s58, {WS_YT}
        s_lshl_b32 s59, s28, 7
        s_add_u32 s59, s59, {WS_G}
        buffer_load_dwordx4 {q4(XE)}, v13, s[12:15], s57 offen
        buffer_load_dword v{GE_}, v22, s[8:11], s59 offen
        """)
        for e_ in range(0 if 'y' in GE else 8): a.e(f"buffer_load_ushort v{ZE+e_}, v{14+e_}, s[8:11], s58 offen")
        a.e(f"""
        s_xor_b32 s48, s28, s38
        s_lshl_b32 s48, s48, 12
        s_add_u32 s48, s48, {WS_P}
        s_xor_b32 s49, s48, 0x101000
        s_add_u32 s50, s48, 0x200000
        s_add_u32 s51, s49, 0x200000
        s_cmp_gt_u32 s33, s28
        s_cbranch_scc1 {Lfd}
        s_mov_b32 s62, 0
        """)
        a.label(Lfp)
        a.e(f"""
        {POLL}
        s_add_u32 s62, s62, 1
        s_cmp_gt_u32 s62, {SPIN}
        s_cbranch_scc1 {Lend}
        s_waitcnt vmcnt(0)
        """)
        minred(4, 2)
        a.e(f"""
        v_readfirstlane_b32 s33, v4
        s_cmp_gt_u32 s33, s28
        s_cbranch_scc1 {Lfd}
        s_sleep {FS}
        s_add_u32 s4, s33, {FD}
        s_cmp_ge_u32 s4, s28
        s_cbranch_scc1 {Lfp}
        s_sleep {FS2}
        s_branch {Lfp}
        """)
        a.label(Lfd)
        for i in range(0 if 'w' in GE else 8): a.e(f"buffer_load_dwordx4 {q4(PR+4*i)}, v2, s[8:11], s{48+(i>>1)} offen offset:{1024*(i&1)}")
        a.e("s_waitcnt vmcnt(8)")
        for e_ in range(8):
            a.e(f"v_and_b32 v{T+e_}, 0xffff0000, v{XE+(e_>>1)}" if e_ & 1 else f"v_lshlrev_b32 v{T+e_}, 16, v{XE+(e_>>1)}")
            a.e(f"v_lshlrev_b32 v{ZE+e_}, 16, v{ZE+e_}")
        for e_ in range(8): a.e(f"v_mul_f32 v{T+e_}, v{T+e_}, v{ZE+e_}")
        for e_ in range(8): a.e(f"v_mul_f32 v{T+e_}, v{T+e_}, v{GE_}")
        a.e(f"v_sub_f32 v{GE_}, 1.0, v{GE_}\ns_waitcnt vmcnt(4)")
        for e_ in range(8): a.e(f"v_add_f32 v{PR+e_}, v{PR+e_}, v{PR+8+e_}")
        a.e("s_waitcnt vmcnt(0)")
        for e_ in range(8): a.e(f"v_add_f32 v{PR+16+e_}, v{PR+16+e_}, v{PR+24+e_}")
        for e_ in range(8): a.e(f"v_add_f32 v{PR+e_}, v{PR+e_}, v{PR+16+e_}")
        for e_ in range(8): a.e(f"v_fma_f32 v{PR+e_}, v{PR+e_}, v{GE_}, v{T+e_}")
        for e_ in range(4): a.e(f"v_cvt_pk_bf16_f32 v{T+8+e_}, v{PR+2*e_}, v{PR+2*e_+1}")
        if 'v' not in GE: a.e(f"buffer_store_dwordx4 {q4(T+8)}, v13, s[84:87], s57 offen")
        st()
        a.e(f"""
        s_add_u32 s28, s28, 4
        s_cmp_lt_u32 s28, 64
        s_cbranch_scc1 {Lf}
        """)
        if diag: a.e("s_waitcnt vmcnt(0)\ns_barrier")
        finish()
        return

    a.label(Lph2)
    st()
    if stop == 1: finish(); return
    a.e(f"""
    s_load_dwordx2 s[42:43], s[0:1], {KA['wo']}
    s_load_dwordx2 s[44:45], s[0:1], {KA['out']}
    s_load_dwordx2 s[40:41], s[0:1], {KA['q']}
    s_lshl_b32 s4, s99, 6
    s_lshl_b32 s5, s24, 21
    s_add_u32 s4, s4, s5
    """)
    wsetup(2048, "s4")
    a.e("s_waitcnt lgkmcnt(0)\ns_barrier")
    srd(a, 16, 42, 4096 * 1024 * 2)
    srd(a, 84, 44, 2048 * 1024 * 2)
    srd(a, 12, 40, 2048 * 1024 * 2)
    wdma(0, 2048); wdma(1, 2048)
    GA = 192; EP = 208; T = 216; R = 224
    a.e(f"""
    s_and_b32 s34, s24, 1
    s_lshr_b32 s35, s24, 1
    v_lshlrev_b32 v2, 4, v1
    s_lshl_b32 s4, s24, 10
    s_add_u32 s4, s4, {FL_O}
    """)
    ln.build(8, [(0, 3, 128)], 0, ["s4"])
    a.e("s_lshl_b32 s4, s24, 15\nv_add_u32 v9, s4, v2\nv_add_u32 v10, 0x20000, v9")
    a.e("s_lshl_b32 s4, s24, 12\nv_add_u32 v11, s4, v2")
    a.e("s_lshl_b32 s4, s35, 11\ns_lshl_b32 s5, s34, 7\ns_add_u32 s4, s4, s5")
    ln.build(12, [(0, 1, 1024), (1, 2, 256), (3, 3, 16)], 0, ["s4"])
    a.e("s_lshl_b32 s4, s24, 14\ns_lshl_b32 s5, s99, 6\ns_add_u32 s4, s4, s5")
    ln.build(13, [(3, 3, 2048), (0, 3, 8)], 0, ["s4"])
    a.e("s_lshl_b32 s4, s99, 17\ns_lshl_b32 s5, s24, 9\ns_add_u32 s4, s4, s5")
    ln.build(14, [(0, 3, 16384), (3, 3, 2)], 0, ["s4"])
    for e_ in range(1, 4): a.e(f"v_add_u32 v{14+e_}, {4096*e_}, v14")
    a.e("s_lshl_b32 s4, s24, 5")
    ln.build(18, [(3, 3, 4)], 0, ["s4"])
    a.e(f"s_and_b32 s4, s99, 7\ns_lshl_b32 s4, s4, 12\ns_lshl_b32 s5, s24, 15\ns_add_u32 s4, s4, s5\ns_add_u32 s4, s4, {WS_O}")
    ln.build(19, [(0, 5, 128), (5, 1, 0x20000)], 0, ["s4"])
    a.e(f"""
    s_lshl_b32 s4, s24, 8
    s_add_u32 s4, s4, 0x8000
    v_lshlrev_b32 v21, 2, v1
    v_add_u32 v21, s4, v21
    v_mov_b32 v22, 0x8000
    v_mov_b32 v23, 0
    s_lshl_b32 s4, s99, 7
    s_add_u32 s94, s4, {FL_TK}
    s_mov_b32 s33, 0
    s_waitcnt vmcnt(16)
    """)
    def draw(n):
        L = a.newlabel("dr"); D = a.newlabel("drd")
        a.e(f"""
        s_mov_b64 exec, 1
        s_cmp_lg_u32 s24, 0
        s_cbranch_scc1 {L}
        v_mov_b32 v20, {n}
        buffer_atomic_add v20, v23, s[8:11], s94 offen sc0 sc1
        s_branch {D}
        """)
        a.label(L)
        a.e("buffer_load_dword v20, v23, s[16:19], 0 offen")
        a.label(D)
        a.e("s_mov_b64 exec, -1")
    wtr(0); wdma(2, 2048)
    a.e("s_waitcnt vmcnt(16)")
    wtr(1); wdma(3, 2048)
    a.e("s_waitcnt vmcnt(16)")
    wtr(2)
    a.e("s_waitcnt vmcnt(0)")
    wtr(3)
    wait_dbg(C_CONV, 64)
    draw(2)
    Lgx = a.newlabel("gx")
    a.e(f"""
    s_barrier
    s_waitcnt vmcnt(0)
    ds_write_b32 v21, v20 offset:0x4000
    s_waitcnt lgkmcnt(0)
    s_barrier
    ds_read_b32 v20, v22 offset:0x4000
    s_waitcnt lgkmcnt(0)
    v_readfirstlane_b32 s31, v20
    s_add_u32 s30, s31, 1
    s_cmp_ge_u32 s31, 64
    s_cbranch_scc1 {Lgx}
    """)
    def bound():
        minred(4, 3)
        a.e("v_readfirstlane_b32 s33, v4")
    def side(blk):
        a.e(f"""
        s_lshl_b32 s57, {blk}, 16
        s_and_b32 s4, {blk}, 31
        s_lshl_b32 s4, s4, 4
        s_lshr_b32 s5, {blk}, 5
        s_lshl_b32 s5, s5, 11
        s_add_u32 s58, s4, s5
        s_add_u32 s58, s58, {WS_YT}
        s_lshl_b32 s59, {blk}, 7
        s_add_u32 s59, s59, {WS_G}
        s_lshl_b32 s48, {blk}, 18
        s_add_u32 s4, {blk}, 4
        s_min_u32 s4, s4, s33
        s_sub_u32 s4, s4, 1
        s_lshl_b32 s4, s4, 18
        {"s_mov_b32 s48, 0" if 'h' in GE else ""}
        {"s_mov_b32 s4, 0" if 'h' in GE else ""}
        buffer_load_dword v6, v19, s[8:11], s48 offen
        buffer_load_dword v7, v19, s[8:11], s4 offen
        buffer_load_dword v4, v8, s[8:11], 0 offen sc1
        buffer_load_dwordx2 v[{EP}:{EP+1}], v13, s[12:15], s57 offen
        buffer_load_dword v{EP+6}, v18, s[8:11], s59 offen
        s_add_u32 s48, s48, {WS_O}
        """)
        for e_ in range(4): a.e(f"buffer_load_ushort v{EP+2+e_}, v{14+e_}, s[8:11], s58 offen")
        draw(1)
        for i in range(1, 8): a.e(f"s_add_u32 s{48+i}, s48, {4096*i}")
    def oload(f):
        ks, qt = f >> 1, f & 1
        a.e(f"buffer_load_dwordx4 {q4(64 + 4*(f&31))}, v{9+qt}, s[8:11], s{48 + (ks>>2)} offen offset:{1024*(ks&3)}")
    def mm(f):
        ks, qt = f >> 1, f & 1
        for t in range(2):
            d = q4(GA + 8*qt + 4*t)
            a.e(f"v_mfma_f32_16x16x32_bf16 {d}, {a4((2*ks+t)*4)}, {q4(64 + 4*(f&31))}, {'0' if ks == 0 else d}")
    def epilogue():
        a.nop(6)
        for i in range(4): a.e(f"ds_write_b128 v11, {q4(GA+4*i)} offset:{1024*i}")
        a.e("s_waitcnt lgkmcnt(0)\ns_barrier")
        a.e("ds_read_b32 v24, v22")
        for i in range(4): a.e(f"ds_read_b128 {q4(R+4*i)}, v12 offset:{4096*i}")
        a.e(f"""
        v_xor_b32 v11, 0x4000, v11
        v_xor_b32 v12, 0x4000, v12
        v_xor_b32 v21, 0x4000, v21
        v_xor_b32 v22, 0x4000, v22
        s_waitcnt lgkmcnt(2)
        """)
        for r in range(4): a.e(f"v_add_f32 v{R+r}, v{R+r}, v{R+4+r}")
        a.e("s_waitcnt lgkmcnt(0)")
        for r in range(4): a.e(f"v_add_f32 v{R+8+r}, v{R+8+r}, v{R+12+r}")
        for r in range(4): a.e(f"v_add_f32 v{R+r}, v{R+r}, v{R+8+r}")
        for r in range(4): a.e(f"v_fma_f32 v{R+r}, v{R+r}, v{T+4}, v{T+r}")
        a.e(f"""
        v_cvt_pk_bf16_f32 v{R+4}, v{R}, v{R+1}
        v_cvt_pk_bf16_f32 v{R+5}, v{R+2}, v{R+3}
        buffer_store_dwordx2 v[{R+4}:{R+5}], v13, s[84:87], s56 offen
        s_mov_b32 s31, s30
        v_readfirstlane_b32 s30, v24
        """)
    Lcold = a.newlabel("cold"); Lmain = a.newlabel("main"); Ldrain = a.newlabel("drain"); Lgp = a.newlabel("gp"); Lgd = a.newlabel("gd")
    a.label(Lcold)
    st()
    a.e("s_mov_b32 s62, 0")
    a.label(Lgp)
    a.e(f"""
    buffer_load_dword v4, v8, s[8:11], 0 offen sc1
    s_add_u32 s62, s62, 1
    s_cmp_gt_u32 s62, {SPIN}
    s_cbranch_scc1 {Lend}
    s_waitcnt vmcnt(0)
    """)
    bound()
    a.e(f"""
    s_cmp_gt_u32 s33, s31
    s_cbranch_scc1 {Lgd}
    s_sleep {GS}
    s_cmp_eq_u32 s33, s31
    s_cbranch_scc1 {Lgp}
    s_sleep 24
    s_branch {Lgp}
    """)
    a.label(Lgd)
    side("s31")
    for f in range(32): oload(f)
    a.label(Lmain)
    st()
    pre = [f"v_lshlrev_b32 v{T}, 16, v{EP}", f"v_and_b32 v{T+1}, 0xffff0000, v{EP}", f"v_lshlrev_b32 v{T+2}, 16, v{EP+1}", f"v_and_b32 v{T+3}, 0xffff0000, v{EP+1}"]
    pre += [f"v_lshlrev_b32 v{EP+2+e_}, 16, v{EP+2+e_}" for e_ in range(4)]
    pre += [f"v_mul_f32 v{T+e_}, v{T+e_}, v{EP+2+e_}" for e_ in range(4)]
    pre += [f"v_mul_f32 v{T+e_}, v{T+e_}, v{EP+6}" for e_ in range(4)]
    pre += [f"v_sub_f32 v{T+4}, 1.0, v{EP+6}", "s_mov_b32 s56, s57", "ds_write_b32 v21, v20"]
    for f in range(32):
        a.e("s_waitcnt vmcnt(31)")
        mm(f); oload(f + 32)
        if f < len(pre): a.e(pre[f])
        if f == 24: bound()
    a.e(f"""
    s_cmp_gt_u32 s33, s30
    s_cbranch_scc0 {Ldrain}
    """)
    side("s30")
    for f in range(32, 64):
        a.e("s_waitcnt vmcnt(41)")
        mm(f); oload(f - 32)
    epilogue()
    a.e(f"s_branch {Lmain}")
    a.label(Ldrain)
    for f in range(32, 64):
        a.e(f"s_waitcnt vmcnt({63-f})")
        mm(f)
    epilogue()
    a.e(f"""
    s_cmp_lt_u32 s31, 64
    s_cbranch_scc1 {Lcold}
    """)
    a.label(Lgx)
    finish()
```

```python
import re
NAME = "gated_mix__ssm_conv_h3__memory_aug_recurrent_mem_tr__prompt"

KA = dict(q=0, k=8, v=16, shift=24, ssmk=32, ssmD=40, bx=48, mem0=56, wq=64, wk=72, wv=80, wo=88,
          seg=96, gate=104, out=112, dbg=120, ws=128)

WS_QX   = 0x0000000
WS_KX   = 0x1000000
WS_VX   = 0x2000000
WS_O    = 0x3000000
WS_KVM  = 0x4000000
WS_RING = 0x5000000
SLOT = 0x48000
SMO = 0x40000
WS_FLAG = 0x5800000
FL_REC = WS_FLAG
FL_K   = WS_FLAG + 0x4000
FL_V   = WS_FLAG + 0x8000
FL_TK  = WS_FLAG + 0xC000
FL_O   = WS_FLAG + 0x10000
FL_KB  = 68
WS_JUNK = 0x4800000
WS_PART = 0x6000000
WS_KV   = 0x7000000
WS_G    = 0x7400000
WS_KVT  = 0x7800000
WS_YT   = 0x7C00000
WS_DIAG = 0x8000000
WS_P    = 0x9000000
WS_SIZE = 0x10000000

C_CAL = 40; C_CONV = 48; C_ARM = 49

class Asm:
    def __init__(self):
        self.lines = []
        self.uid = 0
    def e(self, s):
        for ln in s.strip("\n").split("\n"):
            ln = ln.strip()
            if not ln: continue
            m = re.search(r"offset:(\d+)", ln)
            if m:
                lim = 4095 if ln.startswith("buffer_") else 65535
                assert int(m.group(1)) <= lim, ln
            for m in re.finditer(r"offset[01]:(\d+)", ln):
                assert int(m.group(1)) <= 255, ln
            self.lines.append("    " + ln)
    def label(self, s):
        self.lines.append(s + ":")
    def raw(self, s):
        self.lines.append(s)
    def nop(self, n):
        while n > 0:
            k = min(n, 16)
            self.e(f"s_nop {k-1}")
            n -= k
    def newlabel(self, p="L"):
        self.uid += 1
        return f".{p}_{self.uid}"
    def text(self):
        return "\n".join(self.lines) + "\n"

def srd(a, dst, src, nbytes):
    a.e(f"""
    s_mov_b32 s{dst}, s{src}
    s_and_b32 s{dst+1}, s{src+1}, 0xffff
    s_mov_b32 s{dst+2}, {hex(nbytes)}
    s_mov_b32 s{dst+3}, 0x00020000
    """)

def kernel_header(a, name):
    a.raw(".text")
    a.raw(f".globl {name}")
    a.raw(".p2align 8")
    a.raw(f".type {name},@function")
    a.label(name)

def kernel_desc(a, name, vgpr, sgpr, accum):
    a.raw('.section .rodata,"a"')
    a.raw(".p2align 6")
    a.raw(f".amdhsa_kernel {name}")
    a.raw(f"  .amdhsa_next_free_vgpr {vgpr}")
    a.raw(f"  .amdhsa_next_free_sgpr {sgpr}")
    a.raw(f"  .amdhsa_accum_offset {accum}")
    a.raw("  .amdhsa_group_segment_fixed_size 0")
    a.raw("  .amdhsa_kernarg_size 136")
    a.raw("  .amdhsa_user_sgpr_count 2")
    a.raw("  .amdhsa_user_sgpr_kernarg_segment_ptr 1")
    a.raw("  .amdhsa_system_sgpr_workgroup_id_x 1")
    a.raw(".end_amdhsa_kernel")

class Lane:
    def __init__(self, a, tmp=254):
        self.a = a; self.t = tmp
    def build(self, dst, fields, const=0, sregs=()):
        a = self.a; t = self.t; first = True
        for (lsb, w, mul) in fields:
            a.e(f"v_bfe_u32 v{t}, v1, {lsb}, {w}")
            if first:
                a.e(f"v_mul_u32_u24 v{dst}, {mul}, v{t}")
                first = False
            else:
                a.e(f"v_mul_u32_u24 v{t}, {mul}, v{t}")
                a.e(f"v_add_u32 v{dst}, v{dst}, v{t}")
        if first:
            a.e(f"v_mov_b32 v{dst}, {const}")
        elif const:
            a.e(f"v_add_u32 v{dst}, {const}, v{dst}")
        for s in sregs:
            a.e(f"v_add_u32 v{dst}, {s}, v{dst}")
```

```python
from common import *

SENT_MIN = "0xfffffffe"
RQ = 0; RK = 4608; RC = 9216; RV = 13824; RVM = 17920
G = 24; AQ = 40; AK = 48; AV = 56; AC = 64; T = 72
KX = 104; VX = 136; QL = 144; QH = 160; KM = 176; S = 192; SM = 196; SI = 200; P = 204; PM = 208
VM0 = 212; VM1 = 216; ONE = 220; Z = 224; O0 = 228; O1 = 232; OUT = 236; E = 240
DPP8 = "row_ror:8 row_mask:0xf bank_mask:0xf"
PFL = 0xc000
SPIN = "0x100000"

def q4(r): return f"v[{r}:{r+3}]"

def calib_measure(a):
    L = a.newlabel("nocal"); Lb = a.newlabel("calb")
    a.e(f"""
    s_lshl_b32 s4, s25, 3
    s_and_b32 s5, s26, 4
    s_or_b32 s4, s4, s5
    s_cbranch_scc1 {L}
    s_cmp_lg_u32 s24, 3
    s_cbranch_scc1 {Lb}
    s_lshr_b32 s4, s26, 1
    s_and_b32 s4, s4, 12
    s_and_b32 s5, s26, 3
    s_or_b32 s4, s4, s5             ; candidate
    s_lshl_b32 s5, s4, 11
    s_add_u32 s5, s5, s101
    s_mov_b64 exec, 1
    v_mov_b32 v4, -1
    v_mov_b32 v5, 0
    s_mov_b32 s7, 0xffff
    """)
    for t in range(3):
        a.e(f"""
        s_memtime s[72:73]
        s_waitcnt lgkmcnt(0)
        buffer_store_dword v4, v5, s[8:11], s5 offen sc1
        s_waitcnt vmcnt(0)
        s_memtime s[74:75]
        s_waitcnt lgkmcnt(0)
        s_sub_u32 s74, s74, s72
        s_min_u32 s7, s7, s74
        """)
    a.e(f"""
    s_lshl_b32 s5, s4, 1
    s_add_u32 s5, s5, {4*C_CAL}
    v_mov_b32 v4, s7
    buffer_store_short v4, v5, s[20:23], s5 offen sc1
    s_mov_b64 exec, -1
    """)
    a.label(Lb)
    a.e("s_barrier")
    a.label(L)

def calib_read(a, Lend):
    Lp = a.newlabel("cp"); Ld = a.newlabel("cd"); Lg = a.newlabel("cg")
    a.e(f"""
    s_mov_b32 s47, 0
    s_cmp_lg_u32 s27, 0
    s_cbranch_scc1 {Ld}
    s_mov_b32 s62, 0
    """)
    a.label(Lp)
    a.e(f"""
    v_and_b32 v18, 0xffff, v238
    v_lshrrev_b32 v19, 16, v238
    v_min_u32 v17, v18, v19
    v_cmp_eq_u32 vcc, 0, v17
    s_and_b32 s4, vcc_hi, 0xff
    s_cbranch_scc0 {Lg}
    s_add_u32 s62, s62, 1
    s_cmp_gt_u32 s62, {SPIN}
    s_cbranch_scc1 {Lend}
    s_sleep 16
    buffer_load_dword v238, v239, s[20:23], 0 offen sc1
    s_waitcnt vmcnt(0)
    s_branch {Lp}
    """)
    a.label(Lg)
    for c in range(16):
        a.e(f"v_readlane_b32 s{66+c}, v{18+(c&1)}, {C_CAL + (c>>1)}")
    def ssum(dst, regs):
        a.e(f"s_add_u32 s{dst}, s{regs[0]}, s{regs[1]}")
        for r in regs[2:]:
            a.e(f"s_add_u32 s{dst}, s{dst}, s{r}")
    a.nop(4)
    ssum(4, [66 + c for c in range(16) if not c & 4]); ssum(5, [66 + c for c in range(16) if c & 4])
    a.e("s_cmp_lt_u32 s5, s4\ns_cselect_b32 s47, 0x2000, 0")
    lo = [c for c in range(16) if not c & 4]
    for c in lo:
        a.e(f"s_cselect_b32 s{66+c}, s{66+c+4}, s{66+c}")
    for bit, val in ((1, 0x800), (2, 0x1000), (8, 0x4000)):
        ssum(4, [66 + c for c in lo if not c & bit]); ssum(5, [66 + c for c in lo if c & bit])
        a.e(f"s_cmp_lt_u32 s5, s4\ns_cselect_b32 s4, {val}, 0\ns_or_b32 s47, s47, s4")
    a.label(Ld)

def body_rec(a, Lend, verify_issue, verify_check, diag=False, nowait=False, IL='prio', tail=None, EXP='', XS=5, ZE=60):
    ln = Lane(a)
    if 'z' in EXP: EXP += 'nl'
    if 'y' in EXP: EXP += 'enl'
    NL = 'n' in EXP and 'l' not in EXP
    WSTR = 64 if 'h' in EXP else 128
    def rts(i):
        if not diag: return
        a.e(f"""
        s_memrealtime s[72:73]
        s_waitcnt lgkmcnt(0)
        v_writelane_b32 v250, s72, {i}
        """)
    a.e(f"""
    s_load_dwordx8 s[84:91], s[0:1], {KA['wq']}
    v_and_b32 v1, 63, v0
    """)
    rts(0)
    if diag: a.e('v_writelane_b32 v250, s92, 9')
    calib_measure(a)
    a.e(f"""
    s_lshl_b32 s4, s25, 11
    s_lshl_b32 s5, s26, 6
    s_add_u32 s4, s4, s5
    s_lshl_b32 s6, s24, 21
    s_add_u32 s4, s4, s6
    s_lshl_b32 s7, s25, 21
    s_lshl_b32 s6, s24, 19
    s_add_u32 s7, s7, s6
    s_add_u32 s7, s7, s5
    s_lshl_b32 s6, s24, 15
    v_bfe_u32 v4, v1, 4, 1
    v_lshlrev_b32 v4, 1, v4
    v_and_b32 v5, 3, v1
    v_xor_b32 v4, v4, v5
    v_lshlrev_b32 v4, 4, v4         ; 16B chunk
    """)
    ln.build(5, [(2, 1, 1), (3, 1, 8), (4, 1, 4), (5, 1, 2)])
    a.e("""
    v_lshlrev_b32 v6, 13, v5
    v_add_u32 v6, v6, v4
    v_add_u32 v240, s4, v6
    v_lshlrev_b32 v6, 11, v5
    v_add_u32 v6, v6, v4
    v_add_u32 v241, s7, v6
    """)
    ROT = 'r' not in EXP
    if ROT: a.e("v_xor_b32 v241, 256, v241")
    ln.build(242, [(2, 2, 64), (4, 1, 256 + 32), (5, 1, 1024), (0, 2, 8)], sregs=["s6"])
    a.e("v_xor_b32 v243, 32, v242\ns_waitcnt lgkmcnt(0)")
    def dma(mat, buf):
        srd(a, 16, 84 + 2 * mat, 1024 * 4096 * 2)
        if ROT and mat < 3: a.e(f"v_xor_b32 v240, {(512, 640, 128)[mat]}, v240")
        a.e(f"""
        s_and_b32 s4, s26, 1
        s_lshl_b32 s98, s4, 11
        s_lshl_b32 s99, s4, {18 if mat < 3 else 16}
        s_add_u32 s98, s98, s6
        """)
        for i in range(16):
            a.e(f"""
            s_xor_b32 m0, s98, {buf*16384 + i*1024}
            s_xor_b32 s5, s99, {i*16*(8192 if mat < 3 else 2048)}
            buffer_load_dwordx4 v{240 if mat < 3 else 241}, s[16:19], s5 offen nt lds
            """)
    def tr(mat, buf):
        for t in range(2):
            for p in range(4):
                for m in range(4):
                    r = ((mat * 2 + t) * 4 + p) * 8 + 2 * m
                    a.e(f"ds_read_b64_tr_b16 a[{r}:{r+1}], v{242+t} offset:{buf*16384 + (4*p + 2*(m>>1))*1024 + (m&1)*512}")
        a.e("s_waitcnt lgkmcnt(0)")
    dma(0, 0); dma(1, 1)
    rts(1)
    a.e(f"""
    s_lshr_b32 s52, s26, 2          ; hl
    s_and_b32 s53, s26, 3           ; c
    s_lshl_b32 s54, s25, 14         ; X*16384
    s_lshl_b32 s55, s26, 9          ; j*512
    s_add_u32 s55, s55, s54
    s_lshl_b32 s56, s25, 3
    s_add_u32 s56, s56, s52         ; head
    s_lshl_b32 s57, s56, 12         ; head*4096
    s_lshl_b32 s58, s53, 9          ; c*512
    s_add_u32 s58, s58, s57
    s_mov_b32 s48, 0x00ff00ff
    s_mov_b32 s49, 0x00ff00ff
    s_mov_b32 s50, 0xff00ff00
    s_mov_b32 s51, 0xff00ff00
    v_mov_b32 v2, 0x4444
    v_mov_b32 v4, 0xeeee
    s_lshl_b32 s4, s24, 12
    s_add_u32 s4, s4, s54
    v_cndmask_b32 v2, v4, v2, s[48:49]
    """)
    ln.build(3, [(0, 6, 16)], sregs=["s4"])
    a.e("v_add_u32 v4, 0x10000, v3\ns_mul_i32 s4, s24, 1152")
    ln.build(5, [(4, 1, 576), (5, 1, 64), (0, 4, 4)], RQ, ["s4"])
    a.e(f"""
    v_add_u32 v6, {RK-RQ}, v5
    v_add_u32 v7, {RC-RQ}, v5
    s_lshl_b32 s4, s24, 10
    """)
    ln.build(8, [(0, 6, 16)], RV, ["s4"])
    a.e(f"""
    s_and_b32 s4, s24, 1
    s_lshr_b32 s5, s24, 1
    s_lshl_b32 s59, s4, 6
    s_mul_i32 s60, s5, {RK-RQ}
    s_add_u32 s59, s59, s60
    s_lshl_b32 s4, s4, 8
    s_add_u32 s60, s58, s4          ; head*4096 + c*512 + (w&1)*256
    s_lshl_b32 s5, s5, 11
    s_add_u32 s61, s60, s5
    """)
    if ROT: a.e("s_cmp_lt_u32 s24, 2\ns_cselect_b32 s5, 8, 1\ns_lshl_b32 s5, s5, 10\ns_xor_b32 s61, s61, s5")
    ln.build(9, [(2, 3, 144), (5, 1, 32), (0, 2, 8)], RQ, ["s59"])
    ln.build(10, [(0, 6, 4)], 0x20000, ["s61"])
    ln.build(11, [(0, 6, 4)], RVM, ["s4"])
    for r in range(20, 24): a.e(f"v_mov_b32 v{r}, -1")
    for r in range(AQ, AC + 8): a.e(f"v_mov_b32 v{r}, 0")
    ln.build(244, [(0, 5, 16), (5, 1, 2048)], 0x20000, ["s58"])
    ln.build(245, [(0, 5, 16), (5, 1, 0x10000)], 0, ["s55"])
    a.e("s_waitcnt vmcnt(16)")
    rts(2)
    tr(0, 0)
    dma(2, 0)
    a.e("s_waitcnt vmcnt(16)")
    rts(3)
    tr(1, 1)
    verify_issue()
    dma(3, 1)
    a.e("s_waitcnt vmcnt(16)")
    rts(4)
    verify_check()
    tr(2, 0)
    calib_read(a, Lend)

    def variant(sc):
        a.e(f"""
        s_mov_b32 s28, 0
        s_mov_b32 s30, {WS_RING}
        s_mov_b32 s31, {WS_RING + SLOT}
        s_mov_b32 s32, {WS_RING + 2*SLOT}
        s_mov_b32 s33, {WS_RING + 3*SLOT}
        s_mov_b32 s41, {WS_KVM - 0x20000 - (2048 if 'z' in EXP else 0)}
        s_lshl_b32 s42, s56, {19 if 'T' in EXP else 13}
        s_lshl_b32 s4, s53, 11
        s_add_u32 s44, s42, s4
        s_add_u32 s44, s44, {WS_VX}
        s_add_u32 s42, s42, {WS_KX}
        s_add_u32 s43, s42, 4096
        s_add_u32 s96, s44, {33*8192 if 'T' in EXP else (1 if 'm' in EXP else 2)*32*8192}
        s_sub_u32 s95, s96, {WS_VX - WS_KX}
        s_mov_b32 s62, 0
        s_mov_b32 s45, 0x3e0293ee       ; 128^-0.5 * log2(e)
        s_mov_b32 s46, 0
        s_and_b32 s4, s25, 1
        s_lshl_b32 s4, s4, 14
        s_lshr_b32 s5, s25, 1
        s_lshl_b32 s5, s5, 12
        s_or_b32 s4, s4, s5
        s_xor_b32 s47, s47, s4
        s_and_b32 s5, s26, 1
        s_lshl_b32 s5, s5, 10
        s_lshr_b32 s4, s26, 1
        s_lshl_b32 s4, s4, 15
        s_or_b32 s5, s5, s4
        s_bfe_u32 s4, s26, 0x10004      ; b18 flips b11
        s_lshl_b32 s4, s4, 11
        s_xor_b32 s5, s5, s4
        s_xor_b32 s34, s5, s47
        s_xor_b32 s35, s34, 0x84000     ; b19 flips b14
        s_xor_b32 s36, s34, 0x101000    ; b20 flips b12
        s_xor_b32 s37, s34, 0x185000
        """)
        def wait_kv(need, once=False):
            if nowait: return
            L = a.newlabel("kv"); D = a.newlabel("kvd")
            a.e(f"""
            s_cmp_ge_u32 s46, {need}
            s_cbranch_scc1 {D}
            s_mov_b32 s62, 0
            """)
            a.label(L)
            a.e(f"""
            buffer_load_dword v18, v13, s[8:11], 0 offen sc1
            s_add_u32 s62, s62, 1
            s_cmp_gt_u32 s62, {SPIN}
            s_cbranch_scc1 {Lend}
            s_waitcnt vmcnt(0)
            v_min_u32_dpp v18, v18, v18 quad_perm:[1,0,3,2] row_mask:0xf bank_mask:0xf
            s_nop 1
            v_min_u32_dpp v18, v18, v18 quad_perm:[2,3,0,1] row_mask:0xf bank_mask:0xf
            s_nop 1
            v_min_u32_dpp v18, v18, v18 row_half_mirror row_mask:0xf bank_mask:0xf
            s_nop 0
            v_readfirstlane_b32 s46, v18
            """)
            if not once: a.e(f"s_cmp_lt_u32 s46, {need}\ns_cbranch_scc1 {L}")
            a.label(D)
        def pk(i): return f"buffer_load_dwordx4 {q4(KX + i*4)}, v15, s[8:11], s{42+(i>>2)} offen offset:{1024*(i&3)}"
        def prefetch(k=True):
            for i in range(8 if k else 0): a.e(pk(i))
            for t in range(2):
                a.e(f"buffer_load_dwordx4 {q4(VX + 4*t)}, v15, s[8:11], s44 offen offset:{1024*t}")
            a.e(f"""
            s_add_u32 s42, s42, {32*8192}
            s_add_u32 s43, s43, {32*8192}
            s_add_u32 s44, s44, {32*8192}
            """)
        def warm(w, mid=False):
            lines = [(95, WSTR * i) for i in range(2048 // WSTR)] + [(96, WSTR * i) for i in range(2048 // WSTR)]
            if 'm' in EXP and w != 1 or 'W' in EXP: return
            if 'n' in EXP and not mid: return
            if 'z' in EXP: lines = {1: lines[0:11], 2: lines[11:26], 3: lines[26:]}[w]
            elif 'l' in EXP: lines = {1: lines[0:15], 3: lines[15:30], 2: lines[30:]}[w]
            for (sr, off) in (lines if 'l' in EXP else lines[w-1::3] if mid else lines if w == 1 else lines[{0: 0, 2: 1, 3: 2}[w]::3]):
                a.e(f"s_buffer_load_dword s97, s[8:11], s{sr} offset:{off}")
            a.e(f"s_add_u32 s95, s95, {8192 if 'T' in EXP else 32*8192}\ns_add_u32 s96, s96, {8192 if 'T' in EXP else 32*8192}")
        Lw = [a.newlabel(f"w{w}") for w in range(4)]
        a.e(f"""
        s_cmp_eq_u32 s24, 1
        s_cbranch_scc1 {Lw[1]}
        s_cmp_eq_u32 s24, 2
        s_cbranch_scc1 {Lw[2]}
        s_cmp_eq_u32 s24, 3
        s_cbranch_scc1 {Lw[3]}
        """)
        cold = []
        def smf(acc, p, wbase):
            a.e(f"v_smfmac_f32_16x16x64_bf16 {q4(acc)}, {q4(G+4*p)}, a[{wbase}:{wbase+7}], v2")
        def tiles_q(p): return [(AQ, p * 8), (AQ + 4, 32 + p * 8)]
        def tiles_k(p): return [(AK, 64 + p * 8), (AK + 4, 96 + p * 8)]
        def tiles_c(p): return [(AC, 192 + p * 8), (AC + 4, 224 + p * 8)]
        def gload(p, vaddr):
            a.e(f"buffer_load_dwordx4 {q4(G+4*p)}, v{vaddr}, s[8:11], s30 offen offset:{1024*p} sc1")
        def gather(vaddr, prim, sec, chkregs, cnt):
            for p in range(4):
                if IL == 'prio': a.e(f"s_setprio {3-p}")
                gload(p, vaddr)
                if IL == 'bar' and p < 3: a.e("s_barrier")
            fill = []
            for p in range(4):
                Ls = a.newlabel("gs"); Lr = a.newlabel("gr")
                g = G + 4 * p
                def check(g=g):
                    if chkregs == 1: a.e(f"v_cmp_eq_u32 vcc, -1, v{g+3}")
                    else: a.e(f"v_max_u32 v18, v{g+1}, v{g+3}\nv_cmp_eq_u32 vcc, -1, v18")
                a.e(f"s_waitcnt vmcnt({3-p})")
                check()
                if fill: smf(*fill.pop(0))
                a.e(f"s_cbranch_vccnz {Ls}")
                a.label(Lr)
                for (acc, wb) in prim(p): smf(acc, p, wb)
                if fill: smf(*fill.pop(0))
                fill += [(acc, p, wb) for (acc, wb) in sec(p)]
                def slow(p=p, Ls=Ls, Lr=Lr, check=check):
                    a.label(Ls)
                    for q in range(p, 4): gload(q, vaddr)
                    if diag: a.e(f"s_add_u32 s{cnt}, s{cnt}, 1")
                    a.e(f"""
                    s_add_u32 s62, s62, 1
                    s_cmp_gt_u32 s62, {SPIN}
                    s_cbranch_scc1 {Lend}
                    s_waitcnt vmcnt({3-p})
                    """)
                    check()
                    a.e(f"s_cbranch_vccz {Lr}\ns_branch {Ls}")
                cold.append(slow)
            return fill
        def merge(A):
            for r in range(4): a.e(f"v_permlane32_swap_b32 v{A+r}, v{A+4+r}")
            for r in range(4): a.e(f"v_add_f32 v{A+r}, v{A+r}, v{A+4+r}")
        def write36(addr, A):
            a.e(f"ds_write2_b32 v{addr}, v{A}, v{A+1} offset0:0 offset1:36")
            a.e(f"ds_write2_b32 v{addr}, v{A+2}, v{A+3} offset0:72 offset1:108")
        def zero(regs):
            for r in regs: a.e(f"v_mov_b32 v{r}, 0")
        def rotate(w):
            a.e("""
            s_mov_b32 s4, s30
            s_mov_b32 s30, s31
            s_mov_b32 s31, s32
            s_mov_b32 s32, s33
            s_mov_b32 s33, s4
            s_add_u32 s28, s28, 1
            s_mov_b32 s62, 0
            """)
            if w in (1, 3):
                a.e("""
                s_mov_b32 s4, s34
                s_mov_b32 s34, s35
                s_mov_b32 s35, s36
                s_mov_b32 s36, s37
                s_mov_b32 s37, s4
                """)
            if w >= 2 and 'K' not in EXP: a.e("s_add_u32 s41, s41, 0x20000")

        for w in range(4):
            nst = [0]
            def st(i):
                if diag: a.e(f"s_memtime s[{66+2*i}:{67+2*i}]")
            def stflush():
                if not diag: return
                a.e("s_waitcnt lgkmcnt(0)")
                for i in range(13): a.e(f"v_writelane_b32 v251, s{66+2*i}, {i}")
                for i in range(3): a.e(f"v_writelane_b32 v251, s{92+i}, {13+i}")
                a.e(f"""
                s_mov_b64 exec, 0xffff
                ds_write_b32 v253, v251
                s_mov_b64 exec, -1
                v_add_u32 v253, 64, v253
                """)
            a.label(Lw[w])
            if diag:
                a.e(f"""
                s_lshl_b32 s4, s25, 5
                s_add_u32 s4, s4, s26
                s_lshl_b32 s4, s4, 14
                s_add_u32 s4, s4, {WS_DIAG + w*4096}
                s_mov_b32 s92, 0
                s_mov_b32 s93, 0
                s_mov_b32 s94, 0
                """)
                ln.build(252, [(0, 6, 16)], 0, ["s4"])
                ln.build(253, [(0, 6, 4)], 32768 + w*4096)
            if w == 0:
                ln.build(12, [(4, 2, 128), (0, 3, 16)], 0x20000, ["s57"])
                ln.build(13, [(4, 2, 128), (2, 2, 32), (0, 1, 16)], 0x20000 + 2048, ["s57"])
                ln.build(14, [(4, 2, 128), (0, 4, 16)], 0x10000, ["s55"])
                ln.build(15, [(0, 6, 16)])
                ln.build(16, [(2, 2, 128), (0, 2, 16), (4, 2, 4)], RVM + 512)
                zero(range(QL, QL + 32)); zero(range(PM, PM + 12))
                a.e("v_mov_b32 v18, 0xff800000")
                for r in range(4):
                    a.e(f"v_cndmask_b32 v{SI+r}, v18, 0, s[48:49]")
                    a.e(f"v_mov_b32 v{ONE+r}, 0x3f803f80")
            elif w == 1:
                ln.build(12, [(1, 3, 144), (4, 2, 32), (0, 1, 16)], RC)
                ln.build(13, [(0, 6, 16)], 0, ["s101"])
                ln.build(14, [(0, 6, 8)], 0, ["s55"])
                if ROT: a.e("v_xor_b32 v14, 2048, v14")
                ln.build(15, [(0, 6, 16)])
                for i in range(3): a.e(f"s_add_u32 s{42+i}, s{42+i}, {32*8192}")
            elif w == 2:
                a.e(f"""
                s_lshl_b32 s4, s56, 9
                s_lshl_b32 s5, s53, 7
                s_add_u32 s4, s4, s5
                s_add_u32 s4, s4, {FL_REC}
                v_mov_b32 v14, s4
                """)
                ln.build(12, [(0, 6, 16)], RVM)
                ln.build(15, [(0, 6, 16)])
                for i in range(3): a.e(f"s_add_u32 s{42+i}, s{42+i}, {32*8192}")
                if ROT: a.e("s_mov_b32 exec_hi, 0\nv_xor_b32 v244, 1024, v244\ns_mov_b32 exec_hi, -1")
            else:
                ln.build(12, [(3, 1, 512), (5, 1, 256), (2, 1, 128), (0, 2, 16), (4, 1, 8)], RV)
                ln.build(14, [(2, 2, 128), (0, 2, 16), (4, 2, 4)], RVM + 512)
                ln.build(15, [(0, 6, 16)], 0, ["s101"])
                ln.build(16, [(2, 2, 128), (0, 2, 16), (4, 2, 4)], 0x20000 + 4096, ["s58"])
                a.e(f"s_lshl_b32 s4, s56, 9\ns_add_u32 s4, s4, {FL_K}")
                ln.build(13, [(0, 2, 128), (2, 1, FL_V - FL_K)], 0, ["s4"])
                a.e("s_waitcnt vmcnt(0)")
                tr(3, 1)
                wait_kv(3 if 'n' in EXP else 2 if 'm' in EXP else 1)
            if w != 3:
                a.e("s_waitcnt vmcnt(0)")
                tr(3, 1)
            rts(5)
            a.e("s_barrier")
            if w == 0: prefetch()
            rts(6)
            Lstep = a.newlabel("step"); Lfin = a.newlabel("fin")
            a.raw(".p2align 6")
            a.label(Lstep)
            if w == 1: a.e("s_waitcnt vmcnt(0)")
            a.e("s_barrier")
            st(0)
            fill = gather(3, tiles_q, tiles_k, 2, 92)
            smf(*fill[0])
            st(1)
            for r in range(4):
                a.e(f"v_permlane32_swap_b32 v{AQ+r}, v{AQ+4+r}")
                if r == 1: smf(*fill[1])
            for r in range(4): a.e(f"v_add_f32 v{AQ+r}, v{AQ+r}, v{AQ+4+r}")
            write36(5, AQ); merge(AK); write36(6, AK)
            a.e("s_waitcnt lgkmcnt(2)\ns_barrier")
            if w >= 2: a.e("s_waitcnt lgkmcnt(0)\ns_barrier")
            for s_ in range(4): a.e(f"ds_read_b64 v[{T+2*s_}:{T+2*s_+1}], v9 offset:{1152*s_}")
            if w < 2: a.e("s_waitcnt lgkmcnt(4)\ns_barrier")
            a.e(f"""
            s_waitcnt lgkmcnt(2)
            v_add_f32 v{T}, v{T}, v{T+2}
            v_add_f32 v{T+1}, v{T+1}, v{T+3}
            s_waitcnt lgkmcnt(0)
            v_add_f32 v{T+4}, v{T+4}, v{T+6}
            v_add_f32 v{T+5}, v{T+5}, v{T+7}
            v_add_f32 v{T}, v{T}, v{T+4}
            v_add_f32 v{T+1}, v{T+1}, v{T+5}
            v_cvt_pk_bf16_f32 v{T}, v{T}, v{T+1}
            v_min_u32 v{T}, {SENT_MIN}, v{T}
            buffer_store_dword v{T}, v10, s[8:11], s30 offen{sc}
            """)
            st(2)
            if w == 2 and 'g' in EXP:
                a.e(f"""
                v_mov_b32 v18, s28
                s_mov_b64 exec, 1
                buffer_store_dword v18, v14, s[8:11], 0 offen sc1
                s_mov_b64 exec, -1
                """)
            dm = []
            if w == 1 and 'y' in EXP:
                for i in range(10):
                    dm.append((f"s_mov_b32 m0, {PFL + 1024*i}\ns_nop 0\n" if i % 4 == 0 else "") +
                              f"buffer_load_dwordx4 v15, s[8:11], s{42+(i>>2)} offen offset:{1024*(i&3)} lds")
                a.e(dm.pop(0)); a.e(dm.pop(0))
            for p in range(4):
                smf(AV, p, 128 + p * 8)
                if dm: a.e(dm.pop(0))
                smf(AV + 4, p, 160 + p * 8)
                if dm: a.e(dm.pop(0))
            if w == 1 and 'y' in EXP:
                for i in range(3): a.e(f"s_add_u32 s{42+i}, s{42+i}, {32*8192}")
            if w >= 2 and 'z' not in EXP: a.e(f"ds_write_b32 v11, v{T}")
            zero(range(AQ, AQ + 8))
            merge(AV)
            a.e(f"ds_write_b128 v8, {q4(AV)}")
            if w == 0:
                Lmf = a.newlabel("mf"); Lre = a.newlabel("re"); Lmk = a.newlabel("mk"); Lrk = a.newlabel("rk")
                def kloads():
                    for c in range(4): a.e(f"buffer_load_dwordx4 {q4(KM+4*c)}, v13, s[8:11], s30 offen offset:{512*c} sc1")
                def qkloads():
                    a.e("s_mov_b64 exec, s[48:49]")
                    for c in range(4): a.e(f"buffer_load_dwordx4 {q4(QL+4*c)}, v12, s[8:11], s30 offen offset:{512*c} sc1")
                    a.e("s_mov_b64 exec, s[50:51]")
                    for c in range(4): a.e(f"buffer_load_dwordx4 {q4(QH+4*c)}, v12, s[8:11], s30 offen offset:{512*c} sc1")
                    a.e("s_mov_b64 exec, -1")
                    kloads()
                a.e(f"""
                s_cmp_eq_u32 s28, 63
                s_cbranch_scc1 {Lfin}
                s_waitcnt vmcnt(0)
                """)
                st(3)
                qkloads()
                a.e("s_waitcnt lgkmcnt(0)\ns_barrier")
                a.label(Lmf)
                for i in range(12):
                    if i == 8: a.label(Lmk)
                    a.e(f"s_waitcnt vmcnt({11-i})")
                    c = i & 3
                    if i < 8:
                        a.e(f"v_mfma_f32_16x16x32_bf16 {q4(S)}, {q4(KX+4*i)}, {q4((QL if i < 4 else QH)+4*c)}, {'0' if i == 0 else q4(S)}")
                    else:
                        a.e(f"v_mfma_f32_16x16x32_bf16 {q4(SM)}, {q4(KM+4*c)}, {q4(QL+4*c)}, {q4(SI) if i == 8 else q4(SM)}")
                    g = QL + 4 * c if i < 4 else KM + 4 * c
                    if i == 0 or i == 8:
                        a.e(f"v_max3_u32 v18, v{g}, v{g+1}, v{g+2}\nv_max_u32 v18, v18, v{g+3}")
                    elif i < 4 or i >= 8:
                        a.e(f"v_max3_u32 v18, v18, v{g}, v{g+1}\nv_max3_u32 v18, v18, v{g+2}, v{g+3}")
                    if i == 4: a.e("v_cmp_eq_u32 vcc, -1, v18")
                    if i == 5: a.e(f"s_cbranch_vccnz {Lre}")
                a.e(f"""
                v_cmp_eq_u32 vcc, -1, v18
                v_max3_f32 v19, v{S}, v{S+1}, v{S+2}
                s_cbranch_vccnz {Lrk}
                s_barrier
                ds_read_b32 v{VM0}, v16
                ds_read_b32 v{VM1}, v16 offset:64
                """)
                st(4)
                def retry(Lre, Lmf, loads):
                    a.label(Lre)
                    loads()
                    if diag: a.e("s_add_u32 s94, s94, 1")
                    a.e(f"""
                    s_add_u32 s62, s62, 1
                    s_cmp_gt_u32 s62, {SPIN}
                    s_cbranch_scc1 {Lend}
                    s_branch {Lmf}
                    """)
                cold.append(lambda: retry(Lre, Lmf, qkloads))
                cold.append(lambda: retry(Lrk, Lmk, kloads))
                NP = [pk(2*i) + "\n" + pk(2*i+1) if NL else "s_nop 1" for i in range(4)]
                a.e(f"""
                v_max3_f32 v18, v{S+3}, v{SM}, v{SM+1}
                v_max_f32 v18, v18, v19
                {NP[0]}
                v_max_f32_dpp v19, v18, v18 {DPP8}
                v_max_f32_dpp v17, v18, v18 {DPP8}
                {NP[1]}
                v_permlane16_swap_b32 v19, v17
                v_max_f32 v18, v19, v17
                v_max_f32 v19, v19, v17
                {NP[2]}
                v_permlane32_swap_b32 v18, v19
                v_max_f32 v18, v18, v19
                v_mul_f32 v18, s45, v18
                """)
                src = [S, S + 1, S + 2, S + 3, SM, SM + 1]
                for i in range(6): a.e(f"v_fma_f32 v{E+i}, v{src[i]}, s45, -v18")
                for i in range(6): a.e(f"v_exp_f32 v{E+i}, v{E+i}")
                a.e(f"""
                v_cvt_pk_bf16_f32 v{P}, v{E}, v{E+1}
                v_cvt_pk_bf16_f32 v{P+1}, v{E+2}, v{E+3}
                v_cvt_pk_bf16_f32 v{PM}, v{E+4}, v{E+5}
                s_waitcnt lgkmcnt(0)
                v_mov_b32_dpp v{P+2}, v{P} {DPP8}
                v_mov_b32_dpp v{P+3}, v{P+1} {DPP8}
                v_mfma_f32_16x16x32_bf16 {q4(Z)}, {q4(ONE)}, {q4(PM)}, 0
                v_mfma_f32_16x16x32_bf16 {q4(Z)}, {q4(ONE)}, {q4(P)}, {q4(Z)}
                v_mfma_f32_16x16x32_bf16 {q4(O0)}, {q4(VM0)}, {q4(PM)}, 0
                v_mfma_f32_16x16x32_bf16 {q4(O0)}, {q4(VX)}, {q4(P)}, {q4(O0)}
                v_mfma_f32_16x16x32_bf16 {q4(O1)}, {q4(VM1)}, {q4(PM)}, 0
                {NP[3] if NL else ""}
                v_rcp_f32 v18, v{Z}
                v_mfma_f32_16x16x32_bf16 {q4(O1)}, {q4(VX+4)}, {q4(P)}, {q4(O1)}
                s_mov_b64 exec, s[48:49]
                """)
                for O in (O0, O1):
                    for r in range(4): a.e(f"v_mul_f32 v{O+r}, v18, v{O+r}")
                    o = OUT + (0 if O == O0 else 2)
                    a.e(f"""
                    v_cvt_pk_bf16_f32 v{o}, v{O}, v{O+1}
                    v_cvt_pk_bf16_f32 v{o+1}, v{O+2}, v{O+3}
                    """)
                    a.e("s_nop 1" if O == O0 else f"v_min_u32 v{o+1}, {SENT_MIN}, v{o+1}")
                a.e(f"""
                buffer_store_dwordx4 {q4(OUT)}, v14, s[8:11], s30 offen{sc}
                s_mov_b64 exec, -1
                """)
                st(5)
                if NL: prefetch(False)
                zero(range(AK, AK + 16))
                a.e(f"s_waitcnt vmcnt({2 if NL else 0})")
            elif 'z' in EXP:
                FIN = f"s_cmp_eq_u32 s28, 63\ns_cbranch_scc1 {Lfin}"
                a.e("s_waitcnt lgkmcnt(0)\ns_barrier")
                if w >= 2: a.e(f"buffer_store_dword v{T}, v10, s[8:11], s41 offen sc1")
                if w == 1:
                    a.e(FIN)
                    for i in range(10):
                        if i % 4 == 0: a.e(f"s_mov_b32 m0, {PFL + 1024*i}\ns_nop 0")
                        a.e(f"buffer_load_dwordx4 v15, s[8:11], s{42+(i>>2)} offen offset:{1024*(i&3)} lds")
                    for i in range(3): a.e(f"s_add_u32 s{42+i}, s{42+i}, {32*8192}")
                    a.e("""
                    s_xor_b32 s38, s34, 0x4000
                    s_xor_b32 s39, s34, 0x1000
                    s_xor_b32 s40, s34, 0x5000
                    """)
                if w == 2:
                    a.e(FIN)
                    a.e(f"""
                    v_mov_b32 v18, s28
                    s_mov_b64 exec, 1
                    buffer_store_dword v18, v14, s[8:11], 0 offen sc1
                    s_mov_b64 exec, -1
                    """)
                if w == 3:
                    for t in range(2):
                        for s_ in range(4):
                            r = T + 2 + 2 * (4 * t + s_)
                            a.e(f"ds_read_b64 v[{r}:{r+1}], v12 offset:{1024*s_ + 64*t}")
                    for t in range(2):
                        r = T + 2 + 8 * t
                        a.e(f"""
                        s_waitcnt lgkmcnt({4-4*t})
                        v_add_f32 v{r}, v{r}, v{r+2}
                        v_add_f32 v{r+1}, v{r+1}, v{r+3}
                        v_add_f32 v{r+4}, v{r+4}, v{r+6}
                        v_add_f32 v{r+5}, v{r+5}, v{r+7}
                        v_add_f32 v{r}, v{r}, v{r+4}
                        v_add_f32 v{r+1}, v{r+1}, v{r+5}
                        v_cvt_pk_bf16_f32 v{r}, v{r}, v{r+1}
                        """)
                    a.e(f"""
                    ds_write_b32 v14, v{T+2}
                    ds_write_b32 v14, v{T+10} offset:64
                    buffer_store_dword v{T+2}, v16, s[8:11], s41 offen sc1
                    buffer_store_dword v{T+10}, v16, s[8:11], s41 offen offset:64 sc1
                    {FIN}
                    buffer_store_dwordx4 v[20:23], v15, s[8:11], s36 offen sc1
                    buffer_store_dwordx4 v[20:23], v244, s[8:11], s32 offen{sc}
                    buffer_store_dwordx4 v[20:23], v245, s[8:11], s32 offen{sc}
                    s_waitcnt lgkmcnt(0)
                    """)
                warm(w, True)
                zero(range(AK, AK + 16))
                a.e("s_barrier")
                if w == 3:
                    a.e(f"s_add_u32 s5, s28, 4\ns_min_u32 s5, s5, 64")
                    wait_kv("s5")
            else:
                a.e("s_waitcnt lgkmcnt(0)\ns_barrier")
                if w == 1 and 'l' in EXP: warm(w, True)
                if w == 3:
                    for t in range(2):
                        for s_ in range(4):
                            r = T + 2 * (4 * t + s_)
                            a.e(f"ds_read_b64 v[{r}:{r+1}], v12 offset:{1024*s_ + 64*t}")
                    for t in range(2):
                        r = T + 8 * t
                        a.e(f"""
                        s_waitcnt lgkmcnt({4-4*t})
                        v_add_f32 v{r}, v{r}, v{r+2}
                        v_add_f32 v{r+1}, v{r+1}, v{r+3}
                        v_add_f32 v{r+4}, v{r+4}, v{r+6}
                        v_add_f32 v{r+5}, v{r+5}, v{r+7}
                        v_add_f32 v{r}, v{r}, v{r+4}
                        v_add_f32 v{r+1}, v{r+1}, v{r+5}
                        v_cvt_pk_bf16_f32 v{r}, v{r}, v{r+1}
                        """)
                    a.e(f"""
                    ds_write_b32 v14, v{T}
                    ds_write_b32 v14, v{T+8} offset:64
                    s_waitcnt lgkmcnt(0)
                    """)
                    if 'l' in EXP: warm(w, True)
                a.e("s_barrier")
                if w == 2: a.e(f"ds_read_b128 {q4(T)}, v12")
                a.e(f"""
                s_cmp_eq_u32 s28, 63
                s_cbranch_scc1 {Lfin}
                """)
                if w == 1:
                    a.e("""
                    s_xor_b32 s38, s34, 0x4000
                    s_xor_b32 s39, s34, 0x1000
                    s_xor_b32 s40, s34, 0x5000
                    """)
                    if 'm' in EXP: warm(1)
                if w == 2 and 'e' in EXP:
                    a.e(f"s_waitcnt lgkmcnt(0)\nbuffer_store_dwordx4 {q4(T)}, v244, s[8:11], s41 offen sc1")
                if w == 2 and '3' in EXP:
                    a.e(f"""
                    v_mov_b32 v18, s28
                    s_mov_b64 exec, 1
                    buffer_store_dword v18, v14, s[8:11], 0 offen sc1
                    s_mov_b64 exec, -1
                    """)
                if w == 3 and '2' in EXP:
                    a.e(f"""
                    buffer_store_dwordx4 v[20:23], v15, s[8:11], s36 offen sc1
                    buffer_store_dwordx4 v[20:23], v244, s[8:11], s32 offen{sc}
                    buffer_store_dwordx4 v[20:23], v245, s[8:11], s32 offen{sc}
                    """)
                if w == 3:
                    a.e("s_add_u32 s5, s28, 2" if 'w' in EXP else f"s_add_u32 s5, s28, {4 if 'n' in EXP else 3}\ns_min_u32 s5, s5, 64")
                    wait_kv("s5")
                if 'n' in EXP and ('l' not in EXP or w == 2): warm(w, True)
                if 'l' in EXP and w == (1 if 'u' in EXP else 2) and 'y' not in EXP:
                    for i in range(10):
                        if i % 4 == 0: a.e(f"s_mov_b32 m0, {PFL + 1024*i}\ns_nop 0")
                        a.e(f"buffer_load_dwordx4 v15, s[8:11], s{42+(i>>2)} offen offset:{1024*(i&3)}{' sc1' if 'S' in EXP or 'T' in EXP else ''} lds")
                    for i in range(3): a.e(f"s_add_u32 s{42+i}, s{42+i}, {0 if 'S' in EXP else 8192 if 'T' in EXP else 32*8192}")
                zero(range(AK, AK + 16))
            a.e("s_barrier")
            st(6)
            gather(4, tiles_c, lambda p: [], 1, 93)
            st(7)
            a.nop(8)
            merge(AC); write36(7, AC)
            a.e("s_waitcnt lgkmcnt(0)\ns_barrier")
            st(8)
            if w == 1:
                Lpl = a.newlabel("pl"); Lpr = a.newlabel("pr")
                for s_ in range(4): a.e(f"ds_read_b128 {q4(T+4*s_)}, v12 offset:{1152*s_}")
                a.e("s_waitcnt lgkmcnt(2)")
                for r in range(4): a.e(f"v_add_f32 v{T+r}, v{T+r}, v{T+4+r}")
                a.e("s_waitcnt lgkmcnt(0)")
                for r in range(4): a.e(f"v_add_f32 v{T+8+r}, v{T+8+r}, v{T+12+r}")
                for r in range(4): a.e(f"v_add_f32 v{T+r}, v{T+r}, v{T+8+r}")
                a.e(f"v_min_u32 v{T+3}, {SENT_MIN}, v{T+3}")
                a.e(f"buffer_store_dwordx4 {q4(T)}, v13, s[8:11], s34 offen sc1")
                st(9)
                if 'b' in EXP: a.e("s_barrier")
                zero(range(AC, AC + 8))
                a.e(f"s_sleep {XS}" if XS else "s_waitcnt vmcnt(0)")
                st(10)
                a.label(Lpl)
                for i in range(3): a.e(f"buffer_load_dwordx4 {q4(T+4+4*i)}, v13, s[8:11], s{38+i} offen sc1")
                a.e("s_waitcnt vmcnt(2)")
                for r in range(4): a.e(f"v_add_f32 v{T+16+r}, v{T+r}, v{T+4+r}")
                a.e(f"""
                s_waitcnt vmcnt(0)
                v_max3_u32 v18, v{T+7}, v{T+11}, v{T+15}
                v_cmp_eq_u32 vcc, -1, v18
                """)
                for r in range(4): a.e(f"v_add_f32 v{T+8+r}, v{T+8+r}, v{T+12+r}")
                for r in range(4): a.e(f"v_add_f32 v{T+16+r}, v{T+16+r}, v{T+8+r}")
                a.e(f"""
                v_cvt_pk_bf16_f32 v{T+20}, v{T+16}, v{T+17}
                v_cvt_pk_bf16_f32 v{T+21}, v{T+18}, v{T+19}
                v_min_u32 v{T+21}, {SENT_MIN}, v{T+21}
                s_cbranch_vccnz {Lpr}
                buffer_store_dwordx2 v[{T+20}:{T+21}], v14, s[8:11], s31 offen{sc}
                """)
                st(11)
                if 'o' in EXP: a.e("s_barrier")
                def pretry(Lpr=Lpr, Lpl=Lpl):
                    a.label(Lpr)
                    if diag: a.e("s_add_u32 s94, s94, 1")
                    a.e(f"""
                    s_add_u32 s62, s62, 1
                    s_cmp_gt_u32 s62, {SPIN}
                    s_cbranch_scc1 {Lend}
                    s_branch {Lpl}
                    """)
                cold.append(pretry)
                stflush()
                rotate(w)
            else:
                if 'o' in EXP or 'b' in EXP:
                    if 'w' not in EXP: warm(w)
                    zero(range(AC, AC + 8))
                    a.e("s_barrier")
                if w == 0 and 'f' not in EXP and 'n' not in EXP: prefetch()
                if w == 0 and 'l' in EXP:
                    for i in range(10): a.e(f"ds_read_b128 {q4(KX + 4*i)}, v15 offset:{PFL + 1024*i}")
                if w == 2 and ('z' in EXP or '3' in EXP):
                    Lnl = a.newlabel("nl")
                    a.e(f"""
                    s_cmp_lt_u32 s28, {ZE}
                    s_cbranch_scc1 {Lnl}
                    v_add_u32 v18, s28, v21
                    v_add_u32 v18, 2, v18
                    s_mov_b64 exec, 1
                    buffer_store_dword v18, v14, s[8:11], 0 offen sc1
                    s_mov_b64 exec, -1
                    """)
                    a.label(Lnl)
                elif w == 2:
                    if 'e' in EXP:
                        a.e(f"""
                        v_mov_b32 v18, s28
                        v_add_u32 v18, 1, v18
                        s_mov_b64 exec, 1
                        buffer_store_dword v18, v14, s[8:11], 0 offen sc1
                        s_mov_b64 exec, -1
                        """)
                    elif 'g' in EXP:
                        a.e(f"buffer_store_dwordx4 {q4(T)}, v244, s[8:11], s41 offen sc1")
                    elif 'p' not in EXP:
                        Lnl = a.newlabel("nl")
                        a.e(f"""
                        buffer_store_dwordx4 {q4(T)}, v244, s[8:11], s41 offen sc1
                        v_mov_b32 v18, s28
                        s_mov_b64 exec, 1
                        buffer_store_dword v18, v14, s[8:11], 0 offen sc1
                        s_cmp_lt_u32 s28, {0 if 'a' in EXP else 59}
                        s_cbranch_scc1 {Lnl}
                        s_waitcnt vmcnt(0)
                        v_add_u32 v18, 1, v18
                        buffer_store_dword v18, v14, s[8:11], 0 offen sc1
                        """)
                        a.label(Lnl)
                        a.e("s_mov_b64 exec, -1")
                if w == 3 and 'z' not in EXP and '2' not in EXP:
                    a.e(f"""
                    buffer_store_dwordx4 v[20:23], v15, s[8:11], s36 offen sc1
                    buffer_store_dwordx4 v[20:23], v244, s[8:11], s32 offen{sc}
                    buffer_store_dwordx4 v[20:23], v245, s[8:11], s32 offen{sc}
                    """)
                if w == 3:
                    a.e(f"""
                    s_add_u32 s5, s28, {3 if 'w' in EXP else 5 if 'n' in EXP else 4}
                    s_min_u32 s5, s5, 64
                    """)
                    wait_kv("s5", True)
                stflush()
                if 'o' not in EXP and 'b' not in EXP:
                    if 'w' not in EXP: warm(w)
                    zero(range(AC, AC + 8))
                rotate(w)
            a.e(f"s_branch {Lstep}")
            a.label(Lfin)
            if w == 0: a.e("s_waitcnt lgkmcnt(0)\ns_barrier\ns_barrier")
            if w == 1: a.e("s_waitcnt vmcnt(0)")
            if w and 'z' in EXP: a.e("s_waitcnt vmcnt(0)\ns_barrier")
            if w == 2 and 'z' not in EXP:
                a.e(f"""
                s_waitcnt lgkmcnt(0)
                buffer_store_dwordx4 {q4(T)}, v244, s[8:11], s41 offen sc1
                s_waitcnt vmcnt(0)
                """)
            if w == 2:
                a.e(f"""
                v_mov_b32 v18, 64
                s_mov_b64 exec, 1
                buffer_store_dword v18, v14, s[8:11], 0 offen sc1
                s_mov_b64 exec, -1
                """)
            if diag:
                rts(7)
                a.e(f"""
                v_writelane_b32 v250, s47, 8
                s_mov_b64 exec, 0xffff
                ds_write_b32 v253, v250
                s_mov_b64 exec, -1
                v_lshlrev_b32 v253, 4, v1
                """)
                for i in range(4):
                    a.e(f"""
                    s_waitcnt lgkmcnt(0)
                    ds_read_b128 v[{100+4*i}:{103+4*i}], v253 offset:{32768 + w*4096 + 1024*i}
                    s_waitcnt lgkmcnt(0)
                    buffer_store_dwordx4 v[{100+4*i}:{103+4*i}], v252, s[8:11], 0 offen offset:{1024*i}
                    """)
            a.e("s_endpgm")
            for f in cold: f()
            cold.clear()

    Lslow = a.newlabel("slowv")
    a.e(f"""
    s_cmp_lg_u32 s27, 0
    s_cbranch_scc1 {Lslow}
    """)
    variant("")
    a.label(Lslow)
    variant(" sc1")
```

```python
class It:
    def __init__(s, ins, name=None, cost=None, after=(), rel=0, dl=999, lds=False, vm=False, nl=None, nv=None, mfma=False):
        s.ins = ins if isinstance(ins, list) else [ins]
        s.name = name; s.after = list(after); s.rel = rel; s.dl = dl
        s.lds = lds; s.vm = vm
        s.nl = nl; s.nv = nv
        s.mfma = mfma
        s.cost = cost if cost is not None else len([x for x in s.ins if not x.endswith(":")])

def schedule(base, chains, lq0, vq0, CAP=2, verbose=False):
    out = []; lq = list(lq0); vq = list(vq0); done = {}
    pos = [0] * len(chains); T = [0]; ll = [99]; vl = [99]; over = [0]; empty = [0]
    def waits(nl, nv, peek=False):
        w = []
        if nl is not None:
            n = 0 if nl == '*' else len(lq) - 1 - (len(lq) - 1 - lq[::-1].index(nl))
            if n < ll[0]:
                w.append(f"lgkmcnt({min(15, n)})")
                if not peek: ll[0] = min(15, n)
        if nv is not None:
            n = len(vq) - 1 - (len(vq) - 1 - vq[::-1].index(nv))
            if n < vl[0]:
                w.insert(0, f"vmcnt({n})")
                if not peek: vl[0] = n
        return ["s_waitcnt " + " ".join(w)] if w else []
    def ready(it, i):
        if it.rel > i: return False
        for nm, d in it.after:
            if nm not in done or T[0] - done[nm] < d: return False
        return True
    def emit(c):
        it = chains[c][pos[c]]; pos[c] += 1
        w = waits(it.nl, it.nv)
        out.extend(w + it.ins)
        if it.lds: lq.append(it.name); ll[0] += 1
        if it.vm: vq.append(it.name); vl[0] += 1
        if it.mfma: T[0] += 1
        if it.name: done[it.name] = T[0]
        return len(w) + (0 if it.mfma else it.cost)
    for i, (ins, need) in enumerate(base):
        out.extend(waits(need, None))
        out.append(ins); T[0] += 1
        nxt = base[i + 1][1] if i + 1 < len(base) else None
        bud = CAP
        while True:
            heads = [c for c in range(len(chains)) if pos[c] < len(chains[c]) and ready(chains[c][pos[c]], i)]
            res = 1 if (nxt is not None and nxt in lq and waits(nxt, None, True)) else 0
            def cst(c):
                it = chains[c][pos[c]]
                return len(waits(it.nl, it.nv, True)) + (0 if it.mfma else it.cost)
            mf = [c for c in heads if chains[c][pos[c]].mfma]
            fl = [c for c in heads if not chains[c][pos[c]].mfma]
            room = bud - (cst(mf[0]) if mf else res)
            fit = [c for c in fl if cst(c) <= room or (cst(c) > CAP and bud == CAP) or chains[c][pos[c]].dl <= i]
            if fit:
                c = min(fit, key=lambda c: chains[c][pos[c]].dl)
                bud -= emit(c)
            elif mf:
                bud -= emit(mf[0])
                if bud < 0: over[0] -= bud
                else: empty[0] += bud
                bud = CAP
            else: break
        bud -= res
        if bud < 0: over[0] -= bud
        else: empty[0] += bud
    for c in range(len(chains)):
        assert pos[c] == len(chains[c]), ("unscheduled", c, chains[c][pos[c]].ins)
    return out, lq[len(lq0):], vq[len(vq0):], dict(mfma=T[0], over=over[0], empty=empty[0], done=done)
```

```python
import sys
from common import *
import rec5

LDS = 163840
ROLE_LDS = 163832

def gen_mega(a, name="mega_kernel", diag=False, nobg=False, norec=False, IL='prio', EXP='', XS=5, slow=False, **kw):
    kernel_header(a, name)
    Lend = a.newlabel("mg_end"); Lbg = a.newlabel("mg_bg"); Lroleset = a.newlabel("mg_role")
    a.e(f"""
    s_cmp_ge_u32 s2, 256
    s_cbranch_scc1 {Lend}
    s_load_dwordx4 s[52:55], s[0:1], {KA['dbg']}
    s_load_dwordx2 s[40:41], s[0:1], {KA['mem0']}
    {"s_memrealtime s[92:93]" if diag else ""}
    s_getreg_b32 s3, hwreg(HW_REG_XCC_ID)
    v_and_b32 v1, 63, v0
    v_lshrrev_b32 v4, 6, v0
    s_and_b32 s3, s3, 7
    v_readfirstlane_b32 s24, v4
    s_waitcnt lgkmcnt(0)
    """)
    srd(a, 8, 54, WS_SIZE)
    srd(a, 20, 52, 256)
    Lnoat = a.newlabel("noat"); Lm0 = a.newlabel("m0"); Lm1 = a.newlabel("m1"); Lnf = a.newlabel("nf"); Lns = a.newlabel("ns"); Lnw = a.newlabel("nw")
    ln = Lane(a)
    a.e(f"""
    s_mov_b32 s100, s54
    v_mov_b32 v7, {ROLE_LDS}
    s_cmp_lg_u32 s24, 0
    s_cbranch_scc1 {Lnoat}
    s_mov_b64 exec, 1
    v_mov_b32 v5, 1
    s_lshl_b32 s4, s3, 2
    v_mov_b32 v6, s4
    buffer_atomic_add v5, v6, s[20:23], 0 offen sc0 sc1
    s_mov_b64 exec, -1
    """)
    a.label(Lnoat)
    a.e(f"""
    s_sub_u32 s101, 0, s100
    s_and_b32 s101, s101, 0x1fffff
    s_add_u32 s101, s101, {WS_PART}
    s_lshl_b32 s4, s2, 2
    s_add_u32 s4, s4, s24           ; piece
    s_lshl_b32 s5, s4, 11
    s_add_u32 s5, s5, s101
    v_lshlrev_b32 v8, 4, v1
    v_mov_b32 v20, -1
    v_mov_b32 v21, -1
    v_mov_b32 v22, -1
    v_mov_b32 v23, -1
    s_cmp_ge_u32 s4, 64
    s_cbranch_scc1 {Lm0}
    """)
    srd(a, 12, 40, 16384)
    a.e("s_and_b32 s6, s4, 15\ns_lshl_b32 s6, s6, 7")
    ln.build(9, [(0, 3, 2048), (3, 2, 16), (5, 1, 64)])
    a.e("buffer_load_dwordx4 v[24:27], v9, s[12:15], s6 offen")
    a.label(Lm0)
    a.e(f"""
    buffer_store_dwordx4 v[20:23], v8, s[8:11], s5 offen sc1
    buffer_store_dwordx4 v[20:23], v8, s[8:11], s5 offen offset:1024 sc1
    s_lshl_b32 s5, s4, 10
    s_sub_u32 s6, s4, 64
    s_cmp_ge_u32 s6, {FL_KB}
    s_cbranch_scc1 {Lnf}
    v_mov_b32 v24, 0
    v_mov_b32 v25, 0
    v_mov_b32 v26, 0
    v_mov_b32 v27, 0
    s_add_u32 s6, s5, {WS_FLAG - 64*1024}
    buffer_store_dwordx4 v[24:27], v8, s[8:11], s6 offen sc1
    """)
    a.label(Lnf)
    a.e(f"""
    s_add_u32 s5, s5, {WS_RING}
    s_cmp_ge_u32 s4, 64
    s_cbranch_scc1 {Lm1}
    s_waitcnt vmcnt(2)
    v_mov_b32 v20, v24
    v_min_u32 v21, 0xfffffffe, v25
    v_mov_b32 v22, v26
    v_min_u32 v23, 0xfffffffe, v27
    """)
    a.label(Lm1)
    a.e(f"""
    buffer_store_dwordx4 v[20:23], v8, s[8:11], s5 offen sc1
    s_waitcnt vmcnt(0)
    s_cmp_lg_u32 s24, 0
    s_cbranch_scc1 {Lnw}
    s_mov_b64 exec, 1
    ds_write_b32 v7, v5
    s_waitcnt lgkmcnt(0)
    s_mov_b64 exec, -1
    """)
    a.label(Lnw)
    a.e(f"""
    s_barrier
    ds_read_b32 v5, v7
    s_cmp_lg_u32 s24, 1
    s_cbranch_scc1 {Lns}
    s_mov_b64 exec, 1
    v_mov_b32 v6, 1
    buffer_atomic_add v6, v8, s[20:23], 0 offen offset:{4*C_ARM} sc1
    s_mov_b64 exec, -1
    """)
    a.label(Lns)
    a.e(f"""
    s_waitcnt lgkmcnt(0)
    v_readfirstlane_b32 s26, v5
    s_mov_b32 s25, s3
    s_mov_b32 s27, 0
    s_and_b32 s26, s26, 31
    """)
    a.label(Lroleset)
    def verify_issue():
        a.e("""
        v_lshlrev_b32 v239, 2, v1
        buffer_load_dword v238, v239, s[20:23], 0 offen sc1
        """)
    def verify_check():
        Lp = a.newlabel("vp"); Ld = a.newlabel("vd"); La = a.newlabel("va")
        a.e(f"""
        s_cmp_lg_u32 s27, 0
        s_cbranch_scc1 {Ld}
        s_mov_b32 s62, 0
        """)
        a.label(Lp)
        a.e(f"""
        v_readlane_b32 s4, v238, {C_ARM}
        s_cmp_ge_u32 s4, 256
        s_cbranch_scc1 {La}
        s_add_u32 s62, s62, 1
        s_cmp_gt_u32 s62, 0x100000
        s_cbranch_scc1 {Lend}
        s_sleep 16
        buffer_load_dword v238, v239, s[20:23], 0 offen sc1
        s_waitcnt vmcnt(0)
        s_branch {Lp}
        """)
        a.label(La)
        a.e(f"""
        v_cmp_ne_u32 vcc, {33 if slow else 32}, v238
        s_and_b32 s4, vcc_lo, 0xff
        s_cbranch_scc0 {Ld}
        s_lshr_b32 s25, s2, 5
        s_and_b32 s26, s2, 31
        s_mov_b32 s27, 1
        s_waitcnt vmcnt(0) lgkmcnt(0)
        s_barrier
        s_branch {Lroleset}
        """)
        a.label(Ld)
    a.e(f"""
    s_cmp_ge_u32 s25, 4
    s_cbranch_scc1 {Lbg}
    """)
    if norec:
        a.e("s_endpgm")
    else:
        rec5.body_rec(a, Lend, verify_issue, verify_check, diag=diag, nowait=nobg, IL=IL, EXP=EXP, XS=XS)
    a.label(Lbg)
    if not nobg:
        import bg3
        bg3.body_bg(a, Lend, verify_issue, verify_check, diag=diag, norec=norec, **kw)
    a.label(Lend)
    a.e("s_endpgm")
    kernel_desc(a, name, 512, 102, 256)

HEADER = open('cdna_kernels/' + NAME + '.s.ref').read().split('; Override launch geometry')[0]

def build(out, **kw):
    a = Asm()
    a.raw(HEADER.rstrip("\n"))
    a.raw(f"; @launch kernel=mega_kernel grid=(256,1,1) block=(256,1,1) lds={LDS}")
    a.raw('.amdgcn_target "amdgcn-amd-amdhsa--gfx950"')
    gen_mega(a, **kw)
    open(out, 'w').write(a.text())

if __name__ == '__main__':
    out = sys.argv[1]
    kw = {}
    for o in sys.argv[2:]:
        if '=' in o:
            k, v = o.split('=')
            try: v = int(v)
            except: pass
            kw[k] = v
        else: kw[o] = True
    if out == 'main': out = 'cdna_kernels/' + NAME + '.s'
    build(out, **kw)
```

```python
from common import *
def q4(r): return f"v[{r}:{r+3}]"
def a4(r): return f"a[{r}:{r+3}]"
def p2(r): return f"v[{r}:{r+1}]"

USZ = 7680; KC = 16 * USZ; KC1 = 4160; KCS = 2 * KC1
RAW = [32, 108]; TAP = 184; UP = 216; STG = 184; EPI = 220; MSK = 24; AD = 16

def body_abr(a, st, verify, GMAP=0):
    ln = Lane(a)
    a.e(f"""
    s_load_dwordx8 s[40:47], s[0:1], {KA['q']}
    s_load_dwordx4 s[48:51], s[0:1], {KA['ssmk']}
    s_load_dwordx2 s[52:53], s[0:1], {KA['gate']}
    s_mul_i32 s6, s24, {KCS}
    s_add_u32 s6, s6, {KC}
    s_lshl_b32 s97, s95, {4 if GMAP else 5}
    s_and_b32 s4, s99, {16 if GMAP else 0}
    s_add_u32 s97, s97, s4
    s_add_u32 s97, s97, s99
    s_lshl_b32 s4, s97, 16
    s_lshl_b32 s5, s24, 14
    s_add_u32 s4, s4, s5
    v_lshlrev_b32 v2, 4, v1
    """)
    ln.build(3, [(0, 3, 2048), (4, 2, 16)], 0, ["s4"])
    ln.build(4, [(4, 2, 16)], 0, ["s6"])
    a.e("s_waitcnt lgkmcnt(0)")
    srd(a, 12, 40, 2048 * 1024 * 2)
    srd(a, 16, 42, 2048 * 1024 * 2)
    srd(a, 28, 44, 2048 * 1024 * 2)
    srd(a, 32, 46, 1024 * 8)
    srd(a, 36, 48, 1024 * 2048 * 2)
    srd(a, 56, 52, 2048)
    a.e("""
    s_mov_b32 m0, s6
    s_lshl_b32 s60, s97, 4
    buffer_load_dwordx4 v2, s[56:59], 0 offen lds
    buffer_load_dwordx4 v2, s[56:59], 0 offen offset:1024 lds
    s_add_u32 s61, s60, s24         ; channel
    v_subrev_u32 v5, 4, v2
    """)
    for ks in range(32): a.e(f"buffer_load_dwordx4 {a4(4*ks)}, v3, s[12:15], 0 offen offset:{64*ks}")
    def stage():
        a.e("s_lshl_b32 s4, s61, 12\nv_add_u32 v6, s4, v5")
        for i in range(4):
            a.e(f"buffer_load_dwordx4 {q4(STG+4*i)}, v2, s[36:39], s4 offen offset:{1024*i}")
        a.e(f"buffer_load_dword v{STG+16}, v6, s[36:39], 0 offen")
        for i in range(1, 4):
            a.e(f"buffer_load_dword v{STG+16+i}, v2, s[36:39], s4 offen offset:{1024*i-4}")
    a.e("s_lshl_b32 s4, s24, 19\ns_lshl_b32 s5, s97, 5\ns_add_u32 s4, s4, s5")
    ln.build(7, [(1, 5, 16384), (0, 1, 16)], 0, ["s4"])
    def raw(it):
        R = RAW[it]
        if it: a.e(f"v_add_u32 v7, {1024*2048}, v7")
        for r in range(3):
            a.e(f"v_subrev_u32 v8, {2048*(3-r)}, v7")
            a.e(f"buffer_load_dwordx4 {q4(R+4*r)}, v8, s[16:19], 0 offen")
        for r in range(8):
            if r % 2 == 0: a.e(f"s_mov_b32 s4, {2048*r}")
            a.e(f"buffer_load_dwordx4 {q4(R+12+4*r)}, v7, s[16:19], s4 offen offset:{2048*(r&1)}")
            a.e(f"buffer_load_dwordx4 {q4(R+44+4*r)}, v7, s[28:31], s4 offen offset:{2048*(r&1)}")
    a.e("s_waitcnt vmcnt(32)")
    for ks in range(32): a.e(f"ds_read_b128 {a4(128+4*ks)}, v4 offset:{64*ks}")
    raw(0)
    a.e(f"""
    v_add_u32 v9, s6, v2
    v_and_b32 v12, 31, v1
    v_lshrrev_b32 v13, 5, v1
    v_lshlrev_b32 v14, 3, v13
    v_sub_u32 v14, v12, v14         ; c = m - 8g
    v_add_u32 v15, 10, v14
    v_and_b32 v10, 1, v15
    v_xor_b32 v10, 1, v10
    v_mul_u32_u24 v10, {KC1}, v10
    v_lshrrev_b32 v15, 1, v15
    v_lshl_add_u32 v10, v15, 2, v10
    v_add_u32 v10, s6, v10
    v_mul_u32_u24 v11, 80, v12
    v_lshl_add_u32 v11, v13, 4, v11
    s_mul_i32 s4, s24, {USZ}
    s_sub_u32 s4, s4, {80*31}
    v_add_u32 v11, s4, v11
    """)
    for ks in range(2):
        for d in range(4):
            a.e(f"""
            v_cmp_eq_u32 vcc, {16*ks + 7 - 2*d}, v14
            v_mov_b32 v15, 0xffff
            s_nop 0
            v_cndmask_b32 v{MSK+4*ks+d}, 0, v15, vcc
            v_cmp_eq_u32 vcc, {16*ks + 6 - 2*d}, v14
            v_mov_b32 v15, 0xffff0000
            s_nop 0
            v_cndmask_b32 v{MSK+4*ks+d}, v{MSK+4*ks+d}, v15, vcc
            """)
    a.e("s_waitcnt lgkmcnt(0)")
    for ks in range(32):
        a.e(f"s_waitcnt vmcnt({19 + 31 - ks})")
        a.e(f"v_mfma_f32_16x16x32_bf16 {q4(UP)}, {a4(128+4*ks)}, {a4(4*ks)}, {'0' if ks == 0 else q4(UP)}")
    raw(1)
    a.e(f"""
    v_cvt_pk_bf16_f32 v{UP}, v{UP}, v{UP}
    v_lshlrev_b32 v{UP}, 16, v{UP}
    v_mul_f32 v{UP}, 0xbfb8aa3b, v{UP}
    v_exp_f32 v{UP}, v{UP}
    s_lshl_b32 s4, s97, 7
    v_add_f32 v{UP}, 1.0, v{UP}
    v_rcp_f32 v{UP}, v{UP}
    s_lshl_b32 s5, s24, 5
    v_cvt_pk_bf16_f32 v{UP}, v{UP}, v{UP}
    v_lshlrev_b32 v{UP}, 16, v{UP}
    s_add_u32 s4, s4, s5
    s_add_u32 s4, s4, {WS_G}
    v_lshlrev_b32 v15, 2, v1
    s_mov_b64 exec, 0xff
    buffer_store_dword v{UP}, v15, s[8:11], s4 offen sc1
    s_mov_b64 exec, -1
    """)
    st()
    for r in range(4): a.e(f"v_mov_b32 v{UP+4+r}, 0")
    a.e(f"s_mul_i32 s4, s24, {USZ}\nv_add_u32 v15, s4, v2")
    for cc in range(4):
        for o in (0, 1024, 1536):
            a.e(f"ds_write_b128 v15, {q4(UP+4)} offset:{o}")
        a.e(f"v_add_u32 v15, {4*USZ}, v15")
    a.e(f"""
    s_mov_b64 exec, 0xf
    ds_write_b128 v9, {q4(UP+4)}
    ds_write_b128 v9, {q4(UP+4)} offset:{KC1}
    s_mov_b64 exec, -1
    s_mul_i32 s4, s24, {8*80}
    s_add_u32 s4, s4, 2560
    """)
    ln.build(12, [(0, 1, 8*USZ), (3, 3, 80), (1, 2, 16)], 0, ["s4"])
    a.e("s_lshl_b32 s4, s97, 7")
    ln.build(13, [(0, 1, 64)], 0, ["s4"])
    Lp = a.newlabel("pass"); Lc = a.newlabel("chan"); Lnr = a.newlabel("nr")
    for i in range(4): a.e(f"buffer_load_dwordx4 {q4(UP+4*i)}, v13, s[32:35], 0 offen offset:{16*i}")
    verify()
    for d in range(4):
        for t in range(4):
            for h in range(2):
                src = UP + 4*d + 2*h + (t >> 1)
                a.e(f"v_and_b32 v{TAP+8*d+2*t+h}, 0xffff0000, v{src}" if t & 1 else f"v_lshlrev_b32 v{TAP+8*d+2*t+h}, 16, v{src}")
    VT = UP + 22; OP = UP + 26
    for it in range(2):
        R = RAW[it]
        for d in range(4):
            for r in range(11):
                a.e(f"v_lshlrev_b32 v{UP+2*r}, 16, v{R+4*r+d}\nv_and_b32 v{UP+2*r+1}, 0xffff0000, v{R+4*r+d}")
            for r in range(8):
                vt = VT + 2*(r & 1)
                a.e(f"""
                v_pk_mul_f32 {p2(UP+2*r)}, {p2(UP+2*r)}, {p2(TAP+8*d+6)}
                v_lshlrev_b32 v{vt}, 16, v{R+44+4*r+d}
                v_pk_fma_f32 {p2(UP+2*r)}, {p2(UP+2*r+2)}, {p2(TAP+8*d+4)}, {p2(UP+2*r)}
                v_and_b32 v{vt+1}, 0xffff0000, v{R+44+4*r+d}
                v_pk_fma_f32 {p2(UP+2*r)}, {p2(UP+2*r+4)}, {p2(TAP+8*d+2)}, {p2(UP+2*r)}
                v_pk_fma_f32 {p2(UP+2*r)}, {p2(UP+2*r+6)}, {p2(TAP+8*d)}, {p2(UP+2*r)}
                v_pk_mul_f32 {p2(UP+2*r)}, {p2(UP+2*r)}, {p2(vt)}
                """)
            for h in range(2):
                for i in range(4):
                    a.e(f"v_cvt_pk_bf16_f32 v{OP+4*h+i}, v{UP+2*(7-2*i)+h}, v{UP+2*(6-2*i)+h}")
                a.e(f"ds_write_b128 v12, {q4(OP+4*h)} offset:{(2*d+h)*USZ + it*32*80}")
    stage()
    a.e("s_waitcnt vmcnt(0)")
    a.e("s_waitcnt lgkmcnt(0)\ns_barrier\ns_mov_b32 s64, 0")
    st()
    a.label(Lc)
    a.e(f"""
    s_lshr_b32 s4, s61, 1
    s_lshl_b32 s4, s4, 2
    s_load_dword s65, s[50:51], s4
    s_lshl_b32 s7, s61, 12
    s_add_u32 s7, s7, {WS_YT}
    v_writelane_b32 v{STG+16}, 0, 0
    """)
    for i in range(4):
        r = STG + 4*i
        a.e(f"ds_write_b128 v9, {q4(r)} offset:{64+1024*i}")
        for k in range(4):
            a.e(f"v_alignbit_b32 v{STG+20+4*i+k}, v{r+k}, v{STG+16+i if k == 0 else r+k-1}, 16")
        a.e(f"ds_write_b128 v9, {q4(STG+20+4*i)} offset:{KC1+64+1024*i}")
    a.e(f"""
    s_and_b32 s4, s61, 1
    s_lshl_b32 s4, s4, 4
    s_waitcnt lgkmcnt(0)
    s_lshr_b32 s65, s65, s4
    s_pack_ll_b32_b16 s65, s65, s65
    s_add_u32 s61, s61, 4
    s_cmp_eq_u32 s64, 3
    s_cbranch_scc1 {Lc}_ns
    """)
    stage()
    a.label(Lc + "_ns")
    for r in range(8): a.e(f"v_and_b32 v{AD+r}, s65, v{MSK+r}")
    a.e("v_mov_b32 v14, v10")
    ops = []
    for u in range(128):
        ops.append(('A', u, 0)); ops.append(('B', u, 1))
        if (u >> 1) <= 31: ops.append(('B', u, 0))
    NAr = 6; NBr = 8; cnt = {'A': 0, 'B': 0}; slot = {}
    def issue(op):
        kind, u, nt = op
        if kind == 'A':
            r = 32 + (cnt['A'] % NAr) * 4; cnt['A'] += 1; slot[op] = r
            o = (8 * u) % 256
            a.e(f"ds_read2_b32 a[{r}:{r+1}], v14 offset0:{o} offset1:{o+1}")
            a.e(f"ds_read2_b32 a[{r+2}:{r+3}], v14 offset0:{o+2} offset1:{o+3}")
            if u % 32 == 31: a.e("v_add_u32 v14, 1024, v14")
        else:
            d, ks = u >> 1, 1 - (u & 1)
            r = 56 + (cnt['B'] % NBr) * 4; cnt['B'] += 1; slot[op] = r
            a.e(f"ds_read_b128 {a4(r)}, v11 offset:{80*(63-d) + 32*ks + 2560*nt}")
    LOOK = 7
    cost = [2 if o[0] == 'A' else 1 for o in ops]
    for i in range(LOOK): issue(ops[i])
    for i, op in enumerate(ops):
        if i + LOOK < len(ops): issue(ops[i + LOOK])
        if op[0] == 'B':
            after = sum(cost[i + 1:min(i + LOOK + 1, len(ops))])
            a.e(f"s_waitcnt lgkmcnt({after})")
            u, nt = op[1], op[2]
            fr = slot[('A', u, 0)]; br = slot[op]
            d = f"a[{16*nt}:{16*nt+15}]"
            a.e(f"v_mfma_f32_32x32x16_bf16 {d}, {a4(fr)}, {a4(br)}, {'0' if u == 0 else d}")
            if u < 2: a.e(f"v_mfma_f32_32x32x16_bf16 {d}, {q4(AD+4*(1-u))}, {a4(br)}, {d}")
    for nt in range(2):
        for r in range(16): a.e(f"v_accvgpr_read_b32 v{EPI+r}, a{16*nt+r}")
        for i in range(8): a.e(f"v_cvt_pk_bf16_f32 v{EPI+16+i}, v{EPI+2*i}, v{EPI+2*i+1}")
        a.e("s_nop 0")
        for ii in range(2):
            p = EPI + 16 + 4*ii
            a.e(f"v_permlane32_swap_b32 v{p}, v{p+2}\nv_permlane32_swap_b32 v{p+1}, v{p+3}")
        for ii in range(2):
            a.e(f"buffer_store_dwordx4 {q4(EPI+16+4*ii)}, v2, s[8:11], s7 offen offset:{2048*nt+1024*ii} sc1")
    st()
    a.e(f"""
    v_add_u32 v11, {4*USZ}, v11
    s_add_u32 s64, s64, 1
    s_cmp_lt_u32 s64, 4
    s_waitcnt vmcnt(4)
    s_cbranch_scc1 {Lc}
    """)
```

```python
from common import *
import abr3 as abr
from sched import It, schedule

SPIN = "0x200000"
def q4(r): return f"v[{r}:{r+3}]"
def a4(r): return f"a[{r}:{r+3}]"

def body_bg(a, Lend, verify_issue, verify_check, diag=False, norec=False, stop=0, noabr=0, XW=3, QS=4, GS=4, QD=2, QM=76, GE='', G2=1, FS=4, GB1=14, GB2=50, GP2=92, GST=0, FD=1, OT=0, FS2=12, GFL=72, arm_signal=None, AW=0, AWS=64, GMAP=1, DLY=0, DLYA=0, OUTF='', OSC=0, AB=0, AWN=1, XP=0, TW=0, TE=62, **kw):
    ln = Lane(a)
    def st(cond=None):
        if not diag: return
        L1 = a.newlabel("st"); L2 = a.newlabel("st")
        a.e(f"""
        s_memrealtime s[72:73]
        s_memtime s[74:75]
        s_waitcnt lgkmcnt(0)
        s_lshl_b64 exec, 1, s96
        s_cmp_lt_u32 s96, 64
        s_cbranch_scc0 {L1}
        v_mov_b32 v250, s72
        v_mov_b32 v252, s74
        s_branch {L2}
        """)
        a.label(L1)
        a.e("v_mov_b32 v251, s72\nv_mov_b32 v253, s74")
        a.label(L2)
        a.e("s_add_u32 s96, s96, 1\ns_min_u32 s96, s96, 127\ns_mov_b64 exec, -1")
    def finish():
        if diag:
            st()
            a.e(f"""
            s_lshl_b32 s4, s98, 5
            s_add_u32 s4, s4, s99
            s_lshl_b32 s4, s4, 10
            s_add_u32 s4, s4, {WS_DIAG + 0x400000}
            v_lshlrev_b32 v4, 2, v1
            s_lshl_b32 s5, s24, 17
            s_add_u32 s4, s4, s5
            buffer_store_dword v250, v4, s[8:11], s4 offen
            buffer_store_dword v251, v4, s[8:11], s4 offen offset:256
            buffer_store_dword v252, v4, s[8:11], s4 offen offset:512
            buffer_store_dword v253, v4, s[8:11], s4 offen offset:768
            """)
        a.e("s_endpgm")
    def wait_dbg(idx, target, slp=8):
        L = a.newlabel("wc"); D = a.newlabel("wd")
        a.e("s_mov_b32 s62, 0\nv_mov_b32 v5, 0")
        a.label(L)
        a.e(f"""
        buffer_load_dword v4, v5, s[20:23], 0 offen offset:{4*idx} sc1
        s_add_u32 s62, s62, 1
        s_cmp_gt_u32 s62, {SPIN}
        s_cbranch_scc1 {Lend}
        s_waitcnt vmcnt(0)
        v_readfirstlane_b32 s4, v4
        s_cmp_ge_u32 s4, {target}
        s_cbranch_scc1 {D}
        s_sleep {slp}
        s_branch {L}
        """)
        a.label(D)
    def signal(idx):
        L = a.newlabel("sg")
        a.e(f"""
        s_cmp_lg_u32 s24, 0
        s_cbranch_scc1 {L}
        s_mov_b64 exec, 1
        v_mov_b32 v4, 1
        v_mov_b32 v5, 0
        buffer_atomic_add v4, v5, s[20:23], 0 offen offset:{4*idx} sc1
        s_mov_b64 exec, -1
        """)
        a.label(L)
    def wsetup(stride, base):
        a.e("s_lshl_b32 s6, s24, 14")
        ln.build(240, [(2, 4, stride), (0, 2, 16)], 0, [base])
        ln.build(242, [(4, 2, 512), (2, 2, 64), (0, 2, 16)], 0, ["s6"])
        a.e("v_add_u32 v243, 0x10000, v242")
    def wdma(q, stride):
        for i in range(16):
            a.e(f"""
            s_add_u32 m0, s6, {(q&1)*65536 + i*1024}
            s_mov_b32 s5, {(256*q + 16*i)*stride}
            buffer_load_dwordx4 v240, s[16:19], s5 offen nt lds
            """)
    def wtr(q):
        for k in range(8):
            for t in range(2):
                for h in range(2):
                    r = ((8*q + k)*2 + t)*4 + 2*h
                    a.e(f"ds_read_b64_tr_b16 a[{r}:{r+1}], v{242+(q&1)} offset:{k*2048 + h*256 + 8*t}")
        a.e("s_waitcnt lgkmcnt(0)")
    def wsetup2(base, S=8192):
        a.e(f"""
        s_lshl_b32 s6, s24, 14
        s_mul_i32 s5, s24, {64*S}
        s_add_u32 {base}, {base}, s5
        v_bfe_u32 v2, v1, 4, 1
        v_lshlrev_b32 v2, 2, v2
        v_and_b32 v3, 7, v1
        v_xor_b32 v2, v2, v3
        v_lshlrev_b32 v2, 4, v2
        """)
        ln.build(240, [(3, 2, S), (5, 1, 128)], 0, [base, "v2"])
        a.e("""
        s_lshr_b32 s5, s24, 1
        s_lshl_b32 s5, s5, 9
        v_bfe_u32 v2, v1, 3, 1
        v_xor_b32 v2, s24, v2
        v_and_b32 v2, 1, v2
        v_lshlrev_b32 v2, 6, v2
        """)
        ln.build(242, [(4, 2, 2048), (2, 2, 128), (0, 2, 16)], 0, ["s5", "v2"])
        a.e("v_add_u32 v243, 0x10000, v242")
    def wdma2(q, S=8192):
        for i in range(16):
            a.e(f"""
            s_add_u32 m0, s6, {(q&1)*65536 + i*1024}
            s_mov_b32 s5, {(256*q + 4*i)*S}
            buffer_load_dwordx4 v240, s[16:19], s5 offen nt lds
            """)
    def wtr2(q):
        a.e("s_barrier")
        for k in range(8):
            for t in range(2):
                for h in range(2):
                    r = ((8*q + k)*2 + t)*4 + 2*h
                    a.e(f"ds_read_b64_tr_b16 a[{r}:{r+1}], v{242+(q&1)} offset:{k*8192 + h*1024 + 8*t}")
        a.e("s_waitcnt lgkmcnt(0)\ns_barrier")
    def minred(r, steps):
        for p in ("quad_perm:[1,0,3,2]", "quad_perm:[2,3,0,1]", "row_half_mirror", "row_mirror")[:steps]:
            a.e(f"v_min_u32_dpp v{r}, v{r}, v{r} {p} row_mask:0xf bank_mask:0xf\ns_nop 1")

    Lph2 = a.newlabel("ph2"); Lqkv = a.newlabel("qkv")
    a.e(f"""
    s_lshr_b32 s98, s26, 3
    s_add_u32 s98, s98, 1
    s_and_b32 s98, s98, 3
    s_and_b32 s99, s25, 3
    s_lshl_b32 s99, s99, 3
    s_and_b32 s4, s26, 7
    s_add_u32 s99, s99, s4
    s_mov_b32 s96, 0
    v_and_b32 v1, 63, v0
    v_mov_b32 v250, 0
    v_mov_b32 v251, 0
    """)
    if diag: a.e("v_writelane_b32 v250, s92, 0\ns_mov_b32 s96, 1")
    st()
    def verify():
        verify_issue()
        a.e("s_waitcnt vmcnt(0)")
        verify_check()
    def dly(n):
        Ld = a.newlabel("dly")
        a.label(Ld)
        a.e(f"""
        s_memrealtime s[72:73]
        s_waitcnt lgkmcnt(0)
        s_sub_u32 s72, s72, s92
        s_cmp_lt_u32 s72, {n*100}
        s_cbranch_scc1 {Ld}
        """)
    if DLYA: dly(DLYA)
    a.e(f"""
    s_bitcmp0_b32 s26, 4
    s_cbranch_scc1 {Lqkv}
    s_bfe_u32 s95, s26, 0x10003
    """)
    if DLY: dly(DLY)
    if XP: a.e(f"s_load_dwordx2 s[40:41], s[0:1], {KA['q']}")
    a.e("s_waitcnt vmcnt(0)\ns_barrier")
    arm_signal()
    if XP:
        a.e("""
        s_and_b32 s4, s26, 15
        s_lshl_b32 s4, s4, 2
        s_add_u32 s4, s4, s24
        s_lshl_b32 s5, s4, 13
        v_lshlrev_b32 v6, 7, v1
        s_waitcnt lgkmcnt(0)
        """)
        srd(a, 12, 40, 2048 * 1024 * 2)
        a.e("""
        buffer_load_dword v7, v6, s[12:15], s5 offen
        s_and_b32 s5, s25, 3
        s_lshl_b32 s5, s5, 6
        s_add_u32 s4, s4, s5
        s_lshl_b32 s4, s4, 14
        s_add_u32 s4, s4, 0x80000
        v_add_u32 v6, s4, v6
        v_add_u32 v8, 0x2000, v6
        """)
    if AW:
        La = a.newlabel("aw"); Lv0 = a.newlabel("aw")
        a.e(f"""
        s_cmp_lg_u32 s24, 0
        s_cbranch_scc1 {La}
        s_mov_b32 s62, 0
        """)
        a.label(Lv0)
        a.e(f"""
        s_sleep {AWS}
        s_add_u32 s62, s62, 1
        s_cmp_gt_u32 s62, {SPIN}
        s_cbranch_scc1 {Lend}
        """)
        verify_issue()
        a.e(f"""
        s_waitcnt vmcnt(0)
        v_readlane_b32 s4, v238, {C_ARM}
        s_and_b32 s5, s4, 0xffff
        s_cmp_lt_u32 s5, 256
        s_cbranch_scc1 {Lv0}
        s_lshr_b32 s4, s4, 16
        s_cbranch_scc1 {La}
        """)
        Lw = a.newlabel("aw")
        a.e(f"""
        s_and_b32 s4, s99, 30
        s_lshl_b32 s4, s4, 9
        s_lshl_b32 s5, s95, 14
        s_add_u32 s4, s4, s5
        s_and_b32 s5, s99, 1
        s_lshl_b32 s5, s5, 7
        s_add_u32 s4, s4, s5
        {"s_lshl_b32 s4, s99, 9" if AB else ""}
        s_add_u32 s4, s4, {FL_K + (4 if AW < 3 else 0)}
        v_mov_b32 v5, 0
        s_mov_b32 s62, 0
        """)
        a.label(Lw)
        a.e(f"""
        buffer_load_dword v4, v5, s[8:11], s4 offen sc1
        s_add_u32 s62, s62, 1
        s_cmp_gt_u32 s62, {SPIN}
        s_cbranch_scc1 {Lend}
        s_waitcnt vmcnt(0)
        v_readfirstlane_b32 s5, v4
        s_cmp_ge_u32 s5, {AWN}
        s_cbranch_scc1 {La}
        s_sleep 16
        s_branch {Lw}
        """)
        a.label(La)
        a.e("s_barrier")
    if XP == 2: a.e("buffer_load_dword v7, v6, s[12:15], 0 offen\nbuffer_load_dword v9, v8, s[12:15], 0 offen")
    def conv(vf):
        abr.body_abr(a, st, vf, GMAP)
        a.e("s_waitcnt vmcnt(0)\ns_barrier")
        signal(C_CONV)
    if AB: verify()
    else: conv(verify)
    st()
    a.e(f"s_cmp_eq_u32 s98, 3\ns_cbranch_scc1 {Lph2}")
    a.label(Lqkv)
    a.e(f"""
    s_lshl_b32 s4, s98, 3
    s_add_u32 s4, s4, {KA['wq']}
    s_load_dwordx2 s[40:41], s[0:1], {KA['q']}
    s_load_dwordx2 s[42:43], s[0:1], s4
    s_lshl_b32 s4, s99, 8
    """)
    wsetup2("s4")
    a.e("s_waitcnt lgkmcnt(0)")
    srd(a, 12, 40, 2048 * 1024 * 2)
    srd(a, 16, 42, 1024 * 4096 * 2)
    wdma2(0)
    a.e("s_waitcnt vmcnt(16)\ns_barrier"); arm_signal()
    wdma2(1)
    XR = 64; ACC = [192, 208]; OUT = 224
    a.e("v_and_b32 v2, 15, v1\nv_lshrrev_b32 v3, 4, v1\nv_lshlrev_b32 v4, 11, v2")
    for j in range(4):
        a.e(f"""
        v_add_u32 v5, {4*j}, v3
        v_xor_b32 v5, v5, v2
        v_lshl_add_u32 v{8+j}, v5, 4, v4
        v_add_u32 v{12+j}, 0x10000, v{8+j}
        """)
    a.e("s_lshl_b32 s4, s24, 3\ns_and_b32 s4, s4, 8")
    for r in range(8):
        a.e(f"""
        s_add_u32 s5, s4, {r}
        v_xor_b32 v5, s5, v1
        s_add_u32 s5, s6, {(r>>1)*4096}
        v_lshlrev_b32 v5, 4, v5
        v_add_u32 v{16+r}, s5, v5
        """)
    a.e(f"""
    s_cmp_eq_u32 s98, 2
    s_cselect_b32 s4, 11, 10
    s_cselect_b32 s5, 1, 4
    s_lshl_b32 s5, s5, 10
    s_lshl_b32 s4, s24, s4
    v_lshlrev_b32 v24, 4, v1
    v_add_u32 v24, s4, v24
    v_add_u32 v25, s5, v24
    v_mov_b32 v26, 0
    s_and_b32 s4, s99, 7
    s_lshl_b32 s4, s4, 13
    s_lshl_b32 s5, s24, 11
    s_add_u32 s4, s4, s5
    s_add_u32 s4, s4, {XW*0x10000}
    v_lshlrev_b32 v28, 5, v1
    v_add_u32 v28, s4, v28
    s_lshl_b32 s31, s98, 24
    s_lshl_b32 s4, s99, 13
    s_add_u32 s31, s31, s4
    s_mov_b32 s30, {WS_JUNK}
    s_mov_b32 s28, 0                ; block
    s_mov_b32 s29, 0
    s_waitcnt vmcnt(16)
    """)
    wtr2(0)
    wdma2(2)
    a.e("s_waitcnt vmcnt(16)")
    a.e(f"""
    s_lshl_b32 s4, s99, 9
    s_lshl_b32 s5, s24, 7
    s_add_u32 s4, s4, s5
    s_lshl_b32 s5, s98, 14
    s_add_u32 s4, s4, s5
    s_add_u32 s94, s4, {WS_FLAG}
    """)
    wtr2(1)
    verify_issue()
    wdma2(3)
    a.e("s_waitcnt vmcnt(16)")
    verify_check()
    if AW == 1: a.e("v_mov_b32 v27, 1\ns_mov_b64 exec, 1\nbuffer_store_dword v27, v26, s[8:11], s94 offen offset:4 sc1\ns_mov_b64 exec, -1")
    wtr2(2)
    def xdma(k, buf):
        r, hf = k >> 1, k & 1
        L = []
        if k % 4 == 0: L.append(f"s_add_u32 m0, s6, {buf*65536 + (k>>2)*4096}")
        L.append(f"buffer_load_dwordx4 v{16+r}, s[12:15], s29 offen offset:{(r&1)*2048 + hf*1024} lds")
        return L
    def xread(f, buf):
        ks, kt = f >> 1, f & 1
        return f"ds_read_b128 {q4(XR + 4*(f&31))}, v{8 + 4*buf + (ks&3)} offset:{(ks>>2)*256 + kt*32768}"
    for k in range(16):
        L = xdma(k, 0)
        if len(L) == 2: L.insert(1, "s_nop 0")
        for x in L: a.e(x)
    a.e("s_waitcnt vmcnt(16)")
    if AW == 2: a.e("v_mov_b32 v27, 1\ns_mov_b64 exec, 1\nbuffer_store_dword v27, v26, s[8:11], s94 offen offset:4 sc1\ns_mov_b64 exec, -1")
    wtr2(3)
    st()
    Lq = a.newlabel("qa")
    a.e("s_waitcnt vmcnt(0)\ns_barrier\ns_mov_b32 s29, 0x10000")
    for f in range(16): a.e(xread(f, 0))
    for k in range(6):
        L = xdma(k, 1)
        if len(L) == 2: L.insert(1, "s_nop 0")
        for x in L: a.e(x)
    st()
    Lv = a.newlabel("vt"); Lqe = a.newlabel("qe")
    a.e(f"s_cmp_eq_u32 s98, 0\ns_cbranch_scc1 {Lq}")
    if TW:
        a.e(f"""
        s_min_u32 s4, s24, 2
        s_lshl_b32 s4, 8, s4
        s_load_dwordx2 s[44:45], s[0:1], s4     ; k, v, ssm_k
        s_sub_u32 s5, s98, 1
        s_lshl_b32 s5, s5, {4 if GMAP else 5}
        s_and_b32 s4, s99, {16 if GMAP else 0}
        s_add_u32 s5, s5, s4
        s_add_u32 s5, s5, s99
        s_and_b32 s4, s5, 7
        s_lshl_b32 s4, s4, 19
        s_andn2_b32 s7, s5, 7
        s_lshl_b32 s7, s7, 5
        s_add_u32 s4, s4, s7
        s_lshl_b32 s5, s5, 16
        s_cmp_lt_u32 s24, 2
        s_cselect_b32 s52, s4, s5
        s_cselect_b32 s4, 11, 8
        s_lshl_b32 s53, {TW//2}, s4
        s_cmp_lt_u32 s24, 3
        s_cselect_b32 s54, 0x400000, 0
        v_and_b32 v30, {TW-1}, v1
        v_lshrrev_b32 v31, 1, v30
        v_and_b32 v30, 1, v30
        v_lshlrev_b32 v31, s4, v31
        v_lshl_add_u32 v30, v30, 7, v31
        s_waitcnt lgkmcnt(0)
        """)
        srd(a, 48, 44, 0)
    a.e(f"s_cmp_eq_u32 s98, 2\ns_cbranch_scc1 {Lv}")
    def epi_cvt(A):
        L = []
        for u in range(2):
            for i in range(2):
                r = A + 8*u + 4*i
                L.append(f"v_cvt_pk_bf16_f32 v{OUT+4*u+2*i}, v{r}, v{r+1}")
                L.append(f"v_cvt_pk_bf16_f32 v{OUT+4*u+2*i+1}, v{r+2}, v{r+3}")
        return L
    def epi_st(u): return f"buffer_store_dwordx4 {q4(OUT+4*u)}, v{24+u}, s[8:11], s30 offen sc1"
    FLAG = ["v_mov_b32 v27, s28", "s_mov_b64 exec, 1", "buffer_store_dword v27, v26, s[8:11], s94 offen sc1", "s_mov_b64 exec, -1"]
    def body(P, vt):
        fa = [[] for _ in range(64)]; fb = [[] for _ in range(64)]; pre = [[] for _ in range(64)]
        for s in range(64):
            if s <= 47: fa[s].append(xread(s + 16, P))
            elif 52 <= s <= 55: fa[s].append(xread(2*(s-52), 1-P)); fa[s].append(xread(2*(s-52)+1, 1-P))
            elif s >= 56: fa[s].append(xread(s - 48, 1-P))
            if s % 4 == 0 and s <= 48: pre[s].append("s_waitcnt lgkmcnt(12)")
        NX = (1 if XW else 0) + (1 if TW else 0)
        pre[52].append(f"s_waitcnt vmcnt({1 + NX}) lgkmcnt(0)\ns_barrier")
        if TW:
            fb[22] += [f"s_sub_u32 s4, s28, {TE - 512//TW}", f"s_cmp_lt_u32 s4, {512//TW}"]
            fb[23] += ["s_cselect_b32 s50, s54, 0", "s_cselect_b32 s4, s53, 0"]
            fb[25] += ["buffer_load_dword v31, v30, s[48:51], s52 offen", "s_add_u32 s52, s52, s4"]
        if XW: fb[21].append("buffer_load_dword v29, v28, s[12:15], s29 offen")
        fb[50] += ["s_add_u32 s29, s29, 0x10000", "s_min_u32 s29, s29, 0x3f0000"]
        for k in range(16):
            s = 53 + 2*k
            L = xdma(k, P if k < 6 else 1 - P)
            if len(L) == 2: fb[(s-1) % 64].append(L[0])
            fb[s % 64].append(L[-1])
        C = epi_cvt(ACC[1-P])
        fb[2] += C[0:2]; fb[4] += C[2:4]; fb[6] += [epi_st(0)]; fa[6] += C[4:5]; fa[7] += C[5:6]; fb[8] += C[6:8]; fb[10] += [epi_st(1)]
        fb[12] += ["s_mov_b32 s30, s31"]; fb[14] += [f"s_add_u32 s31, s31, {32*8192}"]
        fb[44] += [f"s_waitcnt vmcnt({5 + NX})"] + FLAG
        fb[46] += ["s_add_u32 s28, s28, 1"]
        for s in range(64):
            ks, kt = s >> 1, s & 1
            for x in pre[s]: a.e(x)
            if diag and s == 52 and P == 0: st()
            for t in range(2):
                d = q4(ACC[P] + (8*t + 4*kt if vt else 8*kt + 4*t))
                w = a4((2*ks + t)*4); x = q4(XR + 4*(s & 31))
                a.e(f"v_mfma_f32_16x16x32_bf16 {d}, {x if vt else w}, {w if vt else x}, {'0' if ks == 0 else d}")
                for y in (fa if t == 0 else fb)[s]: a.e(y)
    for vt in (False, True):
        if vt: a.label(Lv)
        Ll = a.newlabel("ql")
        a.raw(".p2align 6")
        a.label(Ll)
        body(0, vt); body(1, vt)
        a.e(f"s_cmp_lt_u32 s28, 64\ns_cbranch_scc1 {Ll}")
        if not vt: a.e(f"s_branch {Lqe}")
    a.label(Lqe)
    a.nop(8)
    for x in epi_cvt(ACC[1]): a.e(x)
    a.e(epi_st(0)); a.e(epi_st(1))
    a.e("s_waitcnt vmcnt(0) lgkmcnt(0)")
    for x in FLAG: a.e(x)
    if AB:
        a.e("s_barrier\ns_sub_u32 s95, s98, 1")
        st()
        conv(lambda: a.e("s_waitcnt vmcnt(0)"))
    Lfin = a.newlabel("fin")
    a.e(f"s_branch {Lfin if G2 else Lph2}")

    a.label(Lq)
    QB = 0x20000; KB = 0x22000; VB = 0x24000; MB = 0x26000
    K = 128; V = 160; KM = 176; VM = 232; SI = 32; PM = 40; ONE = 44; S0 = 48; S1 = 52; SM = 56; P_ = 48; Z = 52
    EX = [60, 61, 62, 63] + list(range(242, 250))
    a.e(f"""
    s_and_b32 s34, s24, 1           ; qt
    s_lshr_b32 s35, s24, 1          ; dh
    s_lshl_b32 s4, s35, 10
    s_add_u32 s4, s4, 2048
    v_lshlrev_b32 v2, 4, v1
    s_lshl_b32 s5, s24, 10
    s_add_u32 s5, s5, {QB}
    v_add_u32 v24, s5, v2
    s_lshl_b32 s5, s34, 12
    s_add_u32 s5, s5, {QB}
    v_add_u32 v25, s5, v2
    v_add_u32 v31, {KB}, v2
    s_lshl_b32 s5, s35, 12
    v_add_u32 v5, s5, v31
    s_lshl_b32 s43, s24, 11
    """)
    ln.build(3, [(4, 2, 128), (2, 2, 32), (0, 1, 16)], MB)
    ln.build(6, [(2, 2, 128), (0, 2, 16), (4, 2, 4)], MB, ["s4"])
    a.e(f"s_lshl_b32 s4, s99, 9\ns_add_u32 s4, s4, {FL_REC}")
    ln.build(7, [(0, 2, 128)], 0, ["s4"])
    for r in range(VM, VM + 10): a.e(f"v_mov_b32 v{r}, 0")
    for r in range(4): a.e(f"v_mov_b32 v{PM+r}, 0\nv_mov_b32 v{ONE+r}, 0x3f803f80")
    a.e(f"""
    s_lshl_b32 s4, s34, 4
    v_and_b32 v{S0}, 15, v1
    v_add_u32 v{S0}, s4, v{S0}          ; query
    v_lshrrev_b32 v{S0+1}, 4, v1
    v_lshlrev_b32 v{S0+1}, 2, v{S0+1}
    v_mov_b32 v{S0+3}, 0xff800000
    """)
    for i in range(8):
        a.e(f"""
        v_add_u32 v{S0+2}, {16*(i>>2) + (i&3)}, v{S0+1}
        v_cmp_le_u32 vcc, v{S0+2}, v{S0}
        s_nop 1
        v_cndmask_b32 v{SI+i}, v{S0+3}, v{PM}, vcc
        """)
    a.e(f"""
    s_lshl_b32 s4, s99, 7
    s_lshl_b32 s5, s24, 2
    s_add_u32 s4, s4, s5
    s_add_u32 s94, s4, {FL_O}
    s_mov_b32 s46, {FL_K - FL_REC}
    s_mov_b32 s47, {FL_V - FL_REC}
    s_mov_b32 s30, -1
    s_mov_b32 s32, 0                ; k/v bound
    s_mov_b32 s33, {64 if norec else 0}
    s_mov_b32 s42, 0
    s_mov_b32 s53, {WS_JUNK}
    s_mov_b32 s45, 0x3e0293ee
    s_lshl_b32 s36, s99, 13         ; head*8192
    s_add_u32 s36, s36, s43
    s_add_u32 s36, s36, {WS_KX}
    s_add_u32 s43, s43, {KB}
    s_sub_u32 s37, s36, 0x40000
    v_and_b32 v255, 15, v1
    v_bfe_u32 v254, v1, 4, 1
    v_lshlrev_b32 v255, 7, v255
    v_lshl_add_u32 v255, v254, 24, v255
    s_lshl_b32 s39, s99, 12
    s_lshl_b32 s4, s34, {12 if G2 else 17}
    s_lshl_b32 s40, s99, {13 if G2 else 12}
    s_add_u32 s40, s40, s4
    s_lshl_b32 s4, s35, 11
    s_add_u32 s40, s40, s4
    s_add_u32 s40, s40, {WS_KX if G2 else WS_O}
    s_add_u32 s39, s39, {WS_KVM}
    s_lshl_b32 s52, s24, 10
    s_add_u32 s39, s39, s52
    s_add_u32 s52, s52, {MB}
    s_mov_b32 s31, 1
    s_sub_u32 s48, s39, 0x20000
    s_mov_b32 s49, s37
    s_mov_b32 vcc_lo, {1 if OSC else 's27'}
    s_mov_b32 vcc_hi, 0
    """)
    POLL = "buffer_load_dword v4, v7, s[8:11], 0 offen sc1"
    RDB = "s_nop 0" if norec else "v_readfirstlane_b32 s33, v4"
    MINR = [f"v_min_u32_dpp v4, v4, v4 quad_perm:{p} row_mask:0xf bank_mask:0xf\ns_nop 1" for p in ("[1,0,3,2]", "[2,3,0,1]")]
    def need(bound, blk):
        L = a.newlabel("nd"); D = a.newlabel("ndd")
        a.e(f"""
        s_cmp_gt_u32 s{bound}, {blk}
        s_cbranch_scc1 {D}
        s_mov_b32 s62, 0
        """)
        a.label(L)
        if bound == 33: a.e(POLL)
        else: a.e("buffer_load_dword v29, v7, s[8:11], s46 offen sc1\nbuffer_load_dword v30, v7, s[8:11], s47 offen sc1")
        r = 4 if bound == 33 else 29
        a.e(f"""
        s_add_u32 s62, s62, 1
        s_cmp_gt_u32 s62, {SPIN}
        s_cbranch_scc1 {Lend}
        s_waitcnt vmcnt(0)
        """)
        if bound == 32: a.e("v_min_u32 v29, v29, v30\ns_nop 1")
        minred(r, 2)
        a.e(f"""
        v_readfirstlane_b32 s{bound}, v{r}
        {"s_lshl_b32 s55, s32, 18" if bound == 32 else ""}
        {"s_add_u32 s55, s55, s37" if bound == 32 else ""}
        s_cmp_gt_u32 s{bound}, {blk}
        s_cbranch_scc1 {D}
        s_sleep {QS}
        s_branch {L}
        """)
        a.label(D)
    cold = []
    def side_path(cond, code):
        Lc = a.newlabel("cp"); Lb = a.newlabel("cb")
        def f():
            a.label(Lc)
            code(Lb)
            a.e(f"s_branch {Lb}")
        cold.append(f)
        return [f"s_cbranch_scc{cond} {Lc}", Lb + ":"]
    def local(ins):
        if not G2: return [ins + " sc1"]
        Lc = a.newlabel("cp"); Lb = a.newlabel("cb")
        def f():
            a.label(Lc)
            a.e(f"{ins} sc1\ns_branch {Lb}")
        cold.append(f)
        return [f"s_cbranch_vccnz {Lc}", ins, Lb + ":"]
    def ML(P): return [f"s_add_u32 m0, s52, {4096*P}", "s_nop 0", "buffer_load_dwordx4 v2, s[8:11], s48 offen lds"]
    def QKV(P):
        Q = ACC[1 - P]; L = []
        for ks in range(4):
            L.append(f"ds_read_b128 {q4(Q+4*ks)}, v25 offset:{1024*ks}")
            for kt in range(2): L.append(f"ds_read_b128 {q4(K+16*kt+4*ks)}, v31 offset:{4096*kt + 1024*ks}")
        for ks in range(4): L.append(f"ds_read_b128 {q4(V+4*ks)}, v5 offset:{VB - KB + 1024*ks}")
        return L
    def oflag(): return ["v_max_i32 v27, s30, v26"] + local(FLAG[2][:-4])
    def late(P):
        def f(Lb):
            need(33, "s30")
            emit(ML(P) + ["s_waitcnt vmcnt(0)"])
        return ["s_cmp_eq_u32 s31, 0"] + side_path(1, f)
    def emit(L):
        for y in L:
            if y.endswith(":"): a.label(y[:-1])
            else: a.e(y)
    def qread(f, buf):
        ks, kt = f >> 1, f & 1
        return f"ds_read_b128 {q4(XR + 4*(f&15))}, v{8 + 4*buf + (ks&3)} offset:{(ks>>2)*256 + kt*32768}"
    def qwr(u, P): return f"ds_write_b128 v24, {q4(OUT+4*u)} offset:{u*4096}"
    t0, t1, t2 = EX[10], EX[11], 30
    def mf(d, x, y, c): return f"v_mfma_f32_16x16x32_bf16 {q4(d)}, {q4(x)}, {q4(y)}, {'0' if c is None else q4(c)}"
    class AT:
        def __init__(s, P):
            Q = ACC[1 - P]; O = Q; AO = OUT
            s.km = [f"ds_read_b128 {q4(KM+4*i)}, v3 offset:{4096*P + 512*i}" for i in range(4)]
            s.vm = [f"ds_read_b32 v{VM+2*i}, v6 offset:{4096*P + 512*(i>>1) + 64*(i&1)}" for i in range(4)]
            s.s0 = [mf(S0, K+4*ks, Q+4*ks, S0 if ks else SI) for ks in range(4)]
            s.s1 = [mf(S1, K+16+4*ks, Q+4*ks, S1 if ks else SI+4) for ks in range(4)]
            s.sm = [mf(SM, KM+4*ks, Q+4*ks, SM if ks else None) for ks in range(4)]
            s.m0 = [f"v_max3_f32 v{t0}, v{S0}, v{S0+1}, v{S0+2}", f"v_max3_f32 v{t0}, v{t0}, v{S0+3}, v{S1}", f"v_max3_f32 v{t1}, v{S1+1}, v{S1+2}, v{S1+3}"]
            s.m1 = [f"v_max3_f32 v{t0}, v{t0}, v{SM}, v{SM+1}", f"v_max_f32 v{t2}, v{t0}, v{t1}", f"v_max_f32 v{t1}, v{t0}, v{t1}"]
            s.m2 = [f"v_permlane16_swap_b32 v{t1}, v{t2}", f"v_max_f32 v{t0}, v{t1}, v{t2}", f"v_max_f32 v{t1}, v{t1}, v{t2}"]
            s.m3 = [f"v_permlane32_swap_b32 v{t0}, v{t1}", f"v_max_f32 v{t0}, v{t0}, v{t1}", f"v_mul_f32 v{t0}, s45, v{t0}"]
            src = list(range(S0, S0 + 8)) + [SM, SM + 1]
            s.fma = [f"v_fma_f32 v{EX[i]}, v{src[i]}, s45, -v{t0}" for i in range(10)]
            s.exp = [f"v_exp_f32 v{EX[i]}, v{EX[i]}" for i in range(10)]
            s.cvt = [f"v_cvt_pk_bf16_f32 v{P_+i}, v{EX[2*i]}, v{EX[2*i+1]}" for i in range(4)] + [f"v_cvt_pk_bf16_f32 v{PM}, v{EX[8]}, v{EX[9]}"]
            s.pv = [mf(Z, ONE, P_, None), mf(Z, ONE, PM, Z)]
            for i in range(4): s.pv += [mf(O+4*i, V+4*i, P_, None), mf(O+4*i, VM+2*i, PM, O+4*i)]
            s.rcp = f"v_rcp_f32 v{t0}, v{Z}"
            s.fin = [[f"v_mul_f32 v{O+4*i+r}, v{t0}, v{O+4*i+r}" for r in range(4)] +
                     [f"v_cvt_pk_bf16_f32 v{AO+2*i}, v{O+4*i}, v{O+4*i+1}", f"v_cvt_pk_bf16_f32 v{AO+2*i+1}, v{O+4*i+2}, v{O+4*i+3}"] for i in range(4)]
            s.st = [local(f"buffer_store_dwordx4 {q4(AO+4*u)}, v2, s[8:11], s53 offen offset:{1024*u}") for u in range(2)]
    def qbody(P, vq0, last=False):
        A = AT(P)
        base = []
        for s in range(64):
            ks, kt = s >> 1, s & 1
            for t in range(2):
                d = q4(ACC[P] + 8*kt + 4*t)
                base.append((f"v_mfma_f32_16x16x32_bf16 {d}, {a4((2*ks + t)*4)}, {q4(XR + 4*(s & 15))}, {'0' if ks == 0 else d}",
                             s + 3 if t == 0 and s % 4 == 0 else None))
        X = [It(qread(f, P), f, lds=True, rel=max(0, 2*(f-16)+1), dl=min(8*(f//4) - 10, 96 + (f&3))) for f in range(12, 64)]
        X += [It("s_barrier", "B3", nl=63, nv="x15", after=[(63, 5)], dl=0)]
        X += [It(qread(f, 1-P), f, lds=True, rel=2*(48+f)+1, dl=118 + 8*(f//4)//2) for f in range(12)]
        def dma(ks, buf, first, t0_, step):
            L = []; prev = first
            for n, k in enumerate(ks):
                x = xdma(k, buf)
                if len(x) == 2:
                    L.append(It(x[0], f"m{k}", after=prev, dl=t0_ + step*n - 1)); prev = prev + [(f"m{k}", 1)]
                L.append(It(x[-1], f"x{k}", cost=QD, vm=True, after=prev, dl=t0_ + step*n)); prev = [(f"x{k}", step)]
            return L
        D = dma(range(6, 16), 1 - P, [], 3, 4)
        D += [It("buffer_load_dword v29, v28, s[12:15], s29 offen", "wx", vm=True, after=[("x15", 2)], dl=70),
              It("s_add_u32 s29, s29, 0x10000", dl=90)]
        D += dma(range(6), P, [("B3", 0), ("chk", 0)], 106, 4)
        C = epi_cvt(ACC[1-P])
        E = [It(x, rel=4, dl=10) for x in C[0:4]] + [It(qwr(0, P), "w0", lds=True, dl=10)] + [It(x, dl=14) for x in C[4:8]] + [It(qwr(1, P), "w", lds=True, dl=14)]
        E += [It("s_barrier", "B0", nl="w", nv="kv3", after=[("w", 5)], dl=20)]
        E += [It(x, f"r{i}", lds=True, dl=24 + i) for i, x in enumerate(QKV(P))]
        OF = oflag()
        E += [It(OF[0], dl=40), It(OF[1:], "of", vm=True, nv="st1", dl=42)]
        N32 = It(["s_cmp_gt_u32 s32, s42"] + side_path(0, lambda Lb: need(32, "s42")), "n32", dl=62)
        KV = [It("s_mov_b32 m0, s43", dl=72), It("s_add_u32 s49, s49, 0x40000", dl=72),
              It("buffer_load_dwordx4 v2, s[8:11], s49 offen lds", "kv0", cost=QD, vm=True, dl=74),
              It(f"s_add_u32 s50, s49, {WS_VX - WS_KX}", dl=76),
              It("buffer_load_dwordx4 v2, s[8:11], s49 offen offset:1024 lds", "kv1", cost=QD, vm=True, after=[("kv0", 4)], dl=78),
              It(f"s_add_u32 m0, s43, {VB - KB}", dl=80), It("s_add_u32 s5, s49, 0x40000", dl=80),
              It("buffer_load_dwordx4 v2, s[8:11], s50 offen lds", "kv2", cost=QD, vm=True, after=[("kv1", 4)], dl=82),
              It("s_min_u32 s5, s5, s55", dl=84),
              It("buffer_load_dwordx4 v2, s[8:11], s50 offen offset:1024 lds", "kv3", cost=QD, vm=True, after=[("kv2", 4)], dl=86)]
        M = []
        for ks in range(4):
            M += [It(A.s0[ks], mfma=True, nl=f"r{3*ks+2}", after=[(f"r{3*ks+2}", 6)]), It(A.s1[ks], "s1", mfma=True)]
        if last:
            E += [It("s_barrier", "B2", nl="r15", after=[("r15", 4)], dl=44), N32] + KV
            return schedule(base, [X[:52], E, M], list(range(12)), vq0)
        E += [It(late(P), after=[("r15", 4), ("x15", 0)], dl=44), It("s_barrier", "B2", nl="r15", dl=44)]
        E += [It(x, f"km{i}", lds=True, dl=48) for i, x in enumerate(A.km)]
        Lp = a.newlabel("pp"); Lpb = a.newlabel("pb")
        def pf():
            a.label(Lp); a.e(f"{POLL}\ns_mov_b32 s31, 0\ns_branch {Lpb}")
        cold.append(pf)
        E += [It(ML(1-P)[0], "ma", dl=60), It("s_add_u32 s48, s48, 0x20000", dl=60), It("s_mov_b32 s31, 1", dl=60),
              It(["s_cmp_gt_u32 s33, s42", f"s_cbranch_scc0 {Lp}", ML(1-P)[2], Lpb + ":"], "ml", vm=True, dl=60),
              N32]
        E += [It(x, f"vm{i}", lds=True, dl=70) for i, x in enumerate(A.vm)]
        E += KV + [
              It("buffer_load_dword v29, v255, s[8:11], s5 offen", "wk", vm=True, after=[("kv3", 2)], dl=90)]
        def chk(Lb):
            emit(["s_waitcnt vmcnt(1)"] + MINR + [RDB, "s_cmp_gt_u32 s33, s42", f"s_cbranch_scc0 {Lb}", "s_mov_b32 s31, 1"] + ML(1 - P))
        E += [It(["s_cmp_eq_u32 s31, 0"] + side_path(1, chk), "chk", rel=98, dl=100)]
        M += [It(x, after=[("s1", 4)], dl=56) for x in A.m0]
        M += [It(x, "sm", mfma=True, nl="km3", after=[("km3", 6)]) for x in A.sm]
        M += [It(A.m1[0], after=[("sm", 4), ("n32", 0)], dl=1), It(A.m1[1], dl=1), It(A.m1[2], "p1", dl=1)]
        M += [It(A.m2[0], after=[("p1", 2)], dl=1), It(A.m2[1], dl=1), It(A.m2[2], "p2", dl=1)]
        M += [It(A.m3[0], after=[("p2", 2)], dl=1), It(A.m3[1], dl=1), It(A.m3[2], dl=1)]
        M += [It(x, dl=QM) for x in A.fma] + [It(x, cost=2, dl=QM + 8) for x in A.exp] + [It(x, "cv", dl=QM + 10) for x in A.cvt]
        M += [It(x, f"pv{i}", mfma=True, nl="vm3" if i == 3 else None, after=[("cv", 1)]) for i, x in enumerate(A.pv)]
        M += [It(A.rcp, "rcp", cost=2, after=[("pv1", 4)], dl=110)]
        for i in range(4):
            M += [It(x, after=[(f"pv{3+2*i}", 4), ("rcp", 1)], dl=112 + 3*i) for x in A.fin[i]]
            if i & 1: M += [It(A.st[i >> 1], f"st{i >> 1}", vm=True, after=[("chk", 0)], dl=112 + 3*i)]
        M += [It("s_mov_b32 s53, s40", dl=126), It("s_add_u32 s40, s40, 0x40000", dl=126), It("s_mov_b32 s30, s42", dl=126), It("s_add_u32 s42, s42, 1", dl=126)]
        for c in (M,):
            for it in c:
                if it.dl == 1: it.dl = QM - 8
        return schedule(base, [X, D, E, M], list(range(12)), vq0)
    n0 = len(cold); u0 = a.uid
    _, _, vq, _ = qbody(0, ["kv3", "st1"])
    del cold[n0:]
    vq = vq[vq.index("kv3"):]
    def qemit(P):
        L, lq, vq2, info = qbody(P, vq)
        assert vq2[vq2.index("kv3"):] == vq and lq[-12:] == list(range(12))
        if P == 0: print("q body:", {k: v for k, v in info.items() if k != 'done'}, {k: v for k, v in info['done'].items() if isinstance(k, str)})
        emit(L)
        st()
    need(32, 0)
    a.e("s_waitcnt lgkmcnt(0)")
    if diag:
        for i in range(5): a.e(f"s_mov_b32 s{66+i}, 0")
    Lql = a.newlabel("ql")
    a.raw(".p2align 6")
    a.label(Lql)
    Lql2 = a.newlabel("ql")
    qemit(0)
    a.e(f"s_cmp_eq_u32 s42, 63\ns_cbranch_scc1 {Lql2}")
    qemit(1)
    a.e(f"s_branch {Lql}")
    a.label(Lql2)
    n0 = len(cold)
    emit(qbody(1, vq, True)[0])
    del cold[n0:n0+2]
    st()
    def tail(P):
        A = AT(P)
        emit(late(P))
        st()
        emit(["s_barrier"] + A.km + A.vm + A.m0 + ["s_waitcnt lgkmcnt(4)"] + A.sm + ["s_nop 7"] + A.m1 + ["s_nop 1"] + A.m2 + ["s_nop 1"] + A.m3)
        emit(A.fma + A.exp + A.cvt + ["s_waitcnt lgkmcnt(0)"] + A.pv + [A.rcp, "s_nop 0"] + A.fin[0] + A.fin[1] + A.st[0] + A.fin[2] + A.fin[3] + A.st[1])
        emit(["s_add_u32 s30, s30, 1", "s_mov_b32 s53, s40", "s_waitcnt vmcnt(0)"] + oflag())
    tail(1)
    st()
    emit(["s_add_u32 s48, s48, 0x20000", "s_mov_b32 s31, 0"])
    emit(epi_cvt(ACC[1]) + [qwr(0, 0), qwr(1, 0)] + ["s_waitcnt lgkmcnt(0)", "s_barrier"] + QKV(0))
    n0 = len(cold); A = AT(0); del cold[n0:]
    a.e("s_waitcnt lgkmcnt(4)")
    for ks in range(4): emit([A.s0[ks], A.s1[ks]])
    tail(0)
    if diag:
        for i in range(5): a.e(f"s_lshr_b32 s4, s{66+i}, 6\nv_writelane_b32 v253, s4, {56+i}")
    finish()
    for f in cold: f()

    if G2:
        a.label(Lph2)
        st()
        a.e(f"""
        s_load_dwordx2 s[42:43], s[0:1], {KA['wo']}
        s_lshr_b32 s34, s99, 3
        s_and_b32 s35, s99, 7
        s_lshl_b32 s4, s34, 21
        s_lshl_b32 s5, s35, 8
        s_add_u32 s4, s4, s5
        """)
        wsetup2("s4", 2048)
        a.e("s_waitcnt lgkmcnt(0)")
        srd(a, 16, 42, 4096 * 1024 * 2)
        wdma2(0, 2048); wdma2(1, 2048)
        GA = 192
        a.e(f"""
        v_lshlrev_b32 v2, 4, v1
        v_mov_b32 v8, v2
        s_lshl_b32 s36, s24, 12
        s_lshl_b32 s4, s34, 16
        s_add_u32 s4, s4, s36
        v_add_u32 v9, s4, v2            ; source
        s_lshl_b32 s4, s34, 10
        s_add_u32 s4, s4, {FL_O}
        """)
        ln.build(7, [(0, 3, 128)], 0, ["s4"])
        a.e(f"""
        s_lshl_b32 s4, s35, 2
        s_add_u32 s4, s4, s24
        s_lshl_b32 s5, s4, 9
        s_lshl_b32 s94, s34, 7
        s_add_u32 s94, s94, s5
        s_add_u32 s94, s94, {FL_TK}
        s_lshl_b32 s38, s4, 1
        s_and_b32 s5, s34, 1
        s_or_b32 s38, s38, s5
        s_lshl_b32 s4, s35, 22
        s_lshl_b32 s37, s34, 20
        s_add_u32 s37, s37, s4
        s_lshl_b32 s4, s24, 18
        s_add_u32 s37, s37, s4
        s_add_u32 s37, s37, {WS_P}
        s_mov_b32 s29, {WS_KX}
        s_mov_b32 s28, 0                ; block
        s_mov_b32 s33, 0                ; bound
        s_mov_b32 s39, 0
        v_mov_b32 v26, 0
        s_waitcnt vmcnt(16)
        """)
        wtr2(0); wdma2(2, 2048)
        a.e("s_waitcnt vmcnt(16)")
        wtr2(1); wdma2(3, 2048)
        a.e("s_waitcnt vmcnt(16)")
        wtr2(2)
        a.e("s_waitcnt vmcnt(0)")
        wtr2(3)
        st()
        GC = 208
        OPOLL = "buffer_load_dwordx4 v[12:15], v7, s[8:11], 0 offen sc1"
        M4 = ["v_min3_u32 v4, v12, v13, v14", "v_min_u32 v4, v4, v15"]
        def odma(k):
            L = []
            if k % 4 == 0: L += [f"s_add_u32 m0, s36, {(k>>2)*16384}", f"s_add_u32 s31, s29, {(k>>2)*16384}"]
            return L + [f"buffer_load_dwordx4 v9, s[8:11], s31 offen offset:{1024*(k&3)} sc1 lds"]
        def oread(f): return f"ds_read_b128 {q4(64 + 4*(f&31))}, v8 offset:{(f>>3)*8192 + (f&1)*4096 + ((f>>1)&3)*1024}"
        MR = [f"v_min_u32_dpp v4, v4, v4 {p} row_mask:0xf bank_mask:0xf" for p in ("quad_perm:[1,0,3,2]", "quad_perm:[2,3,0,1]", "row_half_mirror")]
        def PST(R): return [f"buffer_store_dwordx4 {q4(R+4*i)}, v2, s[8:11], s30 offen offset:{1024*i} sc1" for i in range(4)]
        Lcold = a.newlabel("cold"); Lgo = a.newlabel("go"); Lbody = a.newlabel("body"); Lhot = a.newlabel("hot"); Lgp = a.newlabel("gp"); Lgx = a.newlabel("gx")
        Lpd = a.newlabel("pd"); Lpb = a.newlabel("pdb"); Lcp = a.newlabel("cpy")
        BR = f"s_cbranch_scc1 {Lhot}"
        def gbody(hot):
            base = []
            for s_ in range(64):
                ks, kt = s_ >> 1, s_ & 1
                for t in range(2):
                    d = q4(GA + 8*kt + 4*t)
                    base.append((f"v_mfma_f32_16x16x32_bf16 {d}, {a4((2*ks + t)*4)}, {q4(64 + 4*(s_ & 31))}, {'0' if ks == 0 else d}",
                                 (s_ + 1 if s_ < 8 else s_ + 3) if t == 0 and s_ % (2 if s_ < 8 else 4) == 0 else None))
            X = []
            for f in range(8, 64):
                if f == 16: X.append(It("s_barrier", "B1", nv="d7", rel=GB1, dl=0))
                if f == 32: X.append(It("s_barrier", "B2", nv="p", rel=GB2, dl=0))
                X.append(It(oread(f), f, lds=True, rel=max(0, 2*(f-32)+1), dl=8*(f//4) - 12))
            X.append(It("v_xor_b32 v8, 0x10000, v8", dl=126))
            def dma(ks, t0_, step, prev):
                D = []
                for n, k in enumerate(ks):
                    x = odma(k)
                    if len(x) == 3: D.append(It(x[:2], f"m{k}", after=prev, dl=t0_ + step*n - 1)); prev = prev + [(f"m{k}", 1)]
                    D.append(It(x[-1], f"x{k}", cost=2, vm=True, after=prev, dl=t0_ + step*n)); prev = [(f"x{k}", step - 1)]
                return D
            def red(n, nv, t0_):
                return [It(M4, n, nv=nv, rel=t0_ - 2, dl=t0_ - 2), It(MR[0], n + "0", after=[(n, 2)], dl=t0_), It(MR[1], n + "1", after=[(n + "0", 2)], dl=t0_ + 2), It(MR[2], n + "2", after=[(n + "1", 2)], dl=t0_ + 4),
                        It("v_readfirstlane_b32 s33, v4", after=[(n + "2", 2)], dl=t0_ + 6)]
            D = dma(range(8, 16), 2, 4, [])
            D += [It(OPOLL, "p", vm=True, after=[("x15", 2)], dl=34), It("s_xor_b32 s36, s36, 0x10000", dl=40), It("s_add_u32 s29, s29, 0x40000", dl=40)]
            D += [It(["s_cmp_lg_u32 s39, 0", f"s_cbranch_scc1 {Lpd}", Lpb + ":"], after=[("B2", 4)], dl=GB2 + 8)]
            D += [It("s_xor_b32 s30, s28, s38", dl=64), It("s_lshl_b32 s30, s30, 12", dl=64), It("s_add_u32 s30, s30, s37", dl=64), It("s_add_u32 s28, s28, 1", dl=64)]
            D += red("r", "p", GB2 + 8)
            D += [It(["s_cmp_gt_u32 s33, s28", BR], "br", dl=GB2 + 16)]
            if hot: D += dma(range(8), 74, 6, [("br", 1)])
            else: D += [It(OPOLL, "p2", vm=True, rel=GP2, dl=GP2)] + red("q", "p2", 120)
            L, _, _, info = schedule(base, [X, D], list(range(8)), [f"d{i}" for i in range(8)])
            print("g body:", {k: v for k, v in info.items() if k != 'done'}, {k: v for k, v in info['done'].items() if isinstance(k, str)})
            i = L.index(BR) + 1
            return L[:i], L[i:]
        h0, c1 = gbody(False); h1, h2 = gbody(True)
        assert h0 == h1
        a.label(Lcold)
        a.e("s_mov_b32 s62, 0")
        a.label(Lgp)
        a.e(f"""
        {OPOLL}
        s_add_u32 s62, s62, 1
        s_cmp_gt_u32 s62, {SPIN}
        s_cbranch_scc1 {Lend}
        s_waitcnt vmcnt(0)
        """)
        emit(M4 + ["s_nop 1"])
        minred(4, 3)
        a.e(f"""
        v_readfirstlane_b32 s33, v4
        s_cmp_gt_u32 s33, s28
        s_cbranch_scc1 {Lgo}
        s_sleep {GS}
        s_branch {Lgp}
        """)
        a.label(Lgo)
        if GST: st()
        for k in range(8): emit(odma(k))
        a.label(Lbody)
        if GST and diag: a.e("s_cmp_eq_u32 s28, 58\ns_cselect_b32 s96, 90, s96\ns_cmp_lt_u32 s28, 58\ns_cselect_b32 s96, 12, s96")
        a.e("s_waitcnt vmcnt(4)\ns_barrier")
        for f in range(8): a.e(oread(f))
        st()
        emit(h0 + c1)
        if GST: st()
        a.e(f"""
        s_cmp_gt_u32 s33, s28
        s_cbranch_scc1 {Lgx}
        s_nop 5
        """)
        emit(PST(GA) + ["s_mov_b32 s39, 0", "s_waitcnt vmcnt(0)"] + FLAG)
        if GST: st()
        a.e(f"""
        s_cmp_lt_u32 s28, 64
        s_cbranch_scc1 {Lcold}
        """)
        finish()
        a.label(Lgx)
        for k in range(8): emit(odma(k))
        a.e(f"s_branch {Lcp}")
        a.label(Lhot)
        emit(h2)
        if GST: st()
        a.label(Lcp)
        a.e("s_mov_b32 s39, 1\ns_nop 2")
        for i in range(8): a.e(f"v_pk_mov_b32 v[{GC+2*i}:{GC+2*i+1}], v[{GA+2*i}:{GA+2*i+1}], v[{GA+2*i}:{GA+2*i+1}] op_sel:[0,1]")
        a.e(f"s_branch {Lbody}")
        a.label(Lpd)
        emit(["s_sub_u32 s4, s28, 1", "v_mov_b32 v27, s4"] + FLAG[1:] + PST(GC) + [f"s_branch {Lpb}"])

        a.label(Lfin)
        st()
        if 'x' in GE: finish()
        a.e(f"""
        s_load_dwordx2 s[44:45], s[0:1], {KA['out']}
        s_sub_u32 s34, s98, 1
        s_lshl_b32 s4, s34, 11
        s_lshr_b32 s5, s99, 2
        s_lshl_b32 s5, s5, 22
        s_add_u32 s4, s4, s5
        s_and_b32 s5, s99, 3
        s_lshl_b32 s5, s5, 18
        s_add_u32 s4, s4, s5
        s_lshl_b32 s38, s99, 1
        v_lshlrev_b32 v2, 4, v1
        v_add_u32 v2, s4, v2            ; partials
        s_lshl_b32 s4, s34, 15
        s_lshl_b32 s5, s99, 6
        s_add_u32 s4, s4, s5
        """)
        ln.build(13, [(0, 4, 2048), (4, 2, 16)], 0, ["s4"])
        a.e("s_lshl_b32 s4, s99, 17\ns_lshl_b32 s5, s34, 10\ns_add_u32 s4, s4, s5")
        ln.build(14, [(4, 2, 32768), (3, 1, 512), (0, 3, 2)], 0, ["s4"])
        for e_ in range(1, 8): a.e(f"v_add_u32 v{14+e_}, {4096*e_}, v14")
        a.e("s_lshl_b32 s4, s34, 6")
        ln.build(22, [(0, 4, 4)], 0, ["s4"])
        a.e(f"s_lshl_b32 s4, s99, 9\ns_add_u32 s4, s4, {FL_TK}")
        ln.build(7, [(0, 2, 128)], 0, ["s4"])
        a.e("s_mov_b32 s28, s24\ns_mov_b32 s33, 0\ns_waitcnt lgkmcnt(0)")
        srd(a, 84, 44, 2048 * 1024 * 2)
        wait_dbg(C_CONV, 64)
        Lf = a.newlabel("fl"); Lfp = a.newlabel("fp"); Lfd = a.newlabel("fd")
        XE = 32; ZE = 36; GE_ = 44; T = 48; PR = 64
        a.label(Lf)
        a.e(f"""
        s_lshl_b32 s57, s28, 16
        s_and_b32 s4, s28, 31
        s_lshl_b32 s4, s4, 4
        s_lshr_b32 s5, s28, 5
        s_lshl_b32 s5, s5, 11
        s_add_u32 s58, s4, s5
        s_add_u32 s58, s58, {WS_YT}
        s_lshl_b32 s59, s28, 7
        s_add_u32 s59, s59, {WS_G}
        buffer_load_dwordx4 {q4(XE)}, v13, s[12:15], s57 offen
        buffer_load_dword v{GE_}, v22, s[8:11], s59 offen
        """)
        for e_ in range(0 if 'y' in GE else 8): a.e(f"buffer_load_ushort v{ZE+e_}, v{14+e_}, s[8:11], s58 offen")
        a.e(f"""
        s_xor_b32 s48, s28, s38
        s_lshl_b32 s48, s48, 12
        s_add_u32 s48, s48, {WS_P}
        s_xor_b32 s49, s48, 0x101000
        s_add_u32 s50, s48, 0x200000
        s_add_u32 s51, s49, 0x200000
        s_cmp_gt_u32 s33, s28
        s_cbranch_scc1 {Lfd}
        s_mov_b32 s62, 0
        """)
        a.label(Lfp)
        a.e(f"""
        {POLL}
        s_add_u32 s62, s62, 1
        s_cmp_gt_u32 s62, {SPIN}
        s_cbranch_scc1 {Lend}
        s_waitcnt vmcnt(0)
        """)
        minred(4, 2)
        a.e(f"""
        v_readfirstlane_b32 s33, v4
        s_cmp_gt_u32 s33, s28
        s_cbranch_scc1 {Lfd}
        s_sleep {FS}
        s_add_u32 s4, s33, {FD}
        s_cmp_ge_u32 s4, s28
        s_cbranch_scc1 {Lfp}
        s_sleep {FS2}
        s_branch {Lfp}
        """)
        a.label(Lfd)
        for i in range(0 if 'w' in GE else 8): a.e(f"buffer_load_dwordx4 {q4(PR+4*i)}, v2, s[8:11], s{48+(i>>1)} offen offset:{1024*(i&1)}")
        a.e("s_waitcnt vmcnt(8)")
        for e_ in range(8):
            a.e(f"v_and_b32 v{T+e_}, 0xffff0000, v{XE+(e_>>1)}" if e_ & 1 else f"v_lshlrev_b32 v{T+e_}, 16, v{XE+(e_>>1)}")
            a.e(f"v_lshlrev_b32 v{ZE+e_}, 16, v{ZE+e_}")
        for e_ in range(8): a.e(f"v_mul_f32 v{T+e_}, v{T+e_}, v{ZE+e_}")
        for e_ in range(8): a.e(f"v_mul_f32 v{T+e_}, v{T+e_}, v{GE_}")
        a.e(f"v_sub_f32 v{GE_}, 1.0, v{GE_}\ns_waitcnt vmcnt(4)")
        for e_ in range(8): a.e(f"v_add_f32 v{PR+e_}, v{PR+e_}, v{PR+8+e_}")
        a.e("s_waitcnt vmcnt(0)")
        for e_ in range(8): a.e(f"v_add_f32 v{PR+16+e_}, v{PR+16+e_}, v{PR+24+e_}")
        for e_ in range(8): a.e(f"v_add_f32 v{PR+e_}, v{PR+e_}, v{PR+16+e_}")
        for e_ in range(8): a.e(f"v_fma_f32 v{PR+e_}, v{PR+e_}, v{GE_}, v{T+e_}")
        for e_ in range(4): a.e(f"v_cvt_pk_bf16_f32 v{T+8+e_}, v{PR+2*e_}, v{PR+2*e_+1}")
        if 'v' not in GE: a.e(f"buffer_store_dwordx4 {q4(T+8)}, v13, s[84:87], s57 offen {OUTF.replace('_', ' ')}")
        st()
        a.e(f"""
        s_add_u32 s28, s28, 4
        s_cmp_lt_u32 s28, 64
        s_cbranch_scc1 {Lf}
        """)
        if diag: a.e("s_waitcnt vmcnt(0)\ns_barrier")
        finish()
        return

    a.label(Lph2)
    st()
    if stop == 1: finish(); return
    a.e(f"""
    s_load_dwordx2 s[42:43], s[0:1], {KA['wo']}
    s_load_dwordx2 s[44:45], s[0:1], {KA['out']}
    s_load_dwordx2 s[40:41], s[0:1], {KA['q']}
    s_lshl_b32 s4, s99, 6
    s_lshl_b32 s5, s24, 21
    s_add_u32 s4, s4, s5
    """)
    wsetup(2048, "s4")
    a.e("s_waitcnt lgkmcnt(0)\ns_barrier")
    srd(a, 16, 42, 4096 * 1024 * 2)
    srd(a, 84, 44, 2048 * 1024 * 2)
    srd(a, 12, 40, 2048 * 1024 * 2)
    wdma(0, 2048); wdma(1, 2048)
    GA = 192; EP = 208; T = 216; R = 224
    a.e(f"""
    s_and_b32 s34, s24, 1
    s_lshr_b32 s35, s24, 1
    v_lshlrev_b32 v2, 4, v1
    s_lshl_b32 s4, s24, 10
    s_add_u32 s4, s4, {FL_O}
    """)
    ln.build(8, [(0, 3, 128)], 0, ["s4"])
    a.e("s_lshl_b32 s4, s24, 15\nv_add_u32 v9, s4, v2\nv_add_u32 v10, 0x20000, v9")
    a.e("s_lshl_b32 s4, s24, 12\nv_add_u32 v11, s4, v2")
    a.e("s_lshl_b32 s4, s35, 11\ns_lshl_b32 s5, s34, 7\ns_add_u32 s4, s4, s5")
    ln.build(12, [(0, 1, 1024), (1, 2, 256), (3, 3, 16)], 0, ["s4"])
    a.e("s_lshl_b32 s4, s24, 14\ns_lshl_b32 s5, s99, 6\ns_add_u32 s4, s4, s5")
    ln.build(13, [(3, 3, 2048), (0, 3, 8)], 0, ["s4"])
    a.e("s_lshl_b32 s4, s99, 17\ns_lshl_b32 s5, s24, 9\ns_add_u32 s4, s4, s5")
    ln.build(14, [(0, 3, 16384), (3, 3, 2)], 0, ["s4"])
    for e_ in range(1, 4): a.e(f"v_add_u32 v{14+e_}, {4096*e_}, v14")
    a.e("s_lshl_b32 s4, s24, 5")
    ln.build(18, [(3, 3, 4)], 0, ["s4"])
    a.e(f"s_and_b32 s4, s99, 7\ns_lshl_b32 s4, s4, 12\ns_lshl_b32 s5, s24, 15\ns_add_u32 s4, s4, s5\ns_add_u32 s4, s4, {WS_O}")
    ln.build(19, [(0, 5, 128), (5, 1, 0x20000)], 0, ["s4"])
    a.e(f"""
    s_lshl_b32 s4, s24, 8
    s_add_u32 s4, s4, 0x8000
    v_lshlrev_b32 v21, 2, v1
    v_add_u32 v21, s4, v21
    v_mov_b32 v22, 0x8000
    v_mov_b32 v23, 0
    s_lshl_b32 s4, s99, 7
    s_add_u32 s94, s4, {FL_TK}
    s_mov_b32 s33, 0
    s_waitcnt vmcnt(16)
    """)
    def draw(n):
        L = a.newlabel("dr"); D = a.newlabel("drd")
        a.e(f"""
        s_mov_b64 exec, 1
        s_cmp_lg_u32 s24, 0
        s_cbranch_scc1 {L}
        v_mov_b32 v20, {n}
        buffer_atomic_add v20, v23, s[8:11], s94 offen sc0 sc1
        s_branch {D}
        """)
        a.label(L)
        a.e("buffer_load_dword v20, v23, s[16:19], 0 offen")
        a.label(D)
        a.e("s_mov_b64 exec, -1")
    wtr(0); wdma(2, 2048)
    a.e("s_waitcnt vmcnt(16)")
    wtr(1); wdma(3, 2048)
    a.e("s_waitcnt vmcnt(16)")
    wtr(2)
    a.e("s_waitcnt vmcnt(0)")
    wtr(3)
    wait_dbg(C_CONV, 64)
    draw(2)
    Lgx = a.newlabel("gx")
    a.e(f"""
    s_barrier
    s_waitcnt vmcnt(0)
    ds_write_b32 v21, v20 offset:0x4000
    s_waitcnt lgkmcnt(0)
    s_barrier
    ds_read_b32 v20, v22 offset:0x4000
    s_waitcnt lgkmcnt(0)
    v_readfirstlane_b32 s31, v20
    s_add_u32 s30, s31, 1
    s_cmp_ge_u32 s31, 64
    s_cbranch_scc1 {Lgx}
    """)
    def bound():
        minred(4, 3)
        a.e("v_readfirstlane_b32 s33, v4")
    def side(blk):
        a.e(f"""
        s_lshl_b32 s57, {blk}, 16
        s_and_b32 s4, {blk}, 31
        s_lshl_b32 s4, s4, 4
        s_lshr_b32 s5, {blk}, 5
        s_lshl_b32 s5, s5, 11
        s_add_u32 s58, s4, s5
        s_add_u32 s58, s58, {WS_YT}
        s_lshl_b32 s59, {blk}, 7
        s_add_u32 s59, s59, {WS_G}
        s_lshl_b32 s48, {blk}, 18
        s_add_u32 s4, {blk}, 4
        s_min_u32 s4, s4, s33
        s_sub_u32 s4, s4, 1
        s_lshl_b32 s4, s4, 18
        {"s_mov_b32 s48, 0" if 'h' in GE else ""}
        {"s_mov_b32 s4, 0" if 'h' in GE else ""}
        buffer_load_dword v6, v19, s[8:11], s48 offen
        buffer_load_dword v7, v19, s[8:11], s4 offen
        buffer_load_dword v4, v8, s[8:11], 0 offen sc1
        buffer_load_dwordx2 v[{EP}:{EP+1}], v13, s[12:15], s57 offen
        buffer_load_dword v{EP+6}, v18, s[8:11], s59 offen
        s_add_u32 s48, s48, {WS_O}
        """)
        for e_ in range(4): a.e(f"buffer_load_ushort v{EP+2+e_}, v{14+e_}, s[8:11], s58 offen")
        draw(1)
        for i in range(1, 8): a.e(f"s_add_u32 s{48+i}, s48, {4096*i}")
    def oload(f):
        ks, qt = f >> 1, f & 1
        a.e(f"buffer_load_dwordx4 {q4(64 + 4*(f&31))}, v{9+qt}, s[8:11], s{48 + (ks>>2)} offen offset:{1024*(ks&3)}")
    def mm(f):
        ks, qt = f >> 1, f & 1
        for t in range(2):
            d = q4(GA + 8*qt + 4*t)
            a.e(f"v_mfma_f32_16x16x32_bf16 {d}, {a4((2*ks+t)*4)}, {q4(64 + 4*(f&31))}, {'0' if ks == 0 else d}")
    def epilogue():
        a.nop(6)
        for i in range(4): a.e(f"ds_write_b128 v11, {q4(GA+4*i)} offset:{1024*i}")
        a.e("s_waitcnt lgkmcnt(0)\ns_barrier")
        a.e("ds_read_b32 v24, v22")
        for i in range(4): a.e(f"ds_read_b128 {q4(R+4*i)}, v12 offset:{4096*i}")
        a.e(f"""
        v_xor_b32 v11, 0x4000, v11
        v_xor_b32 v12, 0x4000, v12
        v_xor_b32 v21, 0x4000, v21
        v_xor_b32 v22, 0x4000, v22
        s_waitcnt lgkmcnt(2)
        """)
        for r in range(4): a.e(f"v_add_f32 v{R+r}, v{R+r}, v{R+4+r}")
        a.e("s_waitcnt lgkmcnt(0)")
        for r in range(4): a.e(f"v_add_f32 v{R+8+r}, v{R+8+r}, v{R+12+r}")
        for r in range(4): a.e(f"v_add_f32 v{R+r}, v{R+r}, v{R+8+r}")
        for r in range(4): a.e(f"v_fma_f32 v{R+r}, v{R+r}, v{T+4}, v{T+r}")
        a.e(f"""
        v_cvt_pk_bf16_f32 v{R+4}, v{R}, v{R+1}
        v_cvt_pk_bf16_f32 v{R+5}, v{R+2}, v{R+3}
        buffer_store_dwordx2 v[{R+4}:{R+5}], v13, s[84:87], s56 offen
        s_mov_b32 s31, s30
        v_readfirstlane_b32 s30, v24
        """)
    Lcold = a.newlabel("cold"); Lmain = a.newlabel("main"); Ldrain = a.newlabel("drain"); Lgp = a.newlabel("gp"); Lgd = a.newlabel("gd")
    a.label(Lcold)
    st()
    a.e("s_mov_b32 s62, 0")
    a.label(Lgp)
    a.e(f"""
    buffer_load_dword v4, v8, s[8:11], 0 offen sc1
    s_add_u32 s62, s62, 1
    s_cmp_gt_u32 s62, {SPIN}
    s_cbranch_scc1 {Lend}
    s_waitcnt vmcnt(0)
    """)
    bound()
    a.e(f"""
    s_cmp_gt_u32 s33, s31
    s_cbranch_scc1 {Lgd}
    s_sleep {GS}
    s_cmp_eq_u32 s33, s31
    s_cbranch_scc1 {Lgp}
    s_sleep 24
    s_branch {Lgp}
    """)
    a.label(Lgd)
    side("s31")
    for f in range(32): oload(f)
    a.label(Lmain)
    st()
    pre = [f"v_lshlrev_b32 v{T}, 16, v{EP}", f"v_and_b32 v{T+1}, 0xffff0000, v{EP}", f"v_lshlrev_b32 v{T+2}, 16, v{EP+1}", f"v_and_b32 v{T+3}, 0xffff0000, v{EP+1}"]
    pre += [f"v_lshlrev_b32 v{EP+2+e_}, 16, v{EP+2+e_}" for e_ in range(4)]
    pre += [f"v_mul_f32 v{T+e_}, v{T+e_}, v{EP+2+e_}" for e_ in range(4)]
    pre += [f"v_mul_f32 v{T+e_}, v{T+e_}, v{EP+6}" for e_ in range(4)]
    pre += [f"v_sub_f32 v{T+4}, 1.0, v{EP+6}", "s_mov_b32 s56, s57", "ds_write_b32 v21, v20"]
    for f in range(32):
        a.e("s_waitcnt vmcnt(31)")
        mm(f); oload(f + 32)
        if f < len(pre): a.e(pre[f])
        if f == 24: bound()
    a.e(f"""
    s_cmp_gt_u32 s33, s30
    s_cbranch_scc0 {Ldrain}
    """)
    side("s30")
    for f in range(32, 64):
        a.e("s_waitcnt vmcnt(41)")
        mm(f); oload(f - 32)
    epilogue()
    a.e(f"s_branch {Lmain}")
    a.label(Ldrain)
    for f in range(32, 64):
        a.e(f"s_waitcnt vmcnt({63-f})")
        mm(f)
    epilogue()
    a.e(f"""
    s_cmp_lt_u32 s31, 64
    s_cbranch_scc1 {Lcold}
    """)
    a.label(Lgx)
    finish()
```

```python
from common import *

SENT_MIN = "0xfffffffe"
RQ = 0; RK = 4736; RC = 9472; RV = 14080; RVM = 18176
G = 24; AQ = 40; AK = 48; AV = 56; AC = 64; T = 72
KX = 104; VX = 136; QL = 144; QH = 160; KM = 176; S = 192; SM = 196; SI = 200; P = 204; PM = 208
VM0 = 212; VM1 = 216; ONE = 220; Z = 224; O0 = 228; O1 = 232; OUT = 236; E = 240
XQ = 144; PS = 148; XA = 156; ON1 = 164; RVB = RVM + 2048
DPQ = "quad_perm:[2,3,0,1] row_mask:0xf bank_mask:0xf"
DPP8 = "row_ror:8 row_mask:0xf bank_mask:0xf"
PFL = 0xc000
SPIN = "0x100000"

def q4(r): return f"v[{r}:{r+3}]"

def calib_measure(a):
    L = a.newlabel("nocal"); Lb = a.newlabel("calb")
    a.e(f"""
    s_lshl_b32 s4, s25, 3
    s_and_b32 s5, s26, 4
    s_or_b32 s4, s4, s5
    s_cbranch_scc1 {L}
    s_cmp_lg_u32 s24, 3
    s_cbranch_scc1 {Lb}
    s_lshr_b32 s4, s26, 1
    s_and_b32 s4, s4, 12
    s_and_b32 s5, s26, 3
    s_or_b32 s4, s4, s5             ; candidate
    s_lshl_b32 s5, s4, 11
    s_add_u32 s5, s5, s101
    s_mov_b64 exec, 1
    v_mov_b32 v4, -1
    v_mov_b32 v5, 0
    s_mov_b32 s7, 0xffff
    """)
    for t in range(3):
        a.e(f"""
        s_memtime s[72:73]
        s_waitcnt lgkmcnt(0)
        buffer_store_dword v4, v5, s[8:11], s5 offen sc1
        s_waitcnt vmcnt(0)
        s_memtime s[74:75]
        s_waitcnt lgkmcnt(0)
        s_sub_u32 s74, s74, s72
        s_min_u32 s7, s7, s74
        """)
    a.e(f"""
    s_lshl_b32 s5, s4, 1
    s_add_u32 s5, s5, {4*C_CAL}
    v_mov_b32 v4, s7
    buffer_store_short v4, v5, s[20:23], s5 offen sc1
    s_mov_b64 exec, -1
    """)
    a.label(Lb)
    a.e("s_barrier")
    a.label(L)

def calib_read(a, Lend):
    Lp = a.newlabel("cp"); Ld = a.newlabel("cd"); Lg = a.newlabel("cg")
    a.e(f"""
    s_mov_b32 s47, 0
    s_cmp_lg_u32 s27, 0
    s_cbranch_scc1 {Ld}
    s_mov_b32 s62, 0
    """)
    a.label(Lp)
    a.e(f"""
    v_and_b32 v18, 0xffff, v238
    v_lshrrev_b32 v19, 16, v238
    v_min_u32 v17, v18, v19
    v_cmp_eq_u32 vcc, 0, v17
    s_and_b32 s4, vcc_hi, {0xff << (C_CAL - 32)}
    s_cbranch_scc0 {Lg}
    s_add_u32 s62, s62, 1
    s_cmp_gt_u32 s62, {SPIN}
    s_cbranch_scc1 {Lend}
    s_sleep 16
    buffer_load_dword v238, v239, s[20:23], 0 offen sc1
    s_waitcnt vmcnt(0)
    s_branch {Lp}
    """)
    a.label(Lg)
    for c in range(16):
        a.e(f"v_readlane_b32 s{66+c}, v{18+(c&1)}, {C_CAL + (c>>1)}")
    def ssum(dst, regs):
        a.e(f"s_add_u32 s{dst}, s{regs[0]}, s{regs[1]}")
        for r in regs[2:]:
            a.e(f"s_add_u32 s{dst}, s{dst}, s{r}")
    a.nop(4)
    ssum(4, [66 + c for c in range(16) if not c & 4]); ssum(5, [66 + c for c in range(16) if c & 4])
    a.e("s_cmp_lt_u32 s5, s4\ns_cselect_b32 s47, 0x2000, 0")
    lo = [c for c in range(16) if not c & 4]
    for c in lo:
        a.e(f"s_cselect_b32 s{66+c}, s{66+c+4}, s{66+c}")
    for bit, val in ((1, 0x800), (2, 0x1000), (8, 0x4000)):
        ssum(4, [66 + c for c in lo if not c & bit]); ssum(5, [66 + c for c in lo if c & bit])
        a.e(f"s_cmp_lt_u32 s5, s4\ns_cselect_b32 s4, {val}, 0\ns_or_b32 s47, s47, s4")
    a.label(Ld)

def body_rec(a, Lend, verify_issue, verify_check, diag=False, nowait=False, IL='prio', tail=None, EXP='', XS=5, ZE=60, FZ=52, PH=1, WPOL='nt', AW=0, arm_signal=None, CP=2, RL=0, RP=0, KP=0, PF=0, lite=False, FM=3, HP=10, HQ=0, VA=0, VB=0, VC=0):
    WPOL = WPOL.replace('_', ' ')
    ln = Lane(a)
    if 'z' in EXP: EXP += 'nl'
    if 'y' in EXP: EXP += 'enl'
    NL = 'n' in EXP and 'l' not in EXP
    WSTR = 64 if 'h' in EXP else 128
    PS5 = '5' in EXP
    VE = 'E' in EXP
    PS4 = '4' in EXP or PS5
    def rts(i):
        if not diag: return
        a.e(f"""
        s_memrealtime s[72:73]
        s_waitcnt lgkmcnt(0)
        v_writelane_b32 v250, s72, {i}
        """)
    a.e(f"""
    s_load_dwordx8 s[84:91], s[0:1], {KA['wq']}
    s_load_dwordx2 s[40:41], s[0:1], {KA['mem0']}
    v_and_b32 v1, 63, v0
    """)
    rts(0)
    if diag: a.e('v_writelane_b32 v250, s92, 9')
    calib_measure(a)
    a.e(f"""
    s_lshl_b32 s4, s25, 11
    s_lshl_b32 s5, s26, 6
    s_add_u32 s4, s4, s5
    s_lshl_b32 s6, s24, 21
    s_add_u32 s4, s4, s6
    s_lshl_b32 s7, s25, 21
    s_lshl_b32 s6, s24, 19
    s_add_u32 s7, s7, s6
    s_add_u32 s7, s7, s5
    s_lshl_b32 s6, s24, 15
    v_bfe_u32 v4, v1, 4, 1
    v_lshlrev_b32 v4, 1, v4
    v_and_b32 v5, 3, v1
    v_xor_b32 v4, v4, v5
    v_lshlrev_b32 v4, 4, v4         ; 16B chunk
    """)
    ln.build(5, [(2, 1, 1), (3, 1, 8), (4, 1, 4), (5, 1, 2)])
    a.e("""
    v_lshlrev_b32 v6, 13, v5
    v_add_u32 v6, v6, v4
    v_add_u32 v240, s4, v6
    v_lshlrev_b32 v6, 11, v5
    v_add_u32 v6, v6, v4
    v_add_u32 v241, s7, v6
    """)
    ROT = 'r' not in EXP
    if ROT: a.e("v_xor_b32 v241, 256, v241")
    ln.build(242, [(2, 2, 64), (4, 1, 256 + 32), (5, 1, 1024), (0, 2, 8)], sregs=["s6"])
    a.e("v_xor_b32 v243, 32, v242\ns_waitcnt lgkmcnt(0)")
    def dma(mat, buf):
        srd(a, 16, 84 + 2 * mat, 1024 * 4096 * 2)
        if 'C' in EXP or 'D' in EXP:
            a.e("s_lshl_b32 s4, s25, 5\ns_add_u32 s4, s4, s26\ns_lshl_b32 s4, s4, 2\ns_add_u32 s4, s4, s24\ns_lshl_b32 s4, s4, 14")
            if 'C' in EXP: a.e("v_lshlrev_b32 v240, 4, v1\nv_add_u32 v240, s4, v240")
            else:
                a.e("s_lshl_b32 s4, s25, 11\ns_and_b32 s5, s26, 7\ns_lshl_b32 s5, s5, 8\ns_add_u32 s4, s4, s5\ns_lshr_b32 s5, s26, 3\ns_lshl_b32 s5, s5, 21\ns_add_u32 s4, s4, s5\ns_lshl_b32 s5, s24, 19\ns_add_u32 s4, s4, s5")
                ln.build(240, [(0, 4, 16), (4, 2, 8192)], 0, ["s4"])
            for i in range(16):
                a.e(f"""
                s_add_u32 m0, s6, {buf*16384 + i*1024}
                s_mov_b32 s5, {i*1024 if 'C' in EXP else i*32768}
                buffer_load_dwordx4 v240, s[16:19], s5 offen nt lds
                """)
            return
        if ROT and mat < 3: a.e(f"v_xor_b32 v240, {((128, 0, 128) if PS4 else (512, 640, 128))[mat]}, v240")
        a.e(f"""
        s_and_b32 s4, s26, 1
        s_lshl_b32 s98, s4, {10 + PH}
        s_lshl_b32 s99, s4, {PH + (17 if mat < 3 else 15)}
        s_add_u32 s98, s98, s6
        """)
        for i in range(16):
            a.e(f"""
            s_xor_b32 m0, s98, {buf*16384 + i*1024}
            s_xor_b32 s5, s99, {i*16*(8192 if mat < 3 else 2048)}
            buffer_load_dwordx4 v{240 if mat < 3 else 241}, s[16:19], s5 offen {WPOL} lds
            """)
    def tr(mat, buf):
        for t in range(2):
            for p in range(4):
                for m in range(4):
                    r = ((mat * 2 + t) * 4 + p) * 8 + 2 * m
                    a.e(f"ds_read_b64_tr_b16 a[{r}:{r+1}], v{242+t} offset:{buf*16384 + (4*p + 2*(m>>1))*1024 + (m&1)*512}")
        a.e("s_waitcnt lgkmcnt(0)")
    dma(0, 0)
    a.e("s_waitcnt vmcnt(16)\ns_barrier"); arm_signal()
    dma(1, 1)
    rts(1)
    a.e(f"""
    s_lshr_b32 s52, s26, 2          ; hl
    s_and_b32 s53, s26, 3           ; c
    s_lshl_b32 s54, s25, 14         ; X*16384
    s_lshl_b32 s55, s26, 9          ; j*512
    s_add_u32 s55, s55, s54
    s_lshl_b32 s56, s25, 3
    s_add_u32 s56, s56, s52         ; head
    s_lshl_b32 s57, s56, 12         ; head*4096
    s_lshl_b32 s58, s53, 9          ; c*512
    s_add_u32 s58, s58, s57
    s_mov_b32 s48, 0x00ff00ff
    s_mov_b32 s49, 0x00ff00ff
    s_mov_b32 s50, 0xff00ff00
    s_mov_b32 s51, 0xff00ff00
    v_mov_b32 v2, 0x4444
    v_mov_b32 v4, 0xeeee
    s_lshl_b32 s4, s24, 12
    s_add_u32 s4, s4, s54
    v_cndmask_b32 v2, v4, v2, s[48:49]
    """)
    ln.build(3, [(0, 6, 16)], sregs=["s4"])
    a.e("v_add_u32 v4, 0x10000, v3\ns_mul_i32 s4, s24, 1152")
    ln.build(5, [(4, 1, 576), (5, 1, 64), (0, 4, 4)], RQ, ["s4"])
    a.e(f"""
    v_add_u32 v6, {RK-RQ}, v5
    v_add_u32 v7, {RC-RQ}, v5
    s_lshl_b32 s4, s24, 10
    """)
    ln.build(8, [(0, 6, 16)], RV, ["s4"])
    a.e(f"""
    s_and_b32 s4, s24, 1
    s_lshr_b32 s5, s24, 1
    s_lshl_b32 s59, s4, 6
    s_mul_i32 s60, s5, {RK-RQ}
    s_add_u32 s59, s59, s60
    s_lshl_b32 s4, s4, 8
    s_add_u32 s60, s58, s4          ; head*4096 + c*512 + (w&1)*256
    s_lshl_b32 s5, s5, 11
    s_add_u32 s61, s60, s5
    """)
    if ROT: a.e("s_cmp_lt_u32 s24, 2\ns_cselect_b32 s5, 8, 1\ns_lshl_b32 s5, s5, 10\ns_xor_b32 s61, s61, s5")
    ln.build(9, [(2, 3, 144), (5, 1, 32), (0, 2, 8)], RQ, ["s59"])
    ln.build(10, [(0, 6, 4)], 0x20000, ["s61"])
    ln.build(11, [(0, 6, 4)], RVM, ["s4"])
    if VE:
        a.e("s_lshl_b32 s4, s24, 2")
        ln.build(255, [(2, 1, 1024), (4, 1, 512), (5, 1, 128), (3, 1, 64), (0, 2, 16)], RVB, ["s4"])
    for r in range(20, 24): a.e(f"v_mov_b32 v{r}, -1")
    for r in range(AQ, AC + 8): a.e(f"v_mov_b32 v{r}, 0")
    ln.build(244, [(0, 5, 16), (5, 1, 2048)], 0x20000, ["s58"])
    ln.build(245, [(0, 5, 16), (5, 1, 0x10000)], 0, ["s55"])
    if PS4:
        a.e("s_lshl_b32 s4, s53, 10\ns_add_u32 s4, s4, s57")
        ln.build(246, [(0, 6, 16)], 0x20000, ["s4"])
        a.e("v_subrev_u32 v237, 0x20000, v246\nv_lshrrev_b32 v237, 2, v237\nv_add_u32 v237, "+str(SMO)+", v237")
    else: a.e("v_mov_b32 v246, v244")
    a.e("s_waitcnt vmcnt(16)")
    rts(2)
    tr(0, 0)
    dma(2, 0)
    a.e("s_waitcnt vmcnt(16)")
    rts(3)
    tr(1, 1)
    verify_issue()
    srd(a, 12, 40, 16384)
    a.e(f"s_xor_b32 s4, s26, {4 if ROT else 0}\ns_lshl_b32 s4, s4, 6")
    ln.build(247, [(1, 3, 2048), (4, 2, 16), (0, 1, 8)])
    a.e("buffer_load_dwordx2 v[248:249], v247, s[12:15], s4 offen")
    dma(3, 1)
    a.e("s_waitcnt vmcnt(16)")
    rts(4)
    verify_check()
    tr(2, 0)
    calib_read(a, Lend)

    def variant(sc):
        a.e(f"""
        s_mov_b32 s28, 0
        s_mov_b32 s30, {WS_RING}
        s_mov_b32 s31, {WS_RING + SLOT}
        s_mov_b32 s32, {WS_RING + 2*SLOT}
        s_mov_b32 s33, {WS_RING + 3*SLOT}
        s_mov_b32 s41, {WS_KVM - 0x20000 - (2048 if 'z' in EXP else 0)}
        s_lshl_b32 s42, s56, {19 if 'T' in EXP else 13}
        s_lshl_b32 s4, s53, 11
        s_add_u32 s44, s42, s4
        s_add_u32 s44, s44, {WS_VX}
        s_add_u32 s42, s42, {WS_KX}
        s_xor_b32 s4, s53, {2 if ROT else 0}
        s_lshl_b32 s4, s4, 10
        {"s_add_u32 s42, s42, s4" if PS4 else ""}
        s_add_u32 s43, s42, 4096
        s_add_u32 s96, s44, {33*8192 if 'T' in EXP else (1 if 'm' in EXP else 2)*32*8192}
        s_sub_u32 s95, s96, {WS_VX - WS_KX}
        s_mov_b32 s62, 0
        s_mov_b32 s45, 0x3e0293ee       ; 128^-0.5 * log2(e)
        s_mov_b32 s46, 0
        s_and_b32 s4, s25, 1
        s_lshl_b32 s4, s4, 14
        s_lshr_b32 s5, s25, 1
        s_lshl_b32 s5, s5, 12
        s_or_b32 s4, s4, s5
        s_xor_b32 s47, s47, s4
        s_and_b32 s5, s26, 1
        s_lshl_b32 s5, s5, 10
        s_lshr_b32 s4, s26, 1
        s_lshl_b32 s4, s4, 15
        s_or_b32 s5, s5, s4
        s_bfe_u32 s4, s26, 0x10004      ; b18 flips b11
        s_lshl_b32 s4, s4, 11
        s_xor_b32 s5, s5, s4
        s_xor_b32 s34, s5, s47
        s_xor_b32 s35, s34, 0x84000     ; b19 flips b14
        s_xor_b32 s36, s34, 0x101000    ; b20 flips b12
        s_xor_b32 s37, s34, 0x185000
        """)
        def wait_kv(need, once=False):
            if nowait: return
            L = a.newlabel("kv"); D = a.newlabel("kvd")
            a.e(f"""
            s_cmp_ge_u32 s46, {need}
            s_cbranch_scc1 {D}
            s_mov_b32 s62, 0
            """)
            a.label(L)
            a.e(f"""
            buffer_load_dword v18, v13, s[8:11], 0 offen sc1
            s_add_u32 s62, s62, 1
            s_cmp_gt_u32 s62, {SPIN}
            s_cbranch_scc1 {Lend}
            s_waitcnt vmcnt(0)
            v_min_u32_dpp v18, v18, v18 quad_perm:[1,0,3,2] row_mask:0xf bank_mask:0xf
            s_nop 1
            v_min_u32_dpp v18, v18, v18 quad_perm:[2,3,0,1] row_mask:0xf bank_mask:0xf
            s_nop 1
            v_min_u32_dpp v18, v18, v18 row_half_mirror row_mask:0xf bank_mask:0xf
            s_nop 0
            v_readfirstlane_b32 s46, v18
            """)
            if not once: a.e(f"s_cmp_lt_u32 s46, {need}\ns_cbranch_scc1 {L}")
            a.label(D)
        def pk(i): return f"buffer_load_dwordx4 {q4(KX + i*4)}, v15, s[8:11], s{42+(i>>2)} offen offset:{1024*(i&3)}"
        def prefetch(k=True):
            for i in ((0, 4) if PS4 else range((2 if 'j' in EXP else 8) if k else 0)): a.e(pk(i))
            for t in range(2):
                a.e(f"buffer_load_dwordx4 {q4(VX + 4*t)}, v15, s[8:11], s44 offen offset:{1024*t}")
            a.e(f"""
            s_add_u32 s42, s42, {32*8192}
            s_add_u32 s43, s43, {32*8192}
            s_add_u32 s44, s44, {32*8192}
            """)
        def warm(w, mid=False):
            lines = [(95, WSTR * i) for i in range(2048 // WSTR)] + [(96, WSTR * i) for i in range(2048 // WSTR)]
            if 'm' in EXP and w != 1 or 'W' in EXP: return
            if 'n' in EXP and not mid: return
            if 'z' in EXP: lines = {1: lines[0:11], 2: lines[11:26], 3: lines[26:]}[w]
            elif 'l' in EXP: lines = {1: lines[0:15], 3: lines[15:30], 2: lines[30:]}[w]
            for (sr, off) in (lines if 'l' in EXP else lines[w-1::3] if mid else lines if w == 1 else lines[{0: 0, 2: 1, 3: 2}[w]::3]):
                a.e(f"s_buffer_load_dword s97, s[8:11], s{sr} offset:{off}")
            a.e(f"s_add_u32 s95, s95, {8192 if 'T' in EXP else 32*8192}\ns_add_u32 s96, s96, {8192 if 'T' in EXP else 32*8192}")
        Lw = [a.newlabel(f"w{w}") for w in range(4)]
        a.e(f"""
        s_cmp_eq_u32 s24, 1
        s_cbranch_scc1 {Lw[1]}
        s_cmp_eq_u32 s24, 2
        s_cbranch_scc1 {Lw[2]}
        s_cmp_eq_u32 s24, 3
        s_cbranch_scc1 {Lw[3]}
        """)
        cold = []
        def smf(acc, p, wbase):
            a.e(f"v_smfmac_f32_16x16x64_bf16 {q4(acc)}, {q4(G+4*p)}, a[{wbase}:{wbase+7}], v2")
        def tiles_q(p): return [(AQ, p * 8), (AQ + 4, 32 + p * 8)]
        def tiles_k(p): return [(AK, 64 + p * 8), (AK + 4, 96 + p * 8)]
        def tiles_c(p): return [(AC, 192 + p * 8), (AC + 4, 224 + p * 8)]
        def gload(p, vaddr):
            a.e(f"buffer_load_dwordx4 {q4(G+4*p)}, v{vaddr}, s[8:11], s30 offen offset:{1024*p} sc1")
        def gather(vaddr, prim, sec, chkregs, cnt, spec=False):
            for p in range(4):
                if IL == 'prio': a.e(f"s_setprio {3-p}")
                gload(p, vaddr)
                if IL == 'bar' and p < 3: a.e("s_barrier")
            fill = []
            for p in range(4):
                Ls = a.newlabel("gs"); Lr = a.newlabel("gr"); Ll = a.newlabel("gl")
                g = G + 4 * p
                def check(g=g):
                    if chkregs == 1: a.e(f"v_cmp_eq_u32 vcc, -1, v{g+3}")
                    else: a.e(f"v_max_u32 v18, v{g+1}, v{g+3}\nv_cmp_eq_u32 vcc, -1, v18")
                def count():
                    if diag: a.e(f"s_add_u32 s{cnt}, s{cnt}, 1")
                    a.e(f"""
                    s_add_u32 s62, s62, 1
                    s_cmp_gt_u32 s62, {SPIN}
                    s_cbranch_scc1 {Lend}
                    """)
                if spec:
                    if fill: smf(*fill.pop(0))
                    a.e(f"s_waitcnt vmcnt({3-p})")
                    smf(prim(p)[0][0], p, prim(p)[0][1])
                    check()
                    smf(prim(p)[1][0], p, prim(p)[1][1])
                    a.e(f"s_cbranch_vccnz {Ls}")
                    a.label(Lr)
                    def slow(p=p, Ls=Ls, Lr=Lr, Ll=Ll, check=check, count=count):
                        Lc = a.newlabel("gc")
                        a.label(Ls)
                        for q in range(p, 4): gload(q, vaddr)
                        a.nop(3 + p)
                        zero(range(prim(0)[0][0], prim(0)[0][0] + 8))
                        a.nop(2)
                        for q in range(p):
                            for (acc, wb) in prim(q): smf(acc, q, wb)
                        a.e(f"s_branch {Lc}")
                        a.label(Ll)
                        for q in range(p, 4): gload(q, vaddr)
                        a.label(Lc)
                        count()
                        a.e(f"s_waitcnt vmcnt({3-p})")
                        check()
                        a.e(f"s_cbranch_vccnz {Ll}")
                        for (acc, wb) in prim(p): smf(acc, p, wb)
                        a.e(f"s_branch {Lr}")
                else:
                    a.e(f"s_waitcnt vmcnt({3-p})")
                    check()
                    if fill: smf(*fill.pop(0))
                    a.e(f"s_cbranch_vccnz {Ls}")
                    a.label(Lr)
                    for (acc, wb) in prim(p): smf(acc, p, wb)
                    def slow(p=p, Ls=Ls, Lr=Lr, check=check, count=count):
                        a.label(Ls)
                        for q in range(p, 4): gload(q, vaddr)
                        count()
                        a.e(f"s_waitcnt vmcnt({3-p})")
                        check()
                        a.e(f"s_cbranch_vccz {Lr}\ns_branch {Ls}")
                if fill: smf(*fill.pop(0))
                fill += [(acc, p, wb) for (acc, wb) in sec(p)]
                while 'G' in EXP and p < 3 and len(fill) > ('H' in EXP): smf(*fill.pop(0))
                cold.append(slow)
            return fill
        Lm = [a.newlabel("gm"), a.newlabel("gm")]
        def machine(Le, vaddr, tiles, chkregs, cnt):
            S = {}; F = {}
            def lab(d, Q, p):
                if Q not in d: d[Q] = a.newlabel(p)
                return d[Q]
            def probe(Q):
                g = G + 4 * Q[0]
                a.e(f"s_waitcnt vmcnt({len(Q)-1})")
                a.e(f"v_cmp_eq_u32 vcc, -1, v{g+3}" if chkregs == 1 else f"v_max_u32 v18, v{g+1}, v{g+3}\nv_cmp_eq_u32 vcc, -1, v18")
            done = set()
            def chain(Q):
                while True:
                    if Q in done:
                        a.e(f"s_branch {S[Q]}"); return
                    done.add(Q)
                    a.label(lab(S, Q, "ok"))
                    tl = tiles(Q[0]); h = len(tl) // 2; R = Q[1:]
                    for (acc, wb) in tl[:h]: smf(acc, Q[0], wb)
                    if R: probe(R)
                    for (acc, wb) in tl[h:]: smf(acc, Q[0], wb)
                    if not R:
                        a.e("s_setpc_b64 s[98:99]"); return
                    a.e(f"s_cbranch_vccnz {lab(F, R, 'nk')}")
                    Q = R
            a.raw(".p2align 6")
            a.label(Le)
            Q0 = (0, 1, 2, 3)
            probe(Q0)
            a.e(f"s_cbranch_vccnz {lab(F, Q0, 'nk')}")
            chain(Q0)
            fd = set()
            while len(fd) < len(F):
                Q = [x for x in F if x not in fd][0]; fd.add(Q)
                R = Q[1:] + Q[:1]
                a.label(F[Q])
                gload(Q[0], vaddr)
                if diag: a.e(f"s_add_u32 s{cnt}, s{cnt}, 1")
                a.e(f"s_add_u32 s62, s62, 1\ns_cmp_gt_u32 s62, {SPIN}\ns_cbranch_scc1 {Lend}")
                probe(R)
                a.e(f"s_cbranch_vccnz {lab(F, R, 'nk')}")
                lab(S, R, "ok")
                chain(R)
        def mgather(i, vaddr):
            for p in range(4):
                if IL == 'prio': a.e(f"s_setprio {3-p}")
                gload(p, vaddr)
            a.e(f"s_call_b64 s[98:99], {Lm[i]}")
        def addn(d, x, y, n, key='P'):
            if key in EXP:
                for r in range(0, n, 2): a.e(f"v_pk_add_f32 v[{d+r}:{d+r+1}], v[{x+r}:{x+r+1}], v[{y+r}:{y+r+1}]")
            else:
                for r in range(n): a.e(f"v_add_f32 v{d+r}, v{x+r}, v{y+r}")
        def merge(A, key='P'):
            for r in range(4): a.e(f"v_permlane32_swap_b32 v{A+r}, v{A+4+r}")
            addn(A, A, A + 4, 4, key)
        def write36(addr, A):
            a.e(f"ds_write2_b32 v{addr}, v{A}, v{A+1} offset0:0 offset1:36")
            a.e(f"ds_write2_b32 v{addr}, v{A+2}, v{A+3} offset0:72 offset1:108")
        def zero(regs):
            for r in regs: a.e(f"v_mov_b32 v{r}, 0")
        def rotate(w):
            a.e("""
            s_mov_b32 s4, s30
            s_mov_b32 s30, s31
            s_mov_b32 s31, s32
            s_mov_b32 s32, s33
            s_mov_b32 s33, s4
            s_add_u32 s28, s28, 1
            s_mov_b32 s62, 0
            """)
            if w in (1, 3):
                a.e("""
                s_mov_b32 s4, s34
                s_mov_b32 s34, s35
                s_mov_b32 s35, s36
                s_mov_b32 s36, s37
                s_mov_b32 s37, s4
                """)
            if w >= 2 and 'K' not in EXP: a.e("s_add_u32 s41, s41, 0x20000")

        def prewarm(w):
            if sc or 'R' not in EXP: return
            a.e(f"buffer_load_dwordx4 {q4(G)}, v246, s[8:11], s{30+w} offen sc1\nbuffer_load_dwordx4 {q4(G+4)}, v245, s[8:11], s{30+w} offen sc1")
            if PS4: a.e(f"buffer_load_dword v{G+8}, v237, s[8:11], s{30+w} offen sc1")

        def rearm(pos):
            if RP == pos: a.e("buffer_store_dwordx2 v[20:21], v15, s[8:11], s36 offen sc1" if 'J' in EXP else "buffer_store_dwordx4 v[20:23], v15, s[8:11], s36 offen sc1")
            if RL == pos:
                a.e(f"buffer_store_dwordx4 v[20:23], v246, s[8:11], s32 offen{sc}\nbuffer_store_dwordx4 v[20:23], v245, s[8:11], s32 offen{sc}")
                if PS4: a.e(f"buffer_store_dword v20, v237, s[8:11], s32 offen{sc}")
        KVST = f"buffer_store_dwordx4 {q4(T)}, v244, s[8:11], s41 offen sc1"
        for w in range(4):
            nst = [0]
            def st(i):
                if diag and not lite: a.e(f"s_memtime s[{66+2*i}:{67+2*i}]")
            def stflush():
                if not diag or lite: return
                a.e("s_waitcnt lgkmcnt(0)")
                for i in range(13): a.e(f"v_writelane_b32 v251, s{66+2*i}, {i}")
                for i in range(3): a.e(f"v_writelane_b32 v251, s{92+i}, {13+i}")
                a.e(f"""
                s_mov_b64 exec, 0xffff
                ds_write_b32 v253, v251
                s_mov_b64 exec, -1
                v_add_u32 v253, 64, v253
                """)
            a.label(Lw[w])
            if diag:
                a.e(f"""
                s_lshl_b32 s4, s25, 5
                s_add_u32 s4, s4, s26
                s_lshl_b32 s4, s4, 14
                s_add_u32 s4, s4, {WS_DIAG + w*4096}
                s_mov_b32 s92, 0
                s_mov_b32 s93, 0
                s_mov_b32 s94, 0
                """)
                ln.build(252, [(0, 6, 16)], 0, ["s4"])
                ln.build(253, [(0, 6, 4)], 32768 + w*4096 + (63*64 if lite else 0))
            if w == 1 and PS5:
                ln.build(9, [(0, 3, 144), (3, 1, 1152), (4, 2, 32)], RQ)
                ln.build(11, [(0, 1, 144), (2, 2, 288), (1, 1, 1152), (4, 2, 32)], RK)
                a.e("s_lshl_b32 s4, s56, 10\ns_lshl_b32 s5, s53, 2")
                ln.build(10, [(0, 6, 16)], SMO, ["s4", "s5"])
            if w == 0 and PS5:
                ln.build(9, [(0, 3, 144), (3, 1, 1152), (4, 2, 32)], RQ)
                a.e("s_lshl_b32 s4, s56, 10")
                ln.build(13, [(0, 6, 16)], SMO, ["s4"])
                for i in range(3): a.e(f"v_xor_b32 v{XA+i}, {1024*(i+1)}, v246")
                ln.build(14, [(4, 2, 128), (0, 4, 16)], 0x10000, ["s55"])
                ln.build(15, [(0, 6, 16)])
                ln.build(16, [(2, 2, 128), (0, 2, 16), (4, 2, 4)], RVM + 512)
                zero(range(PM, PM + 12))
                a.e("s_mov_b64 s[50:51], s[48:49]")
                zero(range(ON1, ON1 + 4)); a.e(f"v_mov_b32 v{ON1}, 0x3f803f80")
                for r in range(4): a.e(f"v_mov_b32 v{SI+r}, s45\nv_mov_b32 v{ONE+r}, 0x3f803f80")
            elif w == 0 and PS4:
                ln.build(12, [(0, 1, 144), (2, 2, 288), (4, 2, 32)], RK)
                ln.build(13, [(1, 1, RK - RQ)])
                a.e("v_sub_u32 v12, v12, v13\ns_lshl_b32 s4, s56, 10\ns_lshl_b32 s5, s53, 2")
                ln.build(13, [(0, 6, 16)], SMO, ["s4"])
                a.e("v_add_u32 v10, s5, v13")
                for i in range(3): a.e(f"v_xor_b32 v{XA+i}, {1024*(i+1)}, v246")
                ln.build(11, [(4, 2, 128), (2, 2, 32), (0, 1, 16), (1, 1, 1024)], RVM)
                ln.build(14, [(4, 2, 128), (2, 2, 32), (0, 1, 16)], 0x10000, ["s55"])
                ln.build(15, [(0, 6, 16)])
                ln.build(16, [(2, 2, 128), (0, 2, 16), (4, 2, 4)], RVM + 512)
                zero(range(PM, PM + 12))
                a.e("s_mov_b32 s50, 0xcccccccc\ns_mov_b32 s51, 0xcccccccc")
                for r in range(4): a.e(f"v_mov_b32 v{SI+r}, s45\nv_mov_b32 v{ONE+r}, 0x3f803f80")
            elif w == 0:
                ln.build(12, [(4, 2, 128), (0, 3, 16)], 0x20000, ["s57"])
                ln.build(13, [(4, 2, 128), (2, 2, 32), (0, 1, 16)], 0x20000 + 2048, ["s57"])
                ln.build(14, [(4, 2, 128), (0, 4, 16)], 0x10000, ["s55"])
                ln.build(15, [(0, 6, 16)])
                ln.build(16, [(2, 2, 128), (0, 2, 16), (4, 2, 4)], RVM + 512)
                zero(range(QL, QL + 32)); zero(range(PM, PM + 12))
                a.e("v_mov_b32 v18, 0xff800000")
                for r in range(4):
                    a.e(f"v_mov_b32 v{SI+r}, s45" if '1' in EXP else f"v_cndmask_b32 v{SI+r}, v18, 0, s[48:49]")
                    a.e(f"v_mov_b32 v{ONE+r}, 0x3f803f80")
            elif w == 1:
                ln.build(12, [(1, 3, 144), (4, 2, 32), (0, 1, 16)], RC)
                ln.build(13, [(0, 6, 8 if 'J' in EXP else 16)], 0, ["s101"])
                ln.build(14, [(0, 6, 8)], 0, ["s55"])
                if ROT: a.e("v_xor_b32 v14, 2048, v14")
                a.e(f"v_min_u32 v249, {SENT_MIN}, v249\nbuffer_store_dwordx2 v[248:249], v14, s[8:11], s30 offen{sc}")
                ln.build(15, [(0, 6, 16)])
                for i in range(3): a.e(f"s_add_u32 s{42+i}, s{42+i}, {32*8192}")
            elif w == 2:
                a.e(f"""
                s_lshl_b32 s4, s56, 9
                s_lshl_b32 s5, s53, 7
                s_add_u32 s4, s4, s5
                s_add_u32 s4, s4, {FL_REC}
                v_mov_b32 v14, s4
                """)
                ln.build(12, [(0, 6, 16)], RVM)
                ln.build(15, [(0, 6, 16)])
                for i in range(3): a.e(f"s_add_u32 s{42+i}, s{42+i}, {32*8192}")
                if ROT: a.e("s_mov_b32 exec_hi, 0\nv_xor_b32 v244, 1024, v244\ns_mov_b32 exec_hi, -1")
            else:
                ln.build(12, [(3, 1, 512), (5, 1, 256), (2, 1, 128), (0, 2, 16), (4, 1, 8)], RV)
                ln.build(14, [(2, 2, 128), (0, 2, 16), (4, 2, 4)], RVM + 512)
                ln.build(15, [(0, 6, 8 if 'J' in EXP else 16)], 0, ["s101"])
                ln.build(16, [(2, 2, 128), (0, 2, 16), (4, 2, 4)], 0x20000 + 4096, ["s58"])
                a.e(f"s_lshl_b32 s4, s56, 9\ns_add_u32 s4, s4, {FL_K}")
                ln.build(13, [(0, 2, 128), (2, 1, FL_V - FL_K)], 0, ["s4"])
                prewarm(w)
                a.e("s_waitcnt vmcnt(0)")
                tr(3, 1)
                wait_kv(3 if 'n' in EXP else 2 if 'm' in EXP else 1)
            if w != 3:
                prewarm(w)
                a.e("s_waitcnt vmcnt(0)")
                tr(3, 1)
            rts(5)
            a.e("s_barrier")
            if w == 0: prefetch()
            rts(6)
            Lstep = a.newlabel("step"); Lfin = a.newlabel("fin")
            a.raw(".p2align 6")
            a.label(Lstep)
            if w == 1 and 'N' not in EXP: a.e("s_waitcnt vmcnt(0)")
            a.e("s_barrier")
            st(0)
            if 'M' in EXP: mgather(0, 3)
            else:
                fill = gather(3, tiles_q, tiles_k, 2, 92, 'X' in EXP)
                smf(*fill[0])
            if 'G' in EXP: smf(*fill[1])
            st(1)
            if 'G' in EXP and not diag: a.nop(1)
            for r in range(4):
                a.e(f"v_permlane32_swap_b32 v{AQ+r}, v{AQ+4+r}")
                if r == 1 and 'G' not in EXP and 'M' not in EXP: smf(*fill[1])
            addn(AQ, AQ, AQ + 4, 4, 'Q')
            write36(5, AQ); merge(AK); write36(6, AK)
            def pka(d, x, y): a.e(f"v_pk_add_f32 v[{d}:{d+1}], v[{x}:{x+1}], v[{y}:{y+1}]\nv_pk_add_f32 v[{d+2}:{d+3}], v[{x+2}:{x+3}], v[{y+2}:{y+3}]")
            def half(r, addr):
                for i in range(4): a.e(f"ds_read_b128 {q4(r+4*i)}, v{addr} offset:{2304*(i&1) + 16*(i>>1)}")
            def hsum(d, r, n):
                for h in range(2):
                    a.e(f"s_waitcnt lgkmcnt({n+2-2*h})")
                    pka(r + 8*h, r + 8*h, r + 8*h + 4)
                    a.e(f"v_cvt_pk_bf16_f32 v{d+2*h}, v{r+8*h}, v{r+8*h+1}\nv_cvt_pk_bf16_f32 v{d+2*h+1}, v{r+8*h+2}, v{r+8*h+3}")
            def fold(d, x, y): a.e(f"v_add_f32_dpp v{d}, v{x}, v{x} row_ror:8 row_mask:0xf bank_mask:0x3\nv_add_f32_dpp v{d}, v{y}, v{y} row_ror:8 row_mask:0xf bank_mask:0xc")
            vq = [(AV + 4*(i & 1), i >> 1, 128 + 32*(i & 1) + 8*(i >> 1)) for i in range(8)]
            def vs(n):
                for _ in range(n): smf(*vq.pop(0))
            if PS5:
                a.e("s_waitcnt lgkmcnt(2)\ns_barrier")
                if w < 2: half(T, 9)
                if w < 2: vs(VA)
                a.e(f"s_waitcnt lgkmcnt({4 if w < 2 else 0})\ns_barrier")
                if w == 0:
                    vs(VB)
                    hsum(XQ, T, 0)
                    a.e(f"""
                    s_nop 1
                    v_mfma_f32_16x16x32_bf16 {q4(S)}, {q4(KX)}, {q4(XQ)}, 0
                    v_mfma_f32_16x16x32_bf16 {q4(QH)}, {q4(KX+16)}, {q4(XQ)}, 0
                    """)
                    if VC: vs(1)
                    else: a.nop(4)
                    for r in (3, 0, 1, 2): a.e(f"v_add_f32_dpp v{PS+r}, v{S+r}, v{S+r} row_ror:8 row_mask:0xf bank_mask:0x3")
                    for r in (3, 0, 1, 2): a.e(f"v_add_f32_dpp v{PS+r}, v{QH+r}, v{QH+r} row_ror:8 row_mask:0xf bank_mask:0xc")
                    a.e(f"""
                    v_min_u32 v{PS+3}, {SENT_MIN}, v{PS+3}
                    buffer_store_dwordx4 {q4(PS)}, v246, s[8:11], s30 offen{sc}
                    """)
                if w == 1:
                    half(T + 16, 11)
                    vs(VB)
                    hsum(XQ, T, 4)
                    hsum(XQ + 4, T + 16, 0)
                    a.e(f"s_nop 1\nv_mfma_f32_16x16x32_bf16 {q4(SM)}, {q4(XQ+4)}, {q4(XQ)}, 0")
                    if VC: vs(2)
                    else: a.nop(8)
                    a.e(f"""
                    v_pk_add_f32 v[{SM}:{SM+1}], v[{SM}:{SM+1}], v[{SM+2}:{SM+3}]
                    s_nop 1
                    v_add_f32_dpp v{SM+2}, v{SM}, v{SM} {DPP8}
                    v_add_f32_dpp v{SM+3}, v{SM+1}, v{SM+1} {DPP8}
                    v_cndmask_b32 v{SM+2}, v{SM+3}, v{SM+2}, s[48:49]
                    v_min_u32 v{SM+2}, {SENT_MIN}, v{SM+2}
                    buffer_store_dword v{SM+2}, v10, s[8:11], s30 offen{sc}
                    """)
            elif PS4:
                a.e("s_waitcnt lgkmcnt(0)\ns_barrier")
                if w == 0:
                    for i, (s_, h) in enumerate(((0, 0), (1, 0), (0, 1), (1, 1), (2, 0), (3, 0), (2, 1), (3, 1))):
                        a.e(f"ds_read_b128 {q4(T+4*i)}, v12 offset:{1152*s_ + 16*h}")
                    a.e("s_mov_b64 vcc, s[50:51]\ns_waitcnt lgkmcnt(6)")
                    pka(T, T, T + 4)
                    a.e("s_waitcnt lgkmcnt(4)")
                    pka(T + 8, T + 8, T + 12)
                    a.e("s_waitcnt lgkmcnt(3)")
                    pka(T, T, T + 16)
                    a.e("s_waitcnt lgkmcnt(2)")
                    pka(T, T, T + 20)
                    a.e("s_waitcnt lgkmcnt(1)")
                    pka(T + 8, T + 8, T + 24)
                    a.e(f"v_cvt_pk_bf16_f32 v{XQ}, v{T}, v{T+1}\nv_cvt_pk_bf16_f32 v{XQ+1}, v{T+2}, v{T+3}\ns_waitcnt lgkmcnt(0)")
                    pka(T + 8, T + 8, T + 28)
                    a.e(f"""
                    v_cvt_pk_bf16_f32 v{XQ+2}, v{T+8}, v{T+9}
                    v_cvt_pk_bf16_f32 v{XQ+3}, v{T+10}, v{T+11}
                    s_nop 1
                    v_mfma_f32_16x16x32_bf16 {q4(QH)}, {q4(KX+16)}, {q4(XQ)}, 0
                    v_mfma_f32_16x16x32_bf16 {q4(S)}, {q4(KX)}, {q4(XQ)}, 0
                    v_mfma_f32_16x16x32_bf16 {q4(SM)}, {q4(XQ)}, {q4(XQ)}, 0
                    ds_write_b128 v11, {q4(XQ)}
                    s_nop 2
                    """)
                    for r in (3, 0, 1, 2): a.e(f"v_cndmask_b32_dpp v{PS+r}, v{QH+r}, v{S+r}, vcc {DPQ}")
                    a.e(f"""
                    v_min_u32 v{PS+3}, {SENT_MIN}, v{PS+3}
                    v_cndmask_b32_dpp v{PS+4}, v{SM+1}, v{SM}, vcc {DPQ}
                    buffer_store_dwordx4 {q4(PS)}, v246, s[8:11], s30 offen{sc}
                    v_min_u32 v{PS+4}, {SENT_MIN}, v{PS+4}
                    buffer_store_dword v{PS+4}, v10, s[8:11], s30 offen{sc}
                    """)
            else:
                a.e("s_waitcnt lgkmcnt(2)\ns_barrier")
                if w >= 2: a.e("s_waitcnt lgkmcnt(0)\ns_barrier")
                for s_ in range(4): a.e(f"ds_read_b64 v[{T+2*s_}:{T+2*s_+1}], v9 offset:{1152*s_}")
                if w < 2: a.e("s_waitcnt lgkmcnt(4)\ns_barrier")
                a.e("s_waitcnt lgkmcnt(2)")
                addn(T, T, T + 2, 2)
                a.e("s_waitcnt lgkmcnt(0)")
                addn(T + 4, T + 4, T + 6, 2)
                addn(T, T, T + 4, 2)
                a.e(f"""
                v_cvt_pk_bf16_f32 v{T}, v{T}, v{T+1}
                v_min_u32 v{T}, {SENT_MIN}, v{T}
                buffer_store_dword v{T}, v10, s[8:11], s30 offen{sc}
                """)
            st(2)
            if w == 3: rearm(1)
            if w == 2 and 'g' in EXP:
                a.e(f"""
                v_mov_b32 v18, s28
                s_mov_b64 exec, 1
                buffer_store_dword v18, v14, s[8:11], 0 offen sc1
                s_mov_b64 exec, -1
                """)
            dm = []
            if w == 1 and 'y' in EXP:
                for i in range(10):
                    dm.append((f"s_mov_b32 m0, {PFL + 1024*i}\ns_nop 0\n" if i % 4 == 0 else "") +
                              f"buffer_load_dwordx4 v15, s[8:11], s{42+(i>>2)} offen offset:{1024*(i&3)} lds")
                a.e(dm.pop(0)); a.e(dm.pop(0))
            def h2loads():
                if PS4:
                    a.e(f"buffer_load_dwordx4 {q4(KM)}, v13, s[8:11], s30 offen sc1")
                    for i in range(3): a.e(f"buffer_load_dwordx4 {q4(KM+4+4*i)}, v{XA+i}, s[8:11], s30 offen sc1")
                else:
                    for c in range(4): a.e(f"buffer_load_dwordx4 {q4(QL+4*c)}, v12, s[8:11], s30 offen offset:{512*c} sc1")
                    for c in range(4): a.e(f"buffer_load_dwordx4 {q4(KM+4*c)}, v13, s[8:11], s30 offen offset:{512*c} sc1")
            while vq:
                if w == 0 and HP == 8 - len(vq): h2loads()
                vs(1)
                if dm: a.e(dm.pop(0))
            if w == 0 and HP == 8: h2loads()
            if w == 1 and 'y' in EXP:
                for i in range(3): a.e(f"s_add_u32 s{42+i}, s{42+i}, {32*8192}")
            if w >= 2 and PS5:
                for s_ in range(4): a.e(f"ds_read_b64 v[{T+2*s_}:{T+2*s_+1}], v9 offset:{1152*s_}")
                a.e("s_waitcnt lgkmcnt(0)")
                addn(T, T, T + 2, 2); addn(T + 4, T + 4, T + 6, 2); addn(T, T, T + 4, 2)
                a.e(f"v_cvt_pk_bf16_f32 v{T}, v{T}, v{T+1}")
            if w >= 2 and 'z' not in EXP and (PS5 or not PS4): a.e(f"ds_write_b32 v11, v{T}")
            def vpart():
                zero(range(AQ, AQ + 8))
                merge(AV)
                if VE: a.e(f"v_cvt_pk_bf16_f32 v{AV+4}, v{AV}, v{AV+1}\nv_cvt_pk_bf16_f32 v{AV+5}, v{AV+2}, v{AV+3}\nds_write2_b32 v255, v{AV+4}, v{AV+5} offset0:0 offset1:64")
                a.e(f"ds_write_b128 v8, {q4(AV)}")
            VL = w == 0 and 'V' in EXP
            if not VL: vpart()
            if w == 0 and PS4:
                Lmf = a.newlabel("mf"); Lre = a.newlabel("re")
                L0 = KM + 4; DX = DPP8 if PS5 else DPQ
                TWO = 'U' in EXP
                def sloads(B=KM):
                    a.e(f"buffer_load_dwordx4 {q4(B)}, v13, s[8:11], s30 offen sc1")
                    for i in range(3): a.e(f"buffer_load_dwordx4 {q4(B+4+4*i)}, v{XA+i}, s[8:11], s30 offen sc1")
                def ssum(B, Lf):
                    n = 4 if TWO else 0; L0 = B + 4
                    a.e(f"""
                    s_waitcnt vmcnt({n+3})
                    v_max3_u32 v18, v{B}, v{B+1}, v{B+2}
                    v_pk_add_f32 v[{SM}:{SM+1}], v[{B}:{B+1}], v[{B+2}:{B+3}]
                    s_waitcnt vmcnt({n+2})
                    v_max3_u32 v18, v18, v{B+3}, v{L0+3}
                    """)
                    pka(S, PS, L0)
                    a.e(f"v_add_f32 v{SM}, v{SM}, v{SM+1}\ns_waitcnt vmcnt({n+1})")
                    pka(S, S, L0 + 4)
                    a.e(f"s_waitcnt vmcnt({n})\nv_max3_u32 v18, v18, v{L0+7}, v{L0+11}")
                    pka(S, S, L0 + 8)
                    a.e(f"""
                    v_cmp_eq_u32 vcc, -1, v18
                    v_max3_f32 v19, v{S}, v{S+1}, v{SM}
                    v_max3_f32 v19, v19, v{S+2}, v{S+3}
                    s_cbranch_vccnz {Lf}
                    """)
                a.e(f"""
                s_cmp_eq_u32 s28, 63
                s_cbranch_scc1 {Lfin}
                {"s_waitcnt vmcnt(0)" if HP == 10 else ""}
                """)
                st(3)
                if HP >= 9: sloads()
                if TWO and HQ == 0: sloads(T)
                a.e("s_waitcnt lgkmcnt(0)\ns_barrier")
                if VE: a.e(f"ds_read_b128 {q4(VM0)}, v15 offset:{RVB}\nds_read_b128 {q4(VM1)}, v15 offset:{RVB+1024}")
                if TWO and HQ == 1: sloads(T)
                if TWO and HQ == 2:
                    zero(range(AK, AK + 16)); sloads(T)
                a.label(Lmf)
                ssum(KM, Lre)
                Lj = a.newlabel("sj"); Lr2 = a.newlabel("re")
                a.label(Lj)
                BC = f"s_barrier\nds_read_b32 v{VM0}, v16\nds_read_b32 v{VM1}, v16 offset:64"
                if VE: BC = "s_nop 1"
                a.e(BC if CP == 0 else "s_nop 0")
                PMX = f"v_cvt_pk_bf16_f32 v{PM+1}, v{E+4}, v{E+5}\nv_pk_mov_b32 v[{PM+2}:{PM+3}], v[{PM}:{PM+1}], v[{PM}:{PM+1}] op_sel:[0,1]" if VE else ""
                st(4)
                def re4():
                    a.label(Lre); sloads()
                    if TWO:
                        if diag: a.e("s_add_u32 s94, s94, 1")
                        ssum(T, Lr2)
                        a.e(f"s_branch {Lj}")
                        a.label(Lr2); sloads(T)
                    if diag: a.e("s_add_u32 s94, s94, 1")
                    a.e(f"""
                    s_add_u32 s62, s62, 1
                    s_cmp_gt_u32 s62, {SPIN}
                    s_cbranch_scc1 {Lend}
                    s_branch {Lmf}
                    """)
                cold.append(re4)
                def pf(d, x): return f"v_pk_fma_f32 v[{d}:{d+1}], v[{x}:{x+1}], v[{SI}:{SI+1}], v[18:19] op_sel_hi:[1,1,0] neg_lo:[0,0,1] neg_hi:[0,0,1]"
                a.e(f"""
                v_max_f32_dpp v18, v19, v19 {DX}
                v_max_f32_dpp v17, v19, v19 {DX}
                {BC if CP == 1 else "s_nop 1"}
                v_permlane16_swap_b32 v18, v17
                v_max_f32 v19, v18, v17
                v_max_f32 v18, v18, v17
                {BC if CP == 2 else "s_nop 1"}
                v_permlane32_swap_b32 v18, v19
                v_max_f32 v18, v18, v19
                v_mul_f32 v18, s45, v18
                v_fma_f32 v{E+4}, v{SM}, s45, -v18
                {pf(E, S)}
                v_exp_f32 v{E+4}, v{E+4}
                {pf(E+2, S+2)}
                v_exp_f32 v{E}, v{E}
                v_mov_b32_dpp v{E+5}, v{E+4} {DX}
                v_cvt_pk_bf16_f32 v{PM}, v{E+4}, v{E+5}
                {PMX}
                v_exp_f32 v{E+1}, v{E+1}
                s_waitcnt lgkmcnt(0)
                v_mfma_f32_16x16x32_bf16 {q4(O0)}, {q4(VM0)}, {q4(PM)}, 0
                v_exp_f32 v{E+2}, v{E+2}
                v_mfma_f32_16x16x32_bf16 {q4(Z)}, {q4(ON1 if VE else ONE)}, {q4(PM)}, 0
                v_exp_f32 v{E+3}, v{E+3}
                v_cvt_pk_bf16_f32 v{P}, v{E}, v{E+1}
                v_cvt_pk_bf16_f32 v{P+1}, v{E+2}, v{E+3}
                v_mfma_f32_16x16x32_bf16 {q4(O1)}, {q4(VM1)}, {q4(PM)}, 0
                v_mov_b32_dpp v{P+2}, v{P} {DX}
                v_mov_b32_dpp v{P+3}, v{P+1} {DX}
                s_nop 1
                v_mfma_f32_16x16x32_bf16 {q4(Z)}, {q4(ONE)}, {q4(P)}, {q4(Z)}
                v_mfma_f32_16x16x32_bf16 {q4(O0)}, {q4(VX)}, {q4(P)}, {q4(O0)}
                v_mfma_f32_16x16x32_bf16 {q4(O1)}, {q4(VX+4)}, {q4(P)}, {q4(O1)}
                s_mov_b64 exec, s[50:51]
                v_rcp_f32 v18, v{Z}
                s_nop 1
                """)
                for r in range(4): a.e(f"v_mul_f32 v{O0+r}, v18, v{O0+r}")
                a.e(f"""
                v_pk_mul_f32 v[{O1}:{O1+1}], v[18:19], v[{O1}:{O1+1}] op_sel_hi:[0,1]
                v_pk_mul_f32 v[{O1+2}:{O1+3}], v[18:19], v[{O1+2}:{O1+3}] op_sel_hi:[0,1]
                v_cvt_pk_bf16_f32 v{OUT}, v{O0}, v{O0+1}
                v_cvt_pk_bf16_f32 v{OUT+3}, v{O1+2}, v{O1+3}
                v_cvt_pk_bf16_f32 v{OUT+1}, v{O0+2}, v{O0+3}
                v_cvt_pk_bf16_f32 v{OUT+2}, v{O1}, v{O1+1}
                v_min_u32 v{OUT+3}, {SENT_MIN}, v{OUT+3}
                buffer_store_dwordx4 {q4(OUT)}, v14, s[8:11], s30 offen{sc}
                s_mov_b64 exec, -1
                """)
                st(5)
                zero(range(AK, AK + 16))
                if 'O' not in EXP: a.e("s_waitcnt vmcnt(0)")
            elif w == 0 and '1' in EXP:
                Lmf = a.newlabel("mf"); Lre = a.newlabel("re"); Lk2 = a.newlabel("mk"); Lrk = a.newlabel("rk"); Lf2 = a.newlabel("f2")
                S1 = QH
                def kloads():
                    for c in range(4): a.e(f"buffer_load_dwordx4 {q4(KM+4*c)}, v13, s[8:11], s30 offen offset:{512*c} sc1")
                def qkloads():
                    for c in range(4): a.e(f"buffer_load_dwordx4 {q4(QL+4*c)}, v12, s[8:11], s30 offen offset:{512*c} sc1")
                    kloads()
                def chk(g, first):
                    if first: a.e(f"v_max3_u32 v18, v{g}, v{g+1}, v{g+2}\nv_max_u32 v18, v18, v{g+3}")
                    else: a.e(f"v_max3_u32 v18, v18, v{g}, v{g+1}\nv_max3_u32 v18, v18, v{g+2}, v{g+3}")
                def mf(d, x, y, first): a.e(f"v_mfma_f32_16x16x32_bf16 {q4(d)}, {q4(x)}, {q4(y)}, {'0' if first else q4(d)}")
                def sel(r): a.e(f"v_cndmask_b32 v{S+r}, v{S1+r}, v{S+r}, s[48:49]")
                a.e(f"""
                s_cmp_eq_u32 s28, 63
                s_cbranch_scc1 {Lf2 if VL else Lfin}
                {"s_waitcnt vmcnt(0)" if HP == 10 else ""}
                """)
                st(3)
                if HP >= 9: qkloads()
                if VL:
                    vpart()
                    def f2():
                        a.label(Lf2); vpart(); a.e(f"s_branch {Lfin}")
                    cold.append(f2)
                a.e("s_waitcnt lgkmcnt(0)\ns_barrier")
                a.label(Lmf)
                a.e("s_waitcnt vmcnt(7)")
                for i in range(12):
                    if i < 8: mf(S1 if i & 1 else S, KX + 16*(i & 1) + 4*(i >> 1), QL + 4*(i >> 1), i < 2)
                    else: mf(SM, KM + 4*(i-8), QL + 4*(i-8), i == 8)
                    if 1 <= i <= 3: a.e(f"s_waitcnt vmcnt({7-i})")
                    if i <= 3: chk(QL + 4*i, i == 0)
                    if i == 4 or i == 9: a.e("v_cmp_eq_u32 vcc, -1, v18")
                    if i == 5: a.e(f"s_cbranch_vccnz {Lre}")
                    if i == 10: a.e(f"s_cbranch_vccnz {Lrk}")
                    if 5 <= i <= 8:
                        a.e(f"s_waitcnt vmcnt({8-i})")
                        chk(KM + 4*(i-5), i == 5)
                    if i == 10: sel(0); sel(1)
                a.label(Lk2)
                sel(2); sel(3)
                a.e(f"""
                v_max3_f32 v19, v{S}, v{S+1}, v{S+2}
                v_max_f32 v19, v19, v{S+3}
                s_barrier
                ds_read_b32 v{VM0}, v16
                ds_read_b32 v{VM1}, v16 offset:64
                v_max_f32_dpp v19, v19, v19 {DPP8}
                """)
                st(4)
                def cnt():
                    if diag: a.e("s_add_u32 s94, s94, 1")
                    a.e(f"""
                    s_add_u32 s62, s62, 1
                    s_cmp_gt_u32 s62, {SPIN}
                    s_cbranch_scc1 {Lend}
                    """)
                def re1():
                    a.label(Lre); qkloads(); cnt(); a.e(f"s_branch {Lmf}")
                def re2():
                    a.label(Lrk)
                    a.nop(4)
                    kloads(); cnt()
                    for c in range(4):
                        a.e(f"s_waitcnt vmcnt({3-c})")
                        mf(SM, KM + 4*c, QL + 4*c, c == 0)
                        chk(KM + 4*c, c == 0)
                    a.e(f"v_cmp_eq_u32 vcc, -1, v18\ns_cbranch_vccnz {Lrk}")
                    sel(0); sel(1)
                    a.e(f"s_branch {Lk2}")
                cold.append(re1); cold.append(re2)
                def pf(d, x): return f"v_pk_fma_f32 v[{d}:{d+1}], v[{x}:{x+1}], v[{SI}:{SI+1}], v[18:19] op_sel_hi:[1,1,0] neg_lo:[0,0,1] neg_hi:[0,0,1]"
                a.e(f"""
                v_max3_f32 v18, v19, v{SM}, v{SM+1}
                v_max3_f32 v17, v19, v{SM}, v{SM+1}
                s_nop 1
                v_permlane16_swap_b32 v18, v17
                v_max_f32 v19, v18, v17
                v_max_f32 v18, v18, v17
                s_nop 1
                v_permlane32_swap_b32 v18, v19
                v_max_f32 v18, v18, v19
                v_mul_f32 v18, s45, v18
                {pf(E+4, SM)}
                {pf(E, S)}
                {pf(E+2, S+2)}
                v_exp_f32 v{E+4}, v{E+4}
                v_exp_f32 v{E+5}, v{E+5}
                v_exp_f32 v{E}, v{E}
                v_cvt_pk_bf16_f32 v{PM}, v{E+4}, v{E+5}
                v_exp_f32 v{E+1}, v{E+1}
                v_exp_f32 v{E+2}, v{E+2}
                v_mfma_f32_16x16x32_bf16 {q4(Z)}, {q4(ONE)}, {q4(PM)}, 0
                v_exp_f32 v{E+3}, v{E+3}
                s_waitcnt lgkmcnt(0)
                v_mfma_f32_16x16x32_bf16 {q4(O0)}, {q4(VM0)}, {q4(PM)}, 0
                v_cvt_pk_bf16_f32 v{P}, v{E}, v{E+1}
                v_cvt_pk_bf16_f32 v{P+1}, v{E+2}, v{E+3}
                v_mfma_f32_16x16x32_bf16 {q4(O1)}, {q4(VM1)}, {q4(PM)}, 0
                v_mov_b32_dpp v{P+2}, v{P} {DPP8}
                v_mov_b32_dpp v{P+3}, v{P+1} {DPP8}
                s_nop 1
                v_mfma_f32_16x16x32_bf16 {q4(Z)}, {q4(ONE)}, {q4(P)}, {q4(Z)}
                v_mfma_f32_16x16x32_bf16 {q4(O0)}, {q4(VX)}, {q4(P)}, {q4(O0)}
                v_mfma_f32_16x16x32_bf16 {q4(O1)}, {q4(VX+4)}, {q4(P)}, {q4(O1)}
                s_mov_b64 exec, s[48:49]
                v_rcp_f32 v18, v{Z}
                s_nop 1
                """)
                for r in range(4): a.e(f"v_mul_f32 v{O0+r}, v18, v{O0+r}")
                a.e(f"""
                v_pk_mul_f32 v[{O1}:{O1+1}], v[18:19], v[{O1}:{O1+1}] op_sel_hi:[0,1]
                v_pk_mul_f32 v[{O1+2}:{O1+3}], v[18:19], v[{O1+2}:{O1+3}] op_sel_hi:[0,1]
                v_cvt_pk_bf16_f32 v{OUT}, v{O0}, v{O0+1}
                v_cvt_pk_bf16_f32 v{OUT+3}, v{O1+2}, v{O1+3}
                v_cvt_pk_bf16_f32 v{OUT+1}, v{O0+2}, v{O0+3}
                v_cvt_pk_bf16_f32 v{OUT+2}, v{O1}, v{O1+1}
                v_min_u32 v{OUT+3}, {SENT_MIN}, v{OUT+3}
                buffer_store_dwordx4 {q4(OUT)}, v14, s[8:11], s30 offen{sc}
                s_mov_b64 exec, -1
                """)
                st(5)
                zero(range(AK, AK + 16))
                if 'O' not in EXP: a.e("s_waitcnt vmcnt(0)")
            elif w == 0:
                Lmf = a.newlabel("mf"); Lre = a.newlabel("re"); Lmk = a.newlabel("mk"); Lrk = a.newlabel("rk")
                def kloads():
                    for c in range(4): a.e(f"buffer_load_dwordx4 {q4(KM+4*c)}, v13, s[8:11], s30 offen offset:{512*c} sc1")
                def qkloads():
                    a.e("s_mov_b64 exec, s[48:49]")
                    for c in range(4): a.e(f"buffer_load_dwordx4 {q4(QL+4*c)}, v12, s[8:11], s30 offen offset:{512*c} sc1")
                    a.e("s_mov_b64 exec, s[50:51]")
                    for c in range(4): a.e(f"buffer_load_dwordx4 {q4(QH+4*c)}, v12, s[8:11], s30 offen offset:{512*c} sc1")
                    a.e("s_mov_b64 exec, -1")
                    kloads()
                a.e(f"""
                s_cmp_eq_u32 s28, 63
                s_cbranch_scc1 {Lfin}
                s_waitcnt vmcnt(0)
                """)
                st(3)
                qkloads()
                a.e("s_waitcnt lgkmcnt(0)\ns_barrier")
                a.label(Lmf)
                for i in range(12):
                    if i == 8: a.label(Lmk)
                    a.e(f"s_waitcnt vmcnt({11-i})")
                    c = i & 3
                    if i < 8:
                        a.e(f"v_mfma_f32_16x16x32_bf16 {q4(S)}, {q4(KX+4*i)}, {q4((QL if i < 4 else QH)+4*c)}, {'0' if i == 0 else q4(S)}")
                    else:
                        a.e(f"v_mfma_f32_16x16x32_bf16 {q4(SM)}, {q4(KM+4*c)}, {q4(QL+4*c)}, {q4(SI) if i == 8 else q4(SM)}")
                    g = QL + 4 * c if i < 4 else KM + 4 * c
                    if i == 0 or i == 8:
                        a.e(f"v_max3_u32 v18, v{g}, v{g+1}, v{g+2}\nv_max_u32 v18, v18, v{g+3}")
                    elif i < 4 or i >= 8:
                        a.e(f"v_max3_u32 v18, v18, v{g}, v{g+1}\nv_max3_u32 v18, v18, v{g+2}, v{g+3}")
                    if i == 4: a.e("v_cmp_eq_u32 vcc, -1, v18")
                    if i == 5: a.e(f"s_cbranch_vccnz {Lre}")
                a.e(f"""
                v_cmp_eq_u32 vcc, -1, v18
                v_max3_f32 v19, v{S}, v{S+1}, v{S+2}
                s_cbranch_vccnz {Lrk}
                s_barrier
                ds_read_b32 v{VM0}, v16
                ds_read_b32 v{VM1}, v16 offset:64
                """)
                st(4)
                def retry(Lre, Lmf, loads):
                    a.label(Lre)
                    loads()
                    if diag: a.e("s_add_u32 s94, s94, 1")
                    a.e(f"""
                    s_add_u32 s62, s62, 1
                    s_cmp_gt_u32 s62, {SPIN}
                    s_cbranch_scc1 {Lend}
                    s_branch {Lmf}
                    """)
                cold.append(lambda: retry(Lre, Lmf, qkloads))
                cold.append(lambda: retry(Lrk, Lmk, kloads))
                NP = [pk(2*i) + "\n" + pk(2*i+1) if NL else "s_nop 1" for i in range(4)]
                a.e(f"""
                v_max3_f32 v18, v{S+3}, v{SM}, v{SM+1}
                v_max_f32 v18, v18, v19
                {NP[0]}
                v_max_f32_dpp v19, v18, v18 {DPP8}
                v_max_f32_dpp v17, v18, v18 {DPP8}
                {NP[1]}
                v_permlane16_swap_b32 v19, v17
                v_max_f32 v18, v19, v17
                v_max_f32 v19, v19, v17
                {NP[2]}
                v_permlane32_swap_b32 v18, v19
                v_max_f32 v18, v18, v19
                v_mul_f32 v18, s45, v18
                """)
                src = [S, S + 1, S + 2, S + 3, SM, SM + 1]
                for i in range(6): a.e(f"v_fma_f32 v{E+i}, v{src[i]}, s45, -v18")
                for i in range(6): a.e(f"v_exp_f32 v{E+i}, v{E+i}")
                a.e(f"""
                v_cvt_pk_bf16_f32 v{P}, v{E}, v{E+1}
                v_cvt_pk_bf16_f32 v{P+1}, v{E+2}, v{E+3}
                v_cvt_pk_bf16_f32 v{PM}, v{E+4}, v{E+5}
                s_waitcnt lgkmcnt(0)
                v_mov_b32_dpp v{P+2}, v{P} {DPP8}
                v_mov_b32_dpp v{P+3}, v{P+1} {DPP8}
                v_mfma_f32_16x16x32_bf16 {q4(Z)}, {q4(ONE)}, {q4(PM)}, 0
                v_mfma_f32_16x16x32_bf16 {q4(Z)}, {q4(ONE)}, {q4(P)}, {q4(Z)}
                v_mfma_f32_16x16x32_bf16 {q4(O0)}, {q4(VM0)}, {q4(PM)}, 0
                v_mfma_f32_16x16x32_bf16 {q4(O0)}, {q4(VX)}, {q4(P)}, {q4(O0)}
                v_mfma_f32_16x16x32_bf16 {q4(O1)}, {q4(VM1)}, {q4(PM)}, 0
                {NP[3] if NL else ""}
                v_rcp_f32 v18, v{Z}
                v_mfma_f32_16x16x32_bf16 {q4(O1)}, {q4(VX+4)}, {q4(P)}, {q4(O1)}
                s_mov_b64 exec, s[48:49]
                """)
                for O in (O0, O1):
                    for r in range(4): a.e(f"v_mul_f32 v{O+r}, v18, v{O+r}")
                    o = OUT + (0 if O == O0 else 2)
                    a.e(f"""
                    v_cvt_pk_bf16_f32 v{o}, v{O}, v{O+1}
                    v_cvt_pk_bf16_f32 v{o+1}, v{O+2}, v{O+3}
                    """)
                    a.e("s_nop 1" if O == O0 else f"v_min_u32 v{o+1}, {SENT_MIN}, v{o+1}")
                a.e(f"""
                buffer_store_dwordx4 {q4(OUT)}, v14, s[8:11], s30 offen{sc}
                s_mov_b64 exec, -1
                """)
                st(5)
                if NL: prefetch(False)
                zero(range(AK, AK + 16))
                a.e(f"s_waitcnt vmcnt({2 if NL else 0})")
            elif 'z' in EXP:
                FIN = f"s_cmp_eq_u32 s28, 63\ns_cbranch_scc1 {Lfin}"
                a.e("s_waitcnt lgkmcnt(0)\ns_barrier")
                if w >= 2: a.e(f"buffer_store_dword v{T}, v10, s[8:11], s41 offen sc1")
                if w == 1:
                    a.e(FIN)
                    for i in range(10):
                        if i % 4 == 0: a.e(f"s_mov_b32 m0, {PFL + 1024*i}\ns_nop 0")
                        a.e(f"buffer_load_dwordx4 v15, s[8:11], s{42+(i>>2)} offen offset:{1024*(i&3)} lds")
                    for i in range(3): a.e(f"s_add_u32 s{42+i}, s{42+i}, {32*8192}")
                    a.e("""
                    s_xor_b32 s38, s34, 0x4000
                    s_xor_b32 s39, s34, 0x1000
                    s_xor_b32 s40, s34, 0x5000
                    """)
                if w == 2:
                    a.e(FIN)
                    a.e(f"""
                    v_mov_b32 v18, s28
                    s_mov_b64 exec, 1
                    buffer_store_dword v18, v14, s[8:11], 0 offen sc1
                    s_mov_b64 exec, -1
                    """)
                if w == 3:
                    for t in range(2):
                        for s_ in range(4):
                            r = T + 2 + 2 * (4 * t + s_)
                            a.e(f"ds_read_b64 v[{r}:{r+1}], v12 offset:{1024*s_ + 64*t}")
                    for t in range(2):
                        r = T + 2 + 8 * t
                        a.e(f"""
                        s_waitcnt lgkmcnt({4-4*t})
                        v_add_f32 v{r}, v{r}, v{r+2}
                        v_add_f32 v{r+1}, v{r+1}, v{r+3}
                        v_add_f32 v{r+4}, v{r+4}, v{r+6}
                        v_add_f32 v{r+5}, v{r+5}, v{r+7}
                        v_add_f32 v{r}, v{r}, v{r+4}
                        v_add_f32 v{r+1}, v{r+1}, v{r+5}
                        v_cvt_pk_bf16_f32 v{r}, v{r}, v{r+1}
                        """)
                    a.e(f"""
                    ds_write_b32 v14, v{T+2}
                    ds_write_b32 v14, v{T+10} offset:64
                    buffer_store_dword v{T+2}, v16, s[8:11], s41 offen sc1
                    buffer_store_dword v{T+10}, v16, s[8:11], s41 offen offset:64 sc1
                    {FIN}
                    buffer_store_dwordx4 v[20:23], v15, s[8:11], s36 offen sc1
                    buffer_store_dwordx4 v[20:23], v244, s[8:11], s32 offen{sc}
                    buffer_store_dwordx4 v[20:23], v245, s[8:11], s32 offen{sc}
                    s_waitcnt lgkmcnt(0)
                    """)
                warm(w, True)
                zero(range(AK, AK + 16))
                a.e("s_barrier")
                if w == 3:
                    a.e(f"s_add_u32 s5, s28, 4\ns_min_u32 s5, s5, 64")
                    wait_kv("s5")
            else:
                a.e("s_waitcnt lgkmcnt(0)\ns_barrier")
                if w == 1 and 'l' in EXP: warm(w, True)
                if w == 3:
                    for t in range(2):
                        for s_ in range(4):
                            r = T + 2 * (4 * t + s_)
                            a.e(f"ds_read_b64 v[{r}:{r+1}], v12 offset:{1024*s_ + 64*t}")
                    for t in range(2):
                        r = T + 8 * t
                        a.e(f"""
                        s_waitcnt lgkmcnt({4-4*t})
                        v_add_f32 v{r}, v{r}, v{r+2}
                        v_add_f32 v{r+1}, v{r+1}, v{r+3}
                        v_add_f32 v{r+4}, v{r+4}, v{r+6}
                        v_add_f32 v{r+5}, v{r+5}, v{r+7}
                        v_add_f32 v{r}, v{r}, v{r+4}
                        v_add_f32 v{r+1}, v{r+1}, v{r+5}
                        v_cvt_pk_bf16_f32 v{r}, v{r}, v{r+1}
                        """)
                    a.e(f"""
                    ds_write_b32 v14, v{T}
                    ds_write_b32 v14, v{T+8} offset:64
                    s_waitcnt lgkmcnt(0)
                    """)
                    if 'l' in EXP: warm(w, True)
                if not VE: a.e("s_barrier")
                if w == 2 and not VE: a.e(f"ds_read_b128 {q4(T)}, v12")
                a.e(f"""
                s_cmp_eq_u32 s28, 63
                s_cbranch_scc1 {Lfin}
                """)
                if w == 1:
                    a.e("""
                    s_xor_b32 s38, s34, 0x4000
                    s_xor_b32 s39, s34, 0x1000
                    s_xor_b32 s40, s34, 0x5000
                    """)
                    if 'm' in EXP: warm(1)
                if w == 2 and 'e' in EXP:
                    a.e("s_waitcnt lgkmcnt(0)")
                    if KP == 0: a.e(KVST)
                if w == 2 and '3' in EXP:
                    a.e(f"""
                    v_mov_b32 v18, s28
                    s_mov_b64 exec, 1
                    buffer_store_dword v18, v14, s[8:11], 0 offen sc1
                    s_mov_b64 exec, -1
                    """)
                if w == 3: rearm(2)
                if w == 3:
                    a.e("s_add_u32 s5, s28, 2" if 'w' in EXP else f"s_add_u32 s5, s28, {4 if 'n' in EXP else 3}\ns_min_u32 s5, s5, 64")
                    wait_kv("s5")
                if 'n' in EXP and ('l' not in EXP or w == 2): warm(w, True)
                if 'l' in EXP and w == (1 if 'u' in EXP else 2) and 'y' not in EXP:
                    for i in range(10):
                        if i % 4 == 0: a.e(f"s_mov_b32 m0, {PFL + 1024*i}\ns_nop 0")
                        a.e(f"buffer_load_dwordx4 v15, s[8:11], s{42+(i>>2)} offen offset:{1024*(i&3)}{' sc1' if 'S' in EXP or 'T' in EXP else ''} lds")
                    for i in range(3): a.e(f"s_add_u32 s{42+i}, s{42+i}, {0 if 'S' in EXP else 8192 if 'T' in EXP else 32*8192}")
                zero(range(AK, AK + 16))
            a.e("s_barrier")
            st(6)
            if w == 2 and VE: a.e(f"ds_read_b128 {q4(T)}, v12")
            if 'M' in EXP: mgather(1, 4)
            else: gather(4, tiles_c, lambda p: [], 1, 93, 'Y' in EXP)
            st(7)
            if w == 2 and KP == 1: a.e("s_waitcnt lgkmcnt(0)\n" + KVST)
            if w == 3: rearm(3)
            if w == 0 and PF == 3: prefetch()
            else: a.nop((7 if 'Y' in EXP or 'M' in EXP else 8) - (w == 2 and KP == 1) - (w == 3) * ((RP == 3) + 3 * (RL == 3)))
            merge(AC); write36(7, AC)
            if w == 0 and PF == 4: prefetch()
            if w == 2 and KP == 4: a.e(KVST)
            if w == 3: rearm(4)
            a.e("s_waitcnt lgkmcnt(0)\ns_barrier")
            st(8)
            if w == 1:
                Lpl = a.newlabel("pl"); Lpr = a.newlabel("pr")
                for s_ in range(4): a.e(f"ds_read_b128 {q4(T+4*s_)}, v12 offset:{1152*s_}")
                a.e("s_waitcnt lgkmcnt(2)")
                addn(T, T, T + 4, 4)
                a.e("s_waitcnt lgkmcnt(0)")
                addn(T + 8, T + 8, T + 12, 4)
                addn(T, T, T + 8, 4)
                a.e(f"v_min_u32 v{T+3}, {SENT_MIN}, v{T+3}")
                a.e(f"buffer_store_dwordx2 v[{T+2}:{T+3}], v13, s[8:11], s34 offen sc1" if 'J' in EXP else f"buffer_store_dwordx4 {q4(T)}, v13, s[8:11], s34 offen sc1")
                st(9)
                if 'b' in EXP: a.e("s_barrier")
                zero(range(AC, AC + 8))
                a.e(f"s_sleep {XS}" if XS else "s_waitcnt vmcnt(0)")
                st(10)
                a.label(Lpl)
                for i in range(3): a.e(f"buffer_load_dwordx2 v[{T+6+4*i}:{T+7+4*i}], v13, s[8:11], s{38+i} offen sc1" if 'J' in EXP else f"buffer_load_dwordx4 {q4(T+4+4*i)}, v13, s[8:11], s{38+i} offen sc1")
                a.e("s_waitcnt vmcnt(2)")
                addn(T + 16, T, T + 4, 4)
                a.e(f"""
                s_waitcnt vmcnt(0)
                v_max3_u32 v18, v{T+7}, v{T+11}, v{T+15}
                v_cmp_eq_u32 vcc, -1, v18
                """)
                addn(T + 8, T + 8, T + 12, 4)
                addn(T + 16, T + 16, T + 8, 4)
                a.e(f"""
                v_cvt_pk_bf16_f32 v{T+20}, v{T+16}, v{T+17}
                v_cvt_pk_bf16_f32 v{T+21}, v{T+18}, v{T+19}
                v_min_u32 v{T+21}, {SENT_MIN}, v{T+21}
                s_cbranch_vccnz {Lpr}
                buffer_store_dwordx2 v[{T+20}:{T+21}], v14, s[8:11], s31 offen{sc}
                """)
                st(11)
                if 'o' in EXP: a.e("s_barrier")
                def pretry(Lpr=Lpr, Lpl=Lpl):
                    a.label(Lpr)
                    if diag: a.e("s_add_u32 s94, s94, 1")
                    a.e(f"""
                    s_add_u32 s62, s62, 1
                    s_cmp_gt_u32 s62, {SPIN}
                    s_cbranch_scc1 {Lend}
                    s_branch {Lpl}
                    """)
                cold.append(pretry)
                stflush()
                rotate(w)
            else:
                if 'o' in EXP or 'b' in EXP:
                    if 'w' not in EXP: warm(w)
                    zero(range(AC, AC + 8))
                    a.e("s_barrier")
                if w == 0 and 'f' not in EXP and 'n' not in EXP and PF == 0: prefetch()
                if w == 0 and 'l' in EXP:
                    for i in range(10): a.e(f"ds_read_b128 {q4(KX + 4*i)}, v15 offset:{PFL + 1024*i}")
                if w == 2 and ('z' in EXP or '3' in EXP):
                    Lnl = a.newlabel("nl")
                    a.e(f"""
                    s_cmp_lt_u32 s28, {ZE}
                    s_cbranch_scc1 {Lnl}
                    v_add_u32 v18, s28, v21
                    v_add_u32 v18, 2, v18
                    s_mov_b64 exec, 1
                    buffer_store_dword v18, v14, s[8:11], 0 offen sc1
                    s_mov_b64 exec, -1
                    """)
                    a.label(Lnl)
                elif w == 2:
                    if 'e' in EXP:
                        Lnl = a.newlabel("nl")
                        if KP == 2: a.e(KVST)
                        if 'F' in EXP:
                            a.e(f"""
                            s_cmp_lt_u32 s28, {FZ}
                            s_cselect_b32 s4, {FM}, 0
                            s_andn2_b32 s4, s4, s28
                            s_cbranch_scc1 {Lnl}
                            """)
                        a.e(f"""
                        v_mov_b32 v18, s28
                        v_add_u32 v18, 1, v18
                        s_mov_b64 exec, 1
                        s_waitcnt vmcnt(0)
                        buffer_store_dword v18, v14, s[8:11], 0 offen sc1
                        s_mov_b64 exec, -1
                        """)
                        a.label(Lnl)
                    elif 'g' in EXP:
                        a.e(f"buffer_store_dwordx4 {q4(T)}, v244, s[8:11], s41 offen sc1")
                    elif 'p' not in EXP:
                        Lnl = a.newlabel("nl")
                        a.e(f"""
                        buffer_store_dwordx4 {q4(T)}, v244, s[8:11], s41 offen sc1
                        v_mov_b32 v18, s28
                        s_mov_b64 exec, 1
                        buffer_store_dword v18, v14, s[8:11], 0 offen sc1
                        s_cmp_lt_u32 s28, {0 if 'a' in EXP else 59}
                        s_cbranch_scc1 {Lnl}
                        s_waitcnt vmcnt(0)
                        v_add_u32 v18, 1, v18
                        buffer_store_dword v18, v14, s[8:11], 0 offen sc1
                        """)
                        a.label(Lnl)
                        a.e("s_mov_b64 exec, -1")
                if w == 3 and 'z' not in EXP: rearm(0)
                if w == 3:
                    a.e(f"""
                    s_add_u32 s5, s28, {3 if 'w' in EXP else 5 if 'n' in EXP else 4}
                    s_min_u32 s5, s5, 64
                    """)
                    wait_kv("s5", True)
                stflush()
                if 'o' not in EXP and 'b' not in EXP:
                    if 'w' not in EXP: warm(w)
                    zero(range(AC, AC + 8))
                rotate(w)
            a.e(f"s_branch {Lstep}")
            a.label(Lfin)
            if w == 0: a.e("s_waitcnt lgkmcnt(0)\ns_barrier\ns_barrier")
            if w and VE: a.e("s_barrier")
            if w == 2 and VE: a.e(f"ds_read_b128 {q4(T)}, v12")
            if w == 1: a.e("s_waitcnt vmcnt(0)")
            if w and 'z' in EXP: a.e("s_waitcnt vmcnt(0)\ns_barrier")
            if w == 2 and 'z' not in EXP:
                a.e(f"""
                s_waitcnt lgkmcnt(0)
                buffer_store_dwordx4 {q4(T)}, v244, s[8:11], s41 offen sc1
                s_waitcnt vmcnt(0)
                """)
            if w == 2:
                a.e(f"""
                v_mov_b32 v18, 64
                s_mov_b64 exec, 1
                buffer_store_dword v18, v14, s[8:11], 0 offen sc1
                s_mov_b64 exec, -1
                """)
            if w == 3 and 'B' in EXP:
                Lnb = a.newlabel("nb")
                a.e(f"s_cmp_lg_u32 s26, 0\ns_cbranch_scc1 {Lnb}\nbuffer_wbl2 sc1\ns_waitcnt vmcnt(0)")
                a.label(Lnb)
            if diag:
                rts(7)
                a.e(f"""
                v_writelane_b32 v250, s47, 8
                s_mov_b64 exec, 0xffff
                ds_write_b32 v253, v250
                s_mov_b64 exec, -1
                v_lshlrev_b32 v253, 4, v1
                """)
                for i in range(4):
                    a.e(f"""
                    s_waitcnt lgkmcnt(0)
                    ds_read_b128 v[{100+4*i}:{103+4*i}], v253 offset:{32768 + w*4096 + 1024*i}
                    s_waitcnt lgkmcnt(0)
                    buffer_store_dwordx4 v[{100+4*i}:{103+4*i}], v252, s[8:11], 0 offen offset:{1024*i}
                    """)
            a.e("s_endpgm")
            for f in cold: f()
            cold.clear()
        if 'M' in EXP:
            machine(Lm[0], 3, lambda p: tiles_q(p) + tiles_k(p), 2, 92)
            machine(Lm[1], 4, tiles_c, 1, 93)

    Lslow = a.newlabel("slowv")
    a.e(f"""
    s_cmp_lg_u32 s27, 0
    s_cbranch_scc1 {Lslow}
    """)
    variant("")
    a.label(Lslow)
    variant(" sc1")
```

```python
import sys
from common import *
import rec5

LDS = 163840
ROLE_LDS = 163832

def gen_mega(a, name="mega_kernel", diag=False, nobg=False, norec=False, IL='prio', EXP='', XS=5, slow=False, PH=1, WPOL='nt', AW=0, CP=2, RL=0, RP=0, KP=0, PF=0, lite=False, FZ=52, FM=3, HP=10, HQ=0, VA=0, VB=0, VC=0, PL=0, PPOL='', CJ=0, PB=0, MO='0123', **kw):
    if lite: diag = True
    kernel_header(a, name)
    Lend = a.newlabel("mg_end"); Lbg = a.newlabel("mg_bg"); Lroleset = a.newlabel("mg_role")
    a.e(f"""
    s_cmp_ge_u32 s2, 256
    s_cbranch_scc1 {Lend}
    s_load_dwordx4 s[52:55], s[0:1], {KA['dbg']}
    {"s_memrealtime s[92:93]" if diag else ""}
    s_getreg_b32 s3, hwreg(HW_REG_XCC_ID)
    v_and_b32 v1, 63, v0
    v_lshrrev_b32 v4, 6, v0
    s_and_b32 s3, s3, 7
    v_readfirstlane_b32 s24, v4
    s_waitcnt lgkmcnt(0)
    """)
    srd(a, 8, 54, WS_SIZE)
    srd(a, 20, 52, 256)
    Lnoat = a.newlabel("noat"); Lnf = a.newlabel("nf"); Lnw = a.newlabel("nw"); Lnr = a.newlabel("nr")
    a.e(f"""
    s_mov_b32 s100, s54
    v_mov_b32 v7, {ROLE_LDS}
    s_cmp_lg_u32 s24, 0
    s_cbranch_scc1 {Lnoat}
    s_mov_b64 exec, 1
    v_mov_b32 v5, 1
    s_lshl_b32 s4, s3, 3
    s_mov_b32 s6, 0x60402000
    s_mov_b32 s7, 0xe4e08480
    s_lshr_b64 s[6:7], s[6:7], s4
    s_and_b32 s4, s6, 0xff
    v_mov_b32 v6, s4
    buffer_atomic_add v5, v6, s[20:23], 0 offen sc0 sc1
    s_mov_b64 exec, -1
    """)
    a.label(Lnoat)
    a.e(f"""
    s_sub_u32 s101, 0, s100
    s_and_b32 s101, s101, 0x1fffff
    s_add_u32 s101, s101, {WS_PART}
    s_lshl_b32 s4, s2, 2
    s_add_u32 s4, s4, s24           ; piece
    s_lshl_b32 s5, s4, 11
    s_add_u32 s5, s5, s101
    v_lshlrev_b32 v8, 4, v1
    v_mov_b32 v20, -1
    v_mov_b32 v21, -1
    v_mov_b32 v22, -1
    v_mov_b32 v23, -1
    s_lshl_b32 s4, s4, 10
    s_add_u32 s4, s4, {WS_RING}
    buffer_store_dwordx4 v[20:23], v8, s[8:11], s5 offen sc1
    buffer_store_dwordx4 v[20:23], v8, s[8:11], s5 offen offset:1024 sc1
    buffer_store_dwordx4 v[20:23], v8, s[8:11], s4 offen sc1
    s_cmp_eq_u32 s24, 2
    s_cselect_b32 s6, s2, -1
    s_cmp_ge_u32 s6, {(4*SLOT - 0x100000) >> 10}
    s_cbranch_scc1 {Lnr}
    s_lshl_b32 s6, s6, 10
    s_add_u32 s6, s6, {WS_RING + 0x100000}
    buffer_store_dwordx4 v[20:23], v8, s[8:11], s6 offen sc1
    """)
    a.label(Lnr)
    a.e(f"""
    s_cmp_eq_u32 s24, 3
    s_cselect_b32 s6, s2, -1
    s_cmp_ge_u32 s6, {FL_KB}
    s_cbranch_scc1 {Lnf}
    v_mov_b32 v24, 0
    v_mov_b32 v25, 0
    v_mov_b32 v26, 0
    v_mov_b32 v27, 0
    s_lshl_b32 s6, s6, 10
    s_add_u32 s6, s6, {WS_FLAG}
    buffer_store_dwordx4 v[24:27], v8, s[8:11], s6 offen sc1
    """)
    a.label(Lnf)
    a.e(f"""
    s_cmp_lg_u32 s24, 0
    s_cbranch_scc1 {Lnw}
    s_mov_b64 exec, 1
    s_waitcnt vmcnt(3)
    ds_write_b32 v7, v5
    s_waitcnt lgkmcnt(0)
    s_mov_b64 exec, -1
    """)
    a.label(Lnw)
    def arm_signal():
        L = a.newlabel("ns")
        a.e(f"""
        s_cmp_lg_u32 s24, 1
        s_cbranch_scc1 {L}
        s_mov_b64 exec, 1
        v_mov_b32 v238, s3
        v_mov_b32 v239, 0
        buffer_atomic_add v238, v239, s[20:23], 0 offen offset:{4*C_ARM} sc1
        s_mov_b64 exec, -1
        """)
        a.label(L)
    a.e(f"""
    s_barrier
    ds_read_b32 v5, v7
    s_mov_b32 s25, s3
    s_mov_b32 s27, 0
    s_waitcnt lgkmcnt(0)
    v_readfirstlane_b32 s26, v5
    s_cmp_ge_u32 s26, {0 if slow else 32}
    s_cselect_b32 s3, 0x10001, 1
    s_and_b32 s26, s26, 31
    """)
    a.label(Lroleset)
    def verify_issue():
        a.e("""
        v_or_b32 v239, 32, v1
        v_lshlrev_b32 v239, 2, v239
        buffer_load_dword v238, v239, s[20:23], 0 offen sc1
        """)
    def verify_check():
        Lp = a.newlabel("vp"); Ld = a.newlabel("vd"); La = a.newlabel("va")
        a.e(f"""
        s_cmp_lg_u32 s27, 0
        s_cbranch_scc1 {Ld}
        s_mov_b32 s62, 0
        """)
        a.label(Lp)
        a.e(f"""
        v_readlane_b32 s4, v238, {C_ARM}
        s_and_b32 s5, s4, 0xffff
        s_cmp_ge_u32 s5, 256
        s_cbranch_scc1 {La}
        s_add_u32 s62, s62, 1
        s_cmp_gt_u32 s62, 0x100000
        s_cbranch_scc1 {Lend}
        s_sleep 16
        buffer_load_dword v238, v239, s[20:23], 0 offen sc1
        s_waitcnt vmcnt(0)
        s_branch {Lp}
        """)
        a.label(La)
        a.e(f"""
        s_lshr_b32 s4, s4, 16
        s_cbranch_scc0 {Ld}
        s_lshr_b32 s25, s2, 5
        s_and_b32 s26, s2, 31
        s_mov_b32 s27, 1
        s_waitcnt vmcnt(0) lgkmcnt(0)
        s_barrier
        s_branch {Lroleset}
        """)
        a.label(Ld)
    a.e(f"""
    s_cmp_ge_u32 s25, 4
    s_cbranch_scc1 {Lbg}
    """)
    if norec:
        a.e("s_endpgm")
    else:
        rec5.body_rec(a, Lend, verify_issue, verify_check, diag=diag, nowait=nobg, IL=IL, EXP=EXP, XS=XS, PH=PH, WPOL=WPOL, AW=AW, arm_signal=arm_signal, CP=CP, RL=RL, RP=RP, KP=KP, PF=PF, lite=lite, FZ=FZ, FM=FM, HP=HP, HQ=HQ, VA=VA, VB=VB, VC=VC, PL=PL, PPOL=PPOL, CJ=CJ, PB=PB, MO=MO)
    a.label(Lbg)
    if not nobg:
        import bg3
        bg3.body_bg(a, Lend, verify_issue, verify_check, diag=diag, norec=norec, AW=AW, arm_signal=arm_signal, **kw)
    a.label(Lend)
    a.e("s_endpgm")
    kernel_desc(a, name, 512, 102, 256)

HEADER = open('cdna_kernels/' + NAME + '.s.ref').read().split('; Override launch geometry')[0]

def build(out, **kw):
    a = Asm()
    a.raw(HEADER.rstrip("\n"))
    a.raw(f"; @launch kernel=mega_kernel grid=(256,1,1) block=(256,1,1) lds={LDS}")
    a.raw('.amdgcn_target "amdgcn-amd-amdhsa--gfx950"')
    gen_mega(a, **kw)
    open(out, 'w').write(a.text())

if __name__ == '__main__':
    out = sys.argv[1]
    kw = {}
    for o in sys.argv[2:]:
        if '=' in o:
            k, v = o.split('=')
            try: v = int(v)
            except: pass
            kw[k] = v
        else: kw[o] = True
    if out == 'main': out = 'cdna_kernels/' + NAME + '.s'
    build(out, **kw)
```

```python
from common import *
import abr3 as abr
from sched import It, schedule

SPIN = "0x200000"
def q4(r): return f"v[{r}:{r+3}]"
def a4(r): return f"a[{r}:{r+3}]"

def body_bg(a, Lend, verify_issue, verify_check, diag=False, norec=False, stop=0, noabr=0, XW=3, QS=4, GS=4, QD=2, QM=76, GE='', G2=1, FS=4, GB1=14, GB2=50, GP2=92, GST=0, FD=1, OT=0, FS2=12, GFL=72, arm_signal=None, AW=0, AWS=64, GMAP=1, DLY=0, DLYA=0, OUTF='', OSC=0, AB=0, AWN=1, XP=0, TW=0, TE=62, HK=0, HPOL='', KPOL='nt', QR=0, GD=0, **kw):
    KPOL = KPOL.replace('_', ' ')
    ln = Lane(a)
    def st(cond=None):
        if not diag: return
        L1 = a.newlabel("st"); L2 = a.newlabel("st")
        a.e(f"""
        s_memrealtime s[72:73]
        s_memtime s[74:75]
        s_waitcnt lgkmcnt(0)
        s_lshl_b64 exec, 1, s96
        s_cmp_lt_u32 s96, 64
        s_cbranch_scc0 {L1}
        v_mov_b32 v250, s72
        v_mov_b32 v252, s74
        s_branch {L2}
        """)
        a.label(L1)
        a.e("v_mov_b32 v251, s72\nv_mov_b32 v253, s74")
        a.label(L2)
        a.e("s_add_u32 s96, s96, 1\ns_min_u32 s96, s96, 127\ns_mov_b64 exec, -1")
    def finish():
        if diag:
            st()
            a.e(f"""
            s_lshl_b32 s4, s98, 5
            s_add_u32 s4, s4, s99
            s_lshl_b32 s4, s4, 10
            s_add_u32 s4, s4, {WS_DIAG + 0x400000}
            v_lshlrev_b32 v4, 2, v1
            s_lshl_b32 s5, s24, 17
            s_add_u32 s4, s4, s5
            buffer_store_dword v250, v4, s[8:11], s4 offen
            buffer_store_dword v251, v4, s[8:11], s4 offen offset:256
            buffer_store_dword v252, v4, s[8:11], s4 offen offset:512
            buffer_store_dword v253, v4, s[8:11], s4 offen offset:768
            """)
        a.e("s_endpgm")
    def wait_dbg(idx, target, slp=8):
        L = a.newlabel("wc"); D = a.newlabel("wd")
        a.e("s_mov_b32 s62, 0\nv_mov_b32 v5, 0")
        a.label(L)
        a.e(f"""
        buffer_load_dword v4, v5, s[20:23], 0 offen offset:{4*idx} sc1
        s_add_u32 s62, s62, 1
        s_cmp_gt_u32 s62, {SPIN}
        s_cbranch_scc1 {Lend}
        s_waitcnt vmcnt(0)
        v_readfirstlane_b32 s4, v4
        s_cmp_ge_u32 s4, {target}
        s_cbranch_scc1 {D}
        s_sleep {slp}
        s_branch {L}
        """)
        a.label(D)
    def signal(idx):
        L = a.newlabel("sg")
        a.e(f"""
        s_cmp_lg_u32 s24, 0
        s_cbranch_scc1 {L}
        s_mov_b64 exec, 1
        v_mov_b32 v4, 1
        v_mov_b32 v5, 0
        buffer_atomic_add v4, v5, s[20:23], 0 offen offset:{4*idx} sc1
        s_mov_b64 exec, -1
        """)
        a.label(L)
    def wsetup(stride, base):
        a.e("s_lshl_b32 s6, s24, 14")
        ln.build(240, [(2, 4, stride), (0, 2, 16)], 0, [base])
        ln.build(242, [(4, 2, 512), (2, 2, 64), (0, 2, 16)], 0, ["s6"])
        a.e("v_add_u32 v243, 0x10000, v242")
    def wdma(q, stride):
        for i in range(16):
            a.e(f"""
            s_add_u32 m0, s6, {(q&1)*65536 + i*1024}
            s_mov_b32 s5, {(256*q + 16*i)*stride}
            buffer_load_dwordx4 v240, s[16:19], s5 offen nt lds
            """)
    def wtr(q):
        for k in range(8):
            for t in range(2):
                for h in range(2):
                    r = ((8*q + k)*2 + t)*4 + 2*h
                    a.e(f"ds_read_b64_tr_b16 a[{r}:{r+1}], v{242+(q&1)} offset:{k*2048 + h*256 + 8*t}")
        a.e("s_waitcnt lgkmcnt(0)")
    def wsetup2(base, S=8192):
        a.e(f"""
        s_lshl_b32 s6, s24, 14
        s_mul_i32 s5, s24, {64*S}
        s_add_u32 {base}, {base}, s5
        v_bfe_u32 v2, v1, 4, 1
        v_lshlrev_b32 v2, 2, v2
        v_and_b32 v3, 7, v1
        v_xor_b32 v2, v2, v3
        v_lshlrev_b32 v2, 4, v2
        """)
        ln.build(240, [(3, 2, S), (5, 1, 128)], 0, [base, "v2"])
        a.e("""
        s_lshr_b32 s5, s24, 1
        s_lshl_b32 s5, s5, 9
        v_bfe_u32 v2, v1, 3, 1
        v_xor_b32 v2, s24, v2
        v_and_b32 v2, 1, v2
        v_lshlrev_b32 v2, 6, v2
        """)
        ln.build(242, [(4, 2, 2048), (2, 2, 128), (0, 2, 16)], 0, ["s5", "v2"])
        a.e("v_add_u32 v243, 0x10000, v242")
    def wdma2(q, S=8192, pol='nt'):
        for i in range(16):
            a.e(f"""
            s_add_u32 m0, s6, {(q&1)*65536 + i*1024}
            s_mov_b32 s5, {(256*q + 4*i)*S}
            buffer_load_dwordx4 v240, s[16:19], s5 offen {pol} lds
            """)
    def wtr2(q):
        a.e("s_barrier")
        for k in range(8):
            for t in range(2):
                for h in range(2):
                    r = ((8*q + k)*2 + t)*4 + 2*h
                    a.e(f"ds_read_b64_tr_b16 a[{r}:{r+1}], v{242+(q&1)} offset:{k*8192 + h*1024 + 8*t}")
        a.e("s_waitcnt lgkmcnt(0)\ns_barrier")
    def minred(r, steps):
        for p in ("quad_perm:[1,0,3,2]", "quad_perm:[2,3,0,1]", "row_half_mirror", "row_mirror")[:steps]:
            a.e(f"v_min_u32_dpp v{r}, v{r}, v{r} {p} row_mask:0xf bank_mask:0xf\ns_nop 1")

    Lph2 = a.newlabel("ph2"); Lqkv = a.newlabel("qkv")
    a.e(f"""
    s_lshr_b32 s98, s26, 3
    s_add_u32 s98, s98, 1
    s_and_b32 s98, s98, 3
    s_and_b32 s99, s25, 3
    s_lshl_b32 s99, s99, 3
    s_and_b32 s4, s26, 7
    s_add_u32 s99, s99, s4
    s_mov_b32 s96, 0
    v_and_b32 v1, 63, v0
    v_mov_b32 v250, 0
    v_mov_b32 v251, 0
    """)
    if diag: a.e("v_writelane_b32 v250, s92, 0\ns_mov_b32 s96, 1")
    st()
    def verify():
        verify_issue()
        a.e("s_waitcnt vmcnt(0)")
        verify_check()
    def dly(n):
        Ld = a.newlabel("dly")
        a.label(Ld)
        a.e(f"""
        s_memrealtime s[72:73]
        s_waitcnt lgkmcnt(0)
        s_sub_u32 s72, s72, s92
        s_cmp_lt_u32 s72, {n*100}
        s_cbranch_scc1 {Ld}
        """)
    if DLYA: dly(DLYA)
    a.e(f"""
    s_bitcmp0_b32 s26, 4
    s_cbranch_scc1 {Lqkv}
    s_bfe_u32 s95, s26, 0x10003
    """)
    if DLY: dly(DLY)
    if XP: a.e(f"s_load_dwordx2 s[40:41], s[0:1], {KA['q']}")
    if HK:
        a.e(f"""
        s_lshl_b32 s4, s95, 3
        s_add_u32 s4, s4, {KA['wk']}
        s_load_dwordx2 s[42:43], s[0:1], s4
        s_lshl_b32 s4, s99, 8
        """)
        wsetup2("s4")
        a.e("s_waitcnt lgkmcnt(0)")
        srd(a, 16, 42, 1024 * 4096 * 2)
        wdma2(HK, pol=HPOL)
    a.e(f"s_waitcnt vmcnt({16 if HK else 0})\ns_barrier")
    arm_signal()
    if XP:
        a.e("""
        s_and_b32 s4, s26, 15
        s_lshl_b32 s4, s4, 2
        s_add_u32 s4, s4, s24
        s_lshl_b32 s5, s4, 13
        v_lshlrev_b32 v6, 7, v1
        s_waitcnt lgkmcnt(0)
        """)
        srd(a, 12, 40, 2048 * 1024 * 2)
        a.e("""
        buffer_load_dword v7, v6, s[12:15], s5 offen
        s_and_b32 s5, s25, 3
        s_lshl_b32 s5, s5, 6
        s_add_u32 s4, s4, s5
        s_lshl_b32 s4, s4, 14
        s_add_u32 s4, s4, 0x80000
        v_add_u32 v6, s4, v6
        v_add_u32 v8, 0x2000, v6
        """)
    for t in range(HK + 1, 4 if HK else 0): wdma2(t, pol=HPOL)
    if AW:
        La = a.newlabel("aw"); Lv0 = a.newlabel("aw")
        a.e(f"""
        s_cmp_lg_u32 s24, 0
        s_cbranch_scc1 {La}
        s_mov_b32 s62, 0
        """)
        a.label(Lv0)
        a.e(f"""
        s_sleep {AWS}
        s_add_u32 s62, s62, 1
        s_cmp_gt_u32 s62, {SPIN}
        s_cbranch_scc1 {Lend}
        """)
        verify_issue()
        a.e(f"""
        s_waitcnt vmcnt(0)
        v_readlane_b32 s4, v238, {C_ARM}
        s_and_b32 s5, s4, 0xffff
        s_cmp_lt_u32 s5, 256
        s_cbranch_scc1 {Lv0}
        s_lshr_b32 s4, s4, 16
        s_cbranch_scc1 {La}
        """)
        Lw = a.newlabel("aw")
        a.e(f"""
        s_and_b32 s4, s99, 30
        s_lshl_b32 s4, s4, 9
        s_lshl_b32 s5, s95, 14
        s_add_u32 s4, s4, s5
        s_and_b32 s5, s99, 1
        s_lshl_b32 s5, s5, 7
        s_add_u32 s4, s4, s5
        {"s_lshl_b32 s4, s99, 9" if AB else ""}
        s_add_u32 s4, s4, {FL_K + (4 if AW < 3 else 0)}
        v_mov_b32 v5, 0
        s_mov_b32 s62, 0
        """)
        a.label(Lw)
        a.e(f"""
        buffer_load_dword v4, v5, s[8:11], s4 offen sc1
        s_add_u32 s62, s62, 1
        s_cmp_gt_u32 s62, {SPIN}
        s_cbranch_scc1 {Lend}
        s_waitcnt vmcnt(0)
        v_readfirstlane_b32 s5, v4
        s_cmp_ge_u32 s5, {AWN}
        s_cbranch_scc1 {La}
        s_sleep 16
        s_branch {Lw}
        """)
        a.label(La)
        a.e("s_barrier")
    if XP == 2: a.e("buffer_load_dword v7, v6, s[12:15], 0 offen\nbuffer_load_dword v9, v8, s[12:15], 0 offen")
    def conv(vf):
        abr.body_abr(a, st, vf, GMAP)
        a.e("s_waitcnt vmcnt(0)\ns_barrier")
        signal(C_CONV)
    if AB: verify()
    else: conv(verify)
    st()
    a.e(f"s_cmp_eq_u32 s98, 3\ns_cbranch_scc1 {Lph2}")
    a.label(Lqkv)
    a.e(f"""
    s_lshl_b32 s4, s98, 3
    s_add_u32 s4, s4, {KA['wq']}
    s_load_dwordx2 s[40:41], s[0:1], {KA['q']}
    s_load_dwordx2 s[42:43], s[0:1], s4
    s_lshl_b32 s4, s99, 8
    """)
    wsetup2("s4")
    a.e("s_waitcnt lgkmcnt(0)")
    srd(a, 12, 40, 2048 * 1024 * 2)
    srd(a, 16, 42, 1024 * 4096 * 2)
    wdma2(0, pol=KPOL)
    a.e("s_waitcnt vmcnt(16)\ns_barrier"); arm_signal()
    wdma2(1, pol=KPOL)
    XR = 64; ACC = [192, 208]; OUT = 224
    a.e("v_and_b32 v2, 15, v1\nv_lshrrev_b32 v3, 4, v1\nv_lshlrev_b32 v4, 11, v2")
    for j in range(4):
        a.e(f"""
        v_add_u32 v5, {4*j}, v3
        v_xor_b32 v5, v5, v2
        v_lshl_add_u32 v{8+j}, v5, 4, v4
        v_add_u32 v{12+j}, 0x10000, v{8+j}
        """)
    a.e("s_lshl_b32 s4, s24, 3\ns_and_b32 s4, s4, 8")
    for r in range(8):
        a.e(f"""
        s_add_u32 s5, s4, {r}
        v_xor_b32 v5, s5, v1
        s_add_u32 s5, s6, {(r>>1)*4096}
        v_lshlrev_b32 v5, 4, v5
        v_add_u32 v{16+r}, s5, v5
        """)
    a.e(f"""
    s_cmp_eq_u32 s98, 2
    s_cselect_b32 s4, 11, 10
    s_cselect_b32 s5, 1, 4
    s_lshl_b32 s5, s5, 10
    s_lshl_b32 s4, s24, s4
    v_lshlrev_b32 v24, 4, v1
    v_add_u32 v24, s4, v24
    v_add_u32 v25, s5, v24
    v_mov_b32 v26, 0
    s_and_b32 s4, s99, 7
    s_lshl_b32 s4, s4, 13
    s_lshl_b32 s5, s24, 11
    s_add_u32 s4, s4, s5
    s_add_u32 s4, s4, {XW*0x10000}
    v_lshlrev_b32 v28, 5, v1
    v_add_u32 v28, s4, v28
    s_lshl_b32 s31, s98, 24
    s_lshl_b32 s4, s99, 13
    s_add_u32 s31, s31, s4
    s_mov_b32 s30, {WS_JUNK}
    s_cmp_eq_u32 s98, 0
    s_cselect_b32 s28, {64 - QR if QR else 0}, 0
    s_lshl_b32 s29, s28, 16
    s_waitcnt vmcnt(16)
    """)
    wtr2(0)
    wdma2(2, pol=KPOL)
    a.e("s_waitcnt vmcnt(16)")
    a.e(f"""
    s_lshl_b32 s4, s99, 9
    s_lshl_b32 s5, s24, 7
    s_add_u32 s4, s4, s5
    s_lshl_b32 s5, s98, 14
    s_add_u32 s4, s4, s5
    s_add_u32 s94, s4, {WS_FLAG}
    """)
    if QR: a.e(f"s_add_u32 s4, s4, {WS_JUNK + 0x100000}\ns_cmp_eq_u32 s98, 0\ns_cselect_b32 s94, s4, s94")
    wtr2(1)
    verify_issue()
    wdma2(3, pol=KPOL)
    a.e("s_waitcnt vmcnt(16)")
    verify_check()
    if AW == 1: a.e("v_mov_b32 v27, 1\ns_mov_b64 exec, 1\nbuffer_store_dword v27, v26, s[8:11], s94 offen offset:4 sc1\ns_mov_b64 exec, -1")
    wtr2(2)
    def xdma(k, buf):
        r, hf = k >> 1, k & 1
        L = []
        if k % 4 == 0: L.append(f"s_add_u32 m0, s6, {buf*65536 + (k>>2)*4096}")
        L.append(f"buffer_load_dwordx4 v{16+r}, s[12:15], s29 offen offset:{(r&1)*2048 + hf*1024} lds")
        return L
    def xread(f, buf):
        ks, kt = f >> 1, f & 1
        return f"ds_read_b128 {q4(XR + 4*(f&31))}, v{8 + 4*buf + (ks&3)} offset:{(ks>>2)*256 + kt*32768}"
    for k in range(16):
        L = xdma(k, 0)
        if len(L) == 2: L.insert(1, "s_nop 0")
        for x in L: a.e(x)
    a.e("s_waitcnt vmcnt(16)")
    if AW == 2: a.e("v_mov_b32 v27, 1\ns_mov_b64 exec, 1\nbuffer_store_dword v27, v26, s[8:11], s94 offen offset:4 sc1\ns_mov_b64 exec, -1")
    wtr2(3)
    st()
    Lq = a.newlabel("qa")
    a.e("s_waitcnt vmcnt(0)\ns_barrier\ns_add_u32 s29, s29, 0x10000")
    for f in range(16): a.e(xread(f, 0))
    for k in range(6):
        L = xdma(k, 1)
        if len(L) == 2: L.insert(1, "s_nop 0")
        for x in L: a.e(x)
    st()
    Lv = a.newlabel("vt"); Lqe = a.newlabel("qe")
    if not QR: a.e(f"s_cmp_eq_u32 s98, 0\ns_cbranch_scc1 {Lq}")
    if TW:
        a.e(f"""
        s_min_u32 s4, s24, 2
        s_lshl_b32 s4, 8, s4
        s_load_dwordx2 s[44:45], s[0:1], s4     ; k, v, ssm_k
        s_sub_u32 s5, s98, 1
        s_lshl_b32 s5, s5, {4 if GMAP else 5}
        s_and_b32 s4, s99, {16 if GMAP else 0}
        s_add_u32 s5, s5, s4
        s_add_u32 s5, s5, s99
        s_and_b32 s4, s5, 7
        s_lshl_b32 s4, s4, 19
        s_andn2_b32 s7, s5, 7
        s_lshl_b32 s7, s7, 5
        s_add_u32 s4, s4, s7
        s_lshl_b32 s5, s5, 16
        s_cmp_lt_u32 s24, 2
        s_cselect_b32 s52, s4, s5
        s_cselect_b32 s4, 11, 8
        s_lshl_b32 s53, {TW//2}, s4
        s_cmp_lt_u32 s24, 3
        s_cselect_b32 s54, 0x400000, 0
        v_and_b32 v30, {TW-1}, v1
        v_lshrrev_b32 v31, 1, v30
        v_and_b32 v30, 1, v30
        v_lshlrev_b32 v31, s4, v31
        v_lshl_add_u32 v30, v30, 7, v31
        s_waitcnt lgkmcnt(0)
        """)
        srd(a, 48, 44, 0)
    a.e(f"s_cmp_eq_u32 s98, 2\ns_cbranch_scc1 {Lv}")
    def epi_cvt(A):
        L = []
        for u in range(2):
            for i in range(2):
                r = A + 8*u + 4*i
                L.append(f"v_cvt_pk_bf16_f32 v{OUT+4*u+2*i}, v{r}, v{r+1}")
                L.append(f"v_cvt_pk_bf16_f32 v{OUT+4*u+2*i+1}, v{r+2}, v{r+3}")
        return L
    def epi_st(u): return f"buffer_store_dwordx4 {q4(OUT+4*u)}, v{24+u}, s[8:11], s30 offen sc1"
    FLAG = ["v_mov_b32 v27, s28", "s_mov_b64 exec, 1", "buffer_store_dword v27, v26, s[8:11], s94 offen sc1", "s_mov_b64 exec, -1"]
    def body(P, vt):
        fa = [[] for _ in range(64)]; fb = [[] for _ in range(64)]; pre = [[] for _ in range(64)]
        for s in range(64):
            if s <= 47: fa[s].append(xread(s + 16, P))
            elif 52 <= s <= 55: fa[s].append(xread(2*(s-52), 1-P)); fa[s].append(xread(2*(s-52)+1, 1-P))
            elif s >= 56: fa[s].append(xread(s - 48, 1-P))
            if s % 4 == 0 and s <= 48: pre[s].append("s_waitcnt lgkmcnt(12)")
        NX = (1 if XW else 0) + (1 if TW else 0)
        pre[52].append(f"s_waitcnt vmcnt({1 + NX}) lgkmcnt(0)\ns_barrier")
        if TW:
            fb[22] += [f"s_sub_u32 s4, s28, {TE - 512//TW}", f"s_cmp_lt_u32 s4, {512//TW}"]
            fb[23] += ["s_cselect_b32 s50, s54, 0", "s_cselect_b32 s4, s53, 0"]
            fb[25] += ["buffer_load_dword v31, v30, s[48:51], s52 offen", "s_add_u32 s52, s52, s4"]
        if XW: fb[21].append("buffer_load_dword v29, v28, s[12:15], s29 offen")
        fb[50] += ["s_add_u32 s29, s29, 0x10000", "s_and_b32 s29, s29, 0x3fffff" if QR else "s_min_u32 s29, s29, 0x3f0000"]
        for k in range(16):
            s = 53 + 2*k
            L = xdma(k, P if k < 6 else 1 - P)
            if len(L) == 2: fb[(s-1) % 64].append(L[0])
            fb[s % 64].append(L[-1])
        C = epi_cvt(ACC[1-P])
        fb[2] += C[0:2]; fb[4] += C[2:4]; fb[6] += [epi_st(0)]; fa[6] += C[4:5]; fa[7] += C[5:6]; fb[8] += C[6:8]; fb[10] += [epi_st(1)]
        fb[12] += ["s_mov_b32 s30, s31"]; fb[14] += [f"s_add_u32 s31, s31, {32*8192}"]
        fb[44] += [f"s_waitcnt vmcnt({5 + NX})"] + FLAG
        fb[46] += ["s_add_u32 s28, s28, 1"]
        for s in range(64):
            ks, kt = s >> 1, s & 1
            for x in pre[s]: a.e(x)
            if diag and s == 52 and P == 0: st()
            for t in range(2):
                d = q4(ACC[P] + (8*t + 4*kt if vt else 8*kt + 4*t))
                w = a4((2*ks + t)*4); x = q4(XR + 4*(s & 31))
                a.e(f"v_mfma_f32_16x16x32_bf16 {d}, {x if vt else w}, {w if vt else x}, {'0' if ks == 0 else d}")
                for y in (fa if t == 0 else fb)[s]: a.e(y)
    for vt in (False, True):
        if vt: a.label(Lv)
        Ll = a.newlabel("ql")
        a.raw(".p2align 6")
        a.label(Ll)
        body(0, vt); body(1, vt)
        a.e(f"s_cmp_lt_u32 s28, 64\ns_cbranch_scc1 {Ll}")
        if not vt: a.e(f"s_branch {Lqe}")
    a.label(Lqe)
    a.nop(8)
    for x in epi_cvt(ACC[1]): a.e(x)
    a.e(epi_st(0)); a.e(epi_st(1))
    if QR: a.e(f"s_cmp_eq_u32 s98, 0\ns_cbranch_scc1 {Lq}")
    a.e("s_waitcnt vmcnt(0) lgkmcnt(0)")
    for x in FLAG: a.e(x)
    if AB:
        a.e("s_barrier\ns_sub_u32 s95, s98, 1")
        st()
        conv(lambda: a.e("s_waitcnt vmcnt(0)"))
    Lfin = a.newlabel("fin")
    a.e(f"s_branch {Lfin if G2 else Lph2}")

    a.label(Lq)
    QB = 0x20000; KB = 0x22000; VB = 0x24000; MB = 0x26000
    K = 128; V = 160; KM = 176; VM = 232; SI = 32; PM = 40; ONE = 44; S0 = 48; S1 = 52; SM = 56; P_ = 48; Z = 52
    EX = [60, 61, 62, 63] + list(range(242, 250))
    a.e(f"""
    s_and_b32 s34, s24, 1           ; qt
    s_lshr_b32 s35, s24, 1          ; dh
    s_lshl_b32 s4, s35, 10
    s_add_u32 s4, s4, 2048
    v_lshlrev_b32 v2, 4, v1
    s_lshl_b32 s5, s24, 10
    s_add_u32 s5, s5, {QB}
    v_add_u32 v24, s5, v2
    s_lshl_b32 s5, s34, 12
    s_add_u32 s5, s5, {QB}
    v_add_u32 v25, s5, v2
    v_add_u32 v31, {KB}, v2
    s_lshl_b32 s5, s35, 12
    v_add_u32 v5, s5, v31
    s_lshl_b32 s43, s24, 11
    """)
    ln.build(3, [(4, 2, 128), (2, 2, 32), (0, 1, 16)], MB)
    ln.build(6, [(2, 2, 128), (0, 2, 16), (4, 2, 4)], MB, ["s4"])
    a.e(f"s_lshl_b32 s4, s99, 9\ns_add_u32 s4, s4, {FL_REC}")
    ln.build(7, [(0, 2, 128)], 0, ["s4"])
    for r in range(VM, VM + 10): a.e(f"v_mov_b32 v{r}, 0")
    for r in range(4): a.e(f"v_mov_b32 v{PM+r}, 0\nv_mov_b32 v{ONE+r}, 0x3f803f80")
    a.e(f"""
    s_lshl_b32 s4, s34, 4
    v_and_b32 v{S0}, 15, v1
    v_add_u32 v{S0}, s4, v{S0}          ; query
    v_lshrrev_b32 v{S0+1}, 4, v1
    v_lshlrev_b32 v{S0+1}, 2, v{S0+1}
    v_mov_b32 v{S0+3}, 0xff800000
    """)
    for i in range(8):
        a.e(f"""
        v_add_u32 v{S0+2}, {16*(i>>2) + (i&3)}, v{S0+1}
        v_cmp_le_u32 vcc, v{S0+2}, v{S0}
        s_nop 1
        v_cndmask_b32 v{SI+i}, v{S0+3}, v{PM}, vcc
        """)
    a.e(f"""
    s_lshl_b32 s4, s99, 7
    s_lshl_b32 s5, s24, 2
    s_add_u32 s4, s4, s5
    s_add_u32 s94, s4, {FL_O}
    s_mov_b32 s46, {FL_K - FL_REC}
    s_mov_b32 s47, {FL_V - FL_REC}
    s_mov_b32 s30, -1
    s_mov_b32 s32, 0                ; k/v bound
    s_mov_b32 s33, {64 if norec else 0}
    s_mov_b32 s42, 0
    s_mov_b32 s53, {WS_JUNK}
    s_mov_b32 s45, 0x3e0293ee
    s_lshl_b32 s36, s99, 13         ; head*8192
    s_add_u32 s36, s36, s43
    s_add_u32 s36, s36, {WS_KX}
    s_add_u32 s43, s43, {KB}
    s_sub_u32 s37, s36, 0x40000
    v_and_b32 v255, 15, v1
    v_bfe_u32 v254, v1, 4, 1
    v_lshlrev_b32 v255, 7, v255
    v_lshl_add_u32 v255, v254, 24, v255
    s_lshl_b32 s39, s99, 12
    s_lshl_b32 s4, s34, {12 if G2 else 17}
    s_lshl_b32 s40, s99, {13 if G2 else 12}
    s_add_u32 s40, s40, s4
    s_lshl_b32 s4, s35, 11
    s_add_u32 s40, s40, s4
    s_add_u32 s40, s40, {WS_KX if G2 else WS_O}
    s_add_u32 s39, s39, {WS_KVM}
    s_lshl_b32 s52, s24, 10
    s_add_u32 s39, s39, s52
    s_add_u32 s52, s52, {MB}
    s_mov_b32 s31, 1
    s_sub_u32 s48, s39, 0x20000
    s_mov_b32 s49, s37
    s_mov_b32 vcc_lo, {1 if OSC else 's27'}
    s_mov_b32 vcc_hi, 0
    """)
    POLL = "buffer_load_dword v4, v7, s[8:11], 0 offen sc1"
    RDB = "s_nop 0" if norec else "v_readfirstlane_b32 s33, v4"
    MINR = [f"v_min_u32_dpp v4, v4, v4 quad_perm:{p} row_mask:0xf bank_mask:0xf\ns_nop 1" for p in ("[1,0,3,2]", "[2,3,0,1]")]
    def need(bound, blk):
        L = a.newlabel("nd"); D = a.newlabel("ndd")
        a.e(f"""
        s_cmp_gt_u32 s{bound}, {blk}
        s_cbranch_scc1 {D}
        s_mov_b32 s62, 0
        """)
        a.label(L)
        if bound == 33: a.e(POLL)
        else: a.e("buffer_load_dword v29, v7, s[8:11], s46 offen sc1\nbuffer_load_dword v30, v7, s[8:11], s47 offen sc1")
        r = 4 if bound == 33 else 29
        a.e(f"""
        s_add_u32 s62, s62, 1
        s_cmp_gt_u32 s62, {SPIN}
        s_cbranch_scc1 {Lend}
        s_waitcnt vmcnt(0)
        """)
        if bound == 32: a.e("v_min_u32 v29, v29, v30\ns_nop 1")
        minred(r, 2)
        a.e(f"""
        v_readfirstlane_b32 s{bound}, v{r}
        {"s_lshl_b32 s55, s32, 18" if bound == 32 else ""}
        {"s_add_u32 s55, s55, s37" if bound == 32 else ""}
        s_cmp_gt_u32 s{bound}, {blk}
        s_cbranch_scc1 {D}
        s_sleep {QS}
        s_branch {L}
        """)
        a.label(D)
    cold = []
    def side_path(cond, code):
        Lc = a.newlabel("cp"); Lb = a.newlabel("cb")
        def f():
            a.label(Lc)
            code(Lb)
            a.e(f"s_branch {Lb}")
        cold.append(f)
        return [f"s_cbranch_scc{cond} {Lc}", Lb + ":"]
    def local(ins):
        if not G2: return [ins + " sc1"]
        Lc = a.newlabel("cp"); Lb = a.newlabel("cb")
        def f():
            a.label(Lc)
            a.e(f"{ins} sc1\ns_branch {Lb}")
        cold.append(f)
        return [f"s_cbranch_vccnz {Lc}", ins, Lb + ":"]
    def ML(P): return [f"s_add_u32 m0, s52, {4096*P}", "s_nop 0", "buffer_load_dwordx4 v2, s[8:11], s48 offen lds"]
    def QKV(P):
        Q = ACC[1 - P]; L = []
        for ks in range(4):
            L.append(f"ds_read_b128 {q4(Q+4*ks)}, v25 offset:{1024*ks}")
            for kt in range(2): L.append(f"ds_read_b128 {q4(K+16*kt+4*ks)}, v31 offset:{4096*kt + 1024*ks}")
        for ks in range(4): L.append(f"ds_read_b128 {q4(V+4*ks)}, v5 offset:{VB - KB + 1024*ks}")
        return L
    def oflag(): return ["v_max_i32 v27, s30, v26"] + local(FLAG[2][:-4])
    def late(P):
        def f(Lb):
            need(33, "s30")
            emit(ML(P) + ["s_waitcnt vmcnt(0)"])
        return ["s_cmp_eq_u32 s31, 0"] + side_path(1, f)
    def emit(L):
        for y in L:
            if y.endswith(":"): a.label(y[:-1])
            else: a.e(y)
    def qread(f, buf):
        ks, kt = f >> 1, f & 1
        return f"ds_read_b128 {q4(XR + 4*(f&15))}, v{8 + 4*buf + (ks&3)} offset:{(ks>>2)*256 + kt*32768}"
    def qwr(u, P): return f"ds_write_b128 v24, {q4(OUT+4*u)} offset:{u*4096}"
    t0, t1, t2 = EX[10], EX[11], 30
    def mf(d, x, y, c): return f"v_mfma_f32_16x16x32_bf16 {q4(d)}, {q4(x)}, {q4(y)}, {'0' if c is None else q4(c)}"
    class AT:
        def __init__(s, P):
            Q = ACC[1 - P]; O = Q; AO = OUT
            s.km = [f"ds_read_b128 {q4(KM+4*i)}, v3 offset:{4096*P + 512*i}" for i in range(4)]
            s.vm = [f"ds_read_b32 v{VM+2*i}, v6 offset:{4096*P + 512*(i>>1) + 64*(i&1)}" for i in range(4)]
            s.s0 = [mf(S0, K+4*ks, Q+4*ks, S0 if ks else SI) for ks in range(4)]
            s.s1 = [mf(S1, K+16+4*ks, Q+4*ks, S1 if ks else SI+4) for ks in range(4)]
            s.sm = [mf(SM, KM+4*ks, Q+4*ks, SM if ks else None) for ks in range(4)]
            s.m0 = [f"v_max3_f32 v{t0}, v{S0}, v{S0+1}, v{S0+2}", f"v_max3_f32 v{t0}, v{t0}, v{S0+3}, v{S1}", f"v_max3_f32 v{t1}, v{S1+1}, v{S1+2}, v{S1+3}"]
            s.m1 = [f"v_max3_f32 v{t0}, v{t0}, v{SM}, v{SM+1}", f"v_max_f32 v{t2}, v{t0}, v{t1}", f"v_max_f32 v{t1}, v{t0}, v{t1}"]
            s.m2 = [f"v_permlane16_swap_b32 v{t1}, v{t2}", f"v_max_f32 v{t0}, v{t1}, v{t2}", f"v_max_f32 v{t1}, v{t1}, v{t2}"]
            s.m3 = [f"v_permlane32_swap_b32 v{t0}, v{t1}", f"v_max_f32 v{t0}, v{t0}, v{t1}", f"v_mul_f32 v{t0}, s45, v{t0}"]
            src = list(range(S0, S0 + 8)) + [SM, SM + 1]
            s.fma = [f"v_fma_f32 v{EX[i]}, v{src[i]}, s45, -v{t0}" for i in range(10)]
            s.exp = [f"v_exp_f32 v{EX[i]}, v{EX[i]}" for i in range(10)]
            s.cvt = [f"v_cvt_pk_bf16_f32 v{P_+i}, v{EX[2*i]}, v{EX[2*i+1]}" for i in range(4)] + [f"v_cvt_pk_bf16_f32 v{PM}, v{EX[8]}, v{EX[9]}"]
            s.pv = [mf(Z, ONE, P_, None), mf(Z, ONE, PM, Z)]
            for i in range(4): s.pv += [mf(O+4*i, V+4*i, P_, None), mf(O+4*i, VM+2*i, PM, O+4*i)]
            s.rcp = f"v_rcp_f32 v{t0}, v{Z}"
            s.fin = [[f"v_mul_f32 v{O+4*i+r}, v{t0}, v{O+4*i+r}" for r in range(4)] +
                     [f"v_cvt_pk_bf16_f32 v{AO+2*i}, v{O+4*i}, v{O+4*i+1}", f"v_cvt_pk_bf16_f32 v{AO+2*i+1}, v{O+4*i+2}, v{O+4*i+3}"] for i in range(4)]
            s.st = [local(f"buffer_store_dwordx4 {q4(AO+4*u)}, v2, s[8:11], s53 offen offset:{1024*u}") for u in range(2)]
    def qbody(P, vq0, last=False):
        A = AT(P)
        base = []
        for s in range(64):
            ks, kt = s >> 1, s & 1
            for t in range(2):
                d = q4(ACC[P] + 8*kt + 4*t)
                base.append((f"v_mfma_f32_16x16x32_bf16 {d}, {a4((2*ks + t)*4)}, {q4(XR + 4*(s & 15))}, {'0' if ks == 0 else d}",
                             s + 3 if t == 0 and s % 4 == 0 else None))
        X = [It(qread(f, P), f, lds=True, rel=max(0, 2*(f-16)+1), dl=min(8*(f//4) - 10, 96 + (f&3))) for f in range(12, 64)]
        X += [It("s_barrier", "B3", nl=63, nv="x15", after=[(63, 5)], dl=0)]
        X += [It(qread(f, 1-P), f, lds=True, rel=2*(48+f)+1, dl=118 + 8*(f//4)//2) for f in range(12)]
        def dma(ks, buf, first, t0_, step):
            L = []; prev = first
            for n, k in enumerate(ks):
                x = xdma(k, buf)
                if len(x) == 2:
                    L.append(It(x[0], f"m{k}", after=prev, dl=t0_ + step*n - 1)); prev = prev + [(f"m{k}", 1)]
                L.append(It(x[-1], f"x{k}", cost=QD, vm=True, after=prev, dl=t0_ + step*n)); prev = [(f"x{k}", step)]
            return L
        D = dma(range(6, 16), 1 - P, [], 3, 4)
        D += [It("buffer_load_dword v29, v28, s[12:15], s29 offen", "wx", vm=True, after=[("x15", 2)], dl=70),
              It("s_add_u32 s29, s29, 0x10000", dl=90)]
        D += dma(range(6), P, [("B3", 0), ("chk", 0)], 106, 4)
        C = epi_cvt(ACC[1-P])
        E = [It(x, rel=4, dl=10) for x in C[0:4]] + [It(qwr(0, P), "w0", lds=True, dl=10)] + [It(x, dl=14) for x in C[4:8]] + [It(qwr(1, P), "w", lds=True, dl=14)]
        E += [It("s_barrier", "B0", nl="w", nv="kv3", after=[("w", 5)], dl=20)]
        E += [It(x, f"r{i}", lds=True, dl=24 + i) for i, x in enumerate(QKV(P))]
        OF = oflag()
        E += [It(OF[0], dl=40), It(OF[1:], "of", vm=True, nv="st1", dl=42)]
        N32 = It(["s_cmp_gt_u32 s32, s42"] + side_path(0, lambda Lb: need(32, "s42")), "n32", dl=62)
        KV = [It("s_mov_b32 m0, s43", dl=72), It("s_add_u32 s49, s49, 0x40000", dl=72),
              It("buffer_load_dwordx4 v2, s[8:11], s49 offen lds", "kv0", cost=QD, vm=True, dl=74),
              It(f"s_add_u32 s50, s49, {WS_VX - WS_KX}", dl=76),
              It("buffer_load_dwordx4 v2, s[8:11], s49 offen offset:1024 lds", "kv1", cost=QD, vm=True, after=[("kv0", 4)], dl=78),
              It(f"s_add_u32 m0, s43, {VB - KB}", dl=80), It("s_add_u32 s5, s49, 0x40000", dl=80),
              It("buffer_load_dwordx4 v2, s[8:11], s50 offen lds", "kv2", cost=QD, vm=True, after=[("kv1", 4)], dl=82),
              It("s_min_u32 s5, s5, s55", dl=84),
              It("buffer_load_dwordx4 v2, s[8:11], s50 offen offset:1024 lds", "kv3", cost=QD, vm=True, after=[("kv2", 4)], dl=86)]
        M = []
        for ks in range(4):
            M += [It(A.s0[ks], mfma=True, nl=f"r{3*ks+2}", after=[(f"r{3*ks+2}", 6)]), It(A.s1[ks], "s1", mfma=True)]
        if last:
            E += [It("s_barrier", "B2", nl="r15", after=[("r15", 4)], dl=44), N32] + KV
            return schedule(base, [X[:52], E, M], list(range(12)), vq0)
        E += [It(late(P), after=[("r15", 4), ("x15", 0)], dl=44), It("s_barrier", "B2", nl="r15", dl=44)]
        E += [It(x, f"km{i}", lds=True, dl=48) for i, x in enumerate(A.km)]
        Lp = a.newlabel("pp"); Lpb = a.newlabel("pb")
        def pf():
            a.label(Lp); a.e(f"{POLL}\ns_mov_b32 s31, 0\ns_branch {Lpb}")
        cold.append(pf)
        E += [It(ML(1-P)[0], "ma", dl=60), It("s_add_u32 s48, s48, 0x20000", dl=60), It("s_mov_b32 s31, 1", dl=60),
              It(["s_cmp_gt_u32 s33, s42", f"s_cbranch_scc0 {Lp}", ML(1-P)[2], Lpb + ":"], "ml", vm=True, dl=60),
              N32]
        E += [It(x, f"vm{i}", lds=True, dl=70) for i, x in enumerate(A.vm)]
        E += KV + [
              It("buffer_load_dword v29, v255, s[8:11], s5 offen", "wk", vm=True, after=[("kv3", 2)], dl=90)]
        def chk(Lb):
            emit(["s_waitcnt vmcnt(1)"] + MINR + [RDB, "s_cmp_gt_u32 s33, s42", f"s_cbranch_scc0 {Lb}", "s_mov_b32 s31, 1"] + ML(1 - P))
        E += [It(["s_cmp_eq_u32 s31, 0"] + side_path(1, chk), "chk", rel=98, dl=100)]
        M += [It(x, after=[("s1", 4)], dl=56) for x in A.m0]
        M += [It(x, "sm", mfma=True, nl="km3", after=[("km3", 6)]) for x in A.sm]
        M += [It(A.m1[0], after=[("sm", 4), ("n32", 0)], dl=1), It(A.m1[1], dl=1), It(A.m1[2], "p1", dl=1)]
        M += [It(A.m2[0], after=[("p1", 2)], dl=1), It(A.m2[1], dl=1), It(A.m2[2], "p2", dl=1)]
        M += [It(A.m3[0], after=[("p2", 2)], dl=1), It(A.m3[1], dl=1), It(A.m3[2], dl=1)]
        M += [It(x, dl=QM) for x in A.fma] + [It(x, cost=2, dl=QM + 8) for x in A.exp] + [It(x, "cv", dl=QM + 10) for x in A.cvt]
        M += [It(x, f"pv{i}", mfma=True, nl="vm3" if i == 3 else None, after=[("cv", 1)]) for i, x in enumerate(A.pv)]
        M += [It(A.rcp, "rcp", cost=2, after=[("pv1", 4)], dl=110)]
        for i in range(4):
            M += [It(x, after=[(f"pv{3+2*i}", 4), ("rcp", 1)], dl=112 + 3*i) for x in A.fin[i]]
            if i & 1: M += [It(A.st[i >> 1], f"st{i >> 1}", vm=True, after=[("chk", 0)], dl=112 + 3*i)]
        M += [It("s_mov_b32 s53, s40", dl=126), It("s_add_u32 s40, s40, 0x40000", dl=126), It("s_mov_b32 s30, s42", dl=126), It("s_add_u32 s42, s42, 1", dl=126)]
        for c in (M,):
            for it in c:
                if it.dl == 1: it.dl = QM - 8
        return schedule(base, [X, D, E, M], list(range(12)), vq0)
    n0 = len(cold); u0 = a.uid
    _, _, vq, _ = qbody(0, ["kv3", "st1"])
    del cold[n0:]
    vq = vq[vq.index("kv3"):]
    def qemit(P):
        L, lq, vq2, info = qbody(P, vq)
        assert vq2[vq2.index("kv3"):] == vq and lq[-12:] == list(range(12))
        if P == 0: print("q body:", {k: v for k, v in info.items() if k != 'done'}, {k: v for k, v in info['done'].items() if isinstance(k, str)})
        emit(L)
        st()
    need(32, 0)
    a.e("s_waitcnt lgkmcnt(0)")
    if QR: a.e(f"s_mov_b32 s14, {(64 - QR) << 16}")
    if diag:
        for i in range(5): a.e(f"s_mov_b32 s{66+i}, 0")
    Lql = a.newlabel("ql")
    a.raw(".p2align 6")
    a.label(Lql)
    Lql2 = a.newlabel("ql")
    def tail(P, nxt=False):
        A = AT(P)
        emit(late(P))
        if QR: a.e("s_waitcnt vmcnt(0)")
        st()
        emit(["s_barrier"] + A.km + A.vm + A.m0 + ["s_waitcnt lgkmcnt(4)"] + A.sm + ["s_nop 7"] + A.m1 + ["s_nop 1"] + A.m2 + ["s_nop 1"] + A.m3)
        emit(A.fma + A.exp + A.cvt + ["s_waitcnt lgkmcnt(0)"] + A.pv + [A.rcp, "s_nop 0"] + A.fin[0] + A.fin[1] + A.st[0] + A.fin[2] + A.fin[3] + A.st[1])
        emit(([POLL] if nxt else []) + ["s_add_u32 s30, s30, 1", "s_mov_b32 s53, s40", f"s_waitcnt vmcnt({int(nxt)})"] + oflag())
    def scores(P):
        n0 = len(cold); A = AT(P); del cold[n0:]
        a.e("s_waitcnt lgkmcnt(4)")
        for ks in range(4): emit([A.s0[ks], A.s1[ks]])
    qemit(0)
    if QR:
        qemit(1)
        a.e(f"s_cmp_lg_u32 s42, {64 - QR}\ns_cbranch_scc1 {Lql}")
        a.nop(6)
        emit(epi_cvt(ACC[1]) + [qwr(0, 0), qwr(1, 0), "s_waitcnt vmcnt(0)"] + oflag())
        emit(["s_waitcnt lgkmcnt(0)", "s_barrier"] + QKV(0))
        scores(0)
        tail(0)
        need(32, 63)
        a.e(f"s_sub_u32 s4, s36, {WS_KX}\ns_sub_u32 s5, s43, {KB}")
        for t in range(QR):
            a.e(f"s_add_u32 s49, s49, 0x40000\ns_add_u32 s50, s49, {WS_VX - WS_KX}")
            for i, sr in enumerate((4, 49, 50)):
                a.e(f"""
                s_add_u32 m0, s5, {0x8000*t + 0x2000*i}
                s_nop 0
                buffer_load_dwordx4 v2, s[8:11], s{sr} offen lds
                buffer_load_dwordx4 v2, s[8:11], s{sr} offen offset:1024 lds
                """)
            a.e("s_add_u32 s4, s4, 0x40000")
        a.e(POLL)
        for t in range(QR):
            st()
            P = ~t & 1; Lno = a.newlabel("no")
            for r in (25, 31, 5): a.e(f"v_add_u32 v{r}, 0x8000, v{r}" if t else f"v_subrev_u32 v{r}, {QB}, v{r}")
            emit(["s_add_u32 s48, s48, 0x20000", "s_mov_b32 s31, 0", "s_add_u32 s40, s40, 0x40000"] + ([] if t else [f"s_waitcnt vmcnt({6*QR - 5})", "s_barrier"]) + QKV(P))
            scores(P)
            emit([f"s_waitcnt vmcnt({int(t > 0)})"] + MINR + [RDB])
            tail(P, t < QR - 1)
    else:
        a.e(f"s_cmp_eq_u32 s42, 63\ns_cbranch_scc1 {Lql2}")
        qemit(1)
        a.e(f"s_branch {Lql}")
        a.label(Lql2)
        n0 = len(cold)
        emit(qbody(1, vq, True)[0])
        del cold[n0:n0+2]
        st()
        tail(1)
        st()
        emit(["s_add_u32 s48, s48, 0x20000", "s_mov_b32 s31, 0"])
        emit(epi_cvt(ACC[1]) + [qwr(0, 0), qwr(1, 0)] + ["s_waitcnt lgkmcnt(0)", "s_barrier"] + QKV(0))
        scores(0)
        tail(0)
    if diag:
        for i in range(5): a.e(f"s_lshr_b32 s4, s{66+i}, 6\nv_writelane_b32 v253, s4, {56+i}")
    finish()
    for f in cold: f()

    if G2:
        a.label(Lph2)
        st()
        a.e(f"""
        s_load_dwordx2 s[42:43], s[0:1], {KA['wo']}
        s_lshr_b32 s34, s99, 3
        s_and_b32 s35, s99, 7
        s_lshl_b32 s4, s34, 21
        s_lshl_b32 s5, s35, 8
        s_add_u32 s4, s4, s5
        """)
        wsetup2("s4", 2048)
        a.e("s_waitcnt lgkmcnt(0)")
        srd(a, 16, 42, 4096 * 1024 * 2)
        wdma2(0, 2048); wdma2(1, 2048)
        GA = 192
        a.e(f"""
        v_lshlrev_b32 v2, 4, v1
        v_mov_b32 v8, v2
        s_lshl_b32 s36, s24, 12
        s_lshl_b32 s4, s34, 16
        s_add_u32 s4, s4, s36
        v_add_u32 v9, s4, v2            ; source
        s_lshl_b32 s4, s34, 10
        s_add_u32 s4, s4, {FL_O}
        """)
        ln.build(7, [(0, 3, 128)], 0, ["s4"])
        a.e(f"""
        s_lshl_b32 s4, s35, 2
        s_add_u32 s4, s4, s24
        s_lshl_b32 s5, s4, 9
        s_lshl_b32 s94, s34, 7
        s_add_u32 s94, s94, s5
        s_add_u32 s94, s94, {FL_TK}
        s_lshl_b32 s38, s4, 1
        s_and_b32 s5, s34, 1
        s_or_b32 s38, s38, s5
        s_lshl_b32 s4, s35, 22
        s_lshl_b32 s37, s34, 20
        s_add_u32 s37, s37, s4
        s_lshl_b32 s4, s24, 18
        s_add_u32 s37, s37, s4
        s_add_u32 s37, s37, {WS_P}
        s_mov_b32 s29, {WS_KX}
        s_mov_b32 s28, 0                ; block
        s_mov_b32 s33, 0                ; bound
        s_mov_b32 s39, 0
        v_mov_b32 v26, 0
        s_waitcnt vmcnt(16)
        """)
        wtr2(0); wdma2(2, 2048)
        a.e("s_waitcnt vmcnt(16)")
        wtr2(1); wdma2(3, 2048)
        a.e("s_waitcnt vmcnt(16)")
        wtr2(2)
        a.e("s_waitcnt vmcnt(0)")
        wtr2(3)
        st()
        GC = 208
        OPOLL = "buffer_load_dwordx4 v[12:15], v7, s[8:11], 0 offen sc1"
        M4 = ["v_min3_u32 v4, v12, v13, v14", "v_min_u32 v4, v4, v15"]
        def odma(k):
            L = []
            if k % 4 == 0: L += [f"s_add_u32 m0, s36, {(k>>2)*16384}", f"s_add_u32 s31, s29, {(k>>2)*16384}"]
            return L + [f"buffer_load_dwordx4 v9, s[8:11], s31 offen offset:{1024*(k&3)} sc1 lds"]
        def oread(f): return f"ds_read_b128 {q4(64 + 4*(f&31))}, v8 offset:{(f>>3)*8192 + (f&1)*4096 + ((f>>1)&3)*1024}"
        MR = [f"v_min_u32_dpp v4, v4, v4 {p} row_mask:0xf bank_mask:0xf" for p in ("quad_perm:[1,0,3,2]", "quad_perm:[2,3,0,1]", "row_half_mirror")]
        def PST(R): return [f"buffer_store_dwordx4 {q4(R+4*i)}, v2, s[8:11], s30 offen offset:{1024*i} sc1" for i in range(4)]
        Lcold = a.newlabel("cold"); Lgo = a.newlabel("go"); Lbody = a.newlabel("body"); Lhot = a.newlabel("hot"); Lgp = a.newlabel("gp"); Lgx = a.newlabel("gx")
        Lpd = a.newlabel("pd"); Lpb = a.newlabel("pdb"); Lcp = a.newlabel("cpy")
        BR = f"s_cbranch_scc1 {Lhot}"
        def gbody(hot):
            base = []
            for s_ in range(64):
                ks, kt = s_ >> 1, s_ & 1
                for t in range(2):
                    d = q4(GA + 8*kt + 4*t)
                    base.append((f"v_mfma_f32_16x16x32_bf16 {d}, {a4((2*ks + t)*4)}, {q4(64 + 4*(s_ & 31))}, {'0' if ks == 0 else d}",
                                 (s_ + 1 if s_ < 8 else s_ + 3) if t == 0 and s_ % (2 if s_ < 8 else 4) == 0 else None))
            X = []
            for f in range(8, 64):
                if f == 16: X.append(It("s_barrier", "B1", nv="d7", rel=GB1, dl=0))
                if f == 32: X.append(It("s_barrier", "B2", nv="p", rel=GB2, dl=0))
                X.append(It(oread(f), f, lds=True, rel=max(0, 2*(f-32)+1), dl=8*(f//4) - 12))
            X.append(It("v_xor_b32 v8, 0x10000, v8", dl=126))
            def dma(ks, t0_, step, prev):
                D = []
                for n, k in enumerate(ks):
                    x = odma(k)
                    if len(x) == 3: D.append(It(x[:2], f"m{k}", after=prev, dl=t0_ + step*n - 1)); prev = prev + [(f"m{k}", 1)]
                    D.append(It(x[-1], f"x{k}", cost=2, vm=True, after=prev, dl=t0_ + step*n)); prev = [(f"x{k}", step - 1)]
                return D
            def red(n, nv, t0_):
                return [It(M4, n, nv=nv, rel=t0_ - 2, dl=t0_ - 2), It(MR[0], n + "0", after=[(n, 2)], dl=t0_), It(MR[1], n + "1", after=[(n + "0", 2)], dl=t0_ + 2), It(MR[2], n + "2", after=[(n + "1", 2)], dl=t0_ + 4),
                        It("v_readfirstlane_b32 s33, v4", after=[(n + "2", 2)], dl=t0_ + 6)]
            D = dma(range(8, 16), 2, 4, [])
            D += [It(OPOLL, "p", vm=True, after=[("x15", 2)], dl=34), It("s_xor_b32 s36, s36, 0x10000", dl=40), It("s_add_u32 s29, s29, 0x40000", dl=40)]
            D += [It(["s_cmp_lg_u32 s39, 0", f"s_cbranch_scc1 {Lpd}", Lpb + ":"], after=[("B2", 4)], dl=GB2 + 8)]
            D += [It("s_xor_b32 s30, s28, s38", dl=64), It("s_lshl_b32 s30, s30, 12", dl=64), It("s_add_u32 s30, s30, s37", dl=64), It("s_add_u32 s28, s28, 1", dl=64)]
            D += red("r", "p", GB2 + 8)
            D += [It(["s_cmp_gt_u32 s33, s28", BR], "br", dl=GB2 + 16)]
            if hot: D += dma(range(8), 74, 6, [("br", 1)])
            else: D += [It(OPOLL, "p2", vm=True, rel=GP2, dl=GP2)] + red("q", "p2", 120)
            L, _, _, info = schedule(base, [X, D], list(range(8)), [f"d{i}" for i in range(8)])
            print("g body:", {k: v for k, v in info.items() if k != 'done'}, {k: v for k, v in info['done'].items() if isinstance(k, str)})
            i = L.index(BR) + 1
            return L[:i], L[i:]
        h0, c1 = gbody(False); h1, h2 = gbody(True)
        assert h0 == h1
        a.label(Lcold)
        a.e("s_mov_b32 s62, 0")
        a.label(Lgp)
        a.e(f"""
        {OPOLL}
        s_add_u32 s62, s62, 1
        s_cmp_gt_u32 s62, {SPIN}
        s_cbranch_scc1 {Lend}
        s_waitcnt vmcnt(0)
        """)
        emit(M4 + ["s_nop 1"])
        minred(4, 3)
        a.e(f"""
        v_readfirstlane_b32 s33, v4
        s_cmp_gt_u32 s33, s28
        s_cbranch_scc1 {Lgo}
        s_sleep {GS}
        s_branch {Lgp}
        """)
        a.label(Lgo)
        if GST: st()
        for k in range(8): emit(odma(k))
        a.label(Lbody)
        if GST and diag: a.e("s_cmp_eq_u32 s28, 58\ns_cselect_b32 s96, 90, s96\ns_cmp_lt_u32 s28, 58\ns_cselect_b32 s96, 12, s96")
        a.e("s_waitcnt vmcnt(4)\ns_barrier")
        for f in range(8): a.e(oread(f))
        st()
        emit(h0 + c1)
        if GST: st()
        a.e(f"""
        s_cmp_gt_u32 s33, s28
        s_cbranch_scc1 {Lgx}
        """)
        if GD:
            Lla = a.newlabel("last")
            a.e(f"s_cmp_ge_u32 s28, 64\ns_cbranch_scc1 {Lla}\ns_mov_b32 s39, 1\ns_nop 2")
            for i in range(8): a.e(f"v_pk_mov_b32 v[{GC+2*i}:{GC+2*i+1}], v[{GA+2*i}:{GA+2*i+1}], v[{GA+2*i}:{GA+2*i+1}] op_sel:[0,1]")
            a.e(f"s_branch {Lcold}")
            a.label(Lla)
        a.e(f"s_nop {3 if GD else 5}")
        emit(PST(GA) + ["s_mov_b32 s39, 0", "s_waitcnt vmcnt(0)"] + FLAG)
        if GST: st()
        a.e(f"""
        s_cmp_lt_u32 s28, 64
        s_cbranch_scc1 {Lcold}
        """)
        finish()
        a.label(Lgx)
        for k in range(8): emit(odma(k))
        a.e(f"s_branch {Lcp}")
        a.label(Lhot)
        emit(h2)
        if GST: st()
        a.label(Lcp)
        a.e("s_mov_b32 s39, 1\ns_nop 2")
        for i in range(8): a.e(f"v_pk_mov_b32 v[{GC+2*i}:{GC+2*i+1}], v[{GA+2*i}:{GA+2*i+1}], v[{GA+2*i}:{GA+2*i+1}] op_sel:[0,1]")
        a.e(f"s_branch {Lbody}")
        a.label(Lpd)
        emit(["s_sub_u32 s4, s28, 1", "v_mov_b32 v27, s4"] + FLAG[1:] + PST(GC) + [f"s_branch {Lpb}"])

        a.label(Lfin)
        st()
        if 'x' in GE: finish()
        a.e(f"""
        s_load_dwordx2 s[44:45], s[0:1], {KA['out']}
        s_sub_u32 s34, s98, 1
        s_lshl_b32 s4, s34, 11
        s_lshr_b32 s5, s99, 2
        s_lshl_b32 s5, s5, 22
        s_add_u32 s4, s4, s5
        s_and_b32 s5, s99, 3
        s_lshl_b32 s5, s5, 18
        s_add_u32 s4, s4, s5
        s_lshl_b32 s38, s99, 1
        v_lshlrev_b32 v2, 4, v1
        v_add_u32 v2, s4, v2            ; partials
        s_lshl_b32 s4, s34, 15
        s_lshl_b32 s5, s99, 6
        s_add_u32 s4, s4, s5
        """)
        ln.build(13, [(0, 4, 2048), (4, 2, 16)], 0, ["s4"])
        a.e("s_lshl_b32 s4, s99, 17\ns_lshl_b32 s5, s34, 10\ns_add_u32 s4, s4, s5")
        ln.build(14, [(4, 2, 32768), (3, 1, 512), (0, 3, 2)], 0, ["s4"])
        for e_ in range(1, 8): a.e(f"v_add_u32 v{14+e_}, {4096*e_}, v14")
        a.e("s_lshl_b32 s4, s34, 6")
        ln.build(22, [(0, 4, 4)], 0, ["s4"])
        a.e(f"s_lshl_b32 s4, s99, 9\ns_add_u32 s4, s4, {FL_TK}")
        ln.build(7, [(0, 2, 128)], 0, ["s4"])
        a.e("s_mov_b32 s28, s24\ns_mov_b32 s33, 0\ns_waitcnt lgkmcnt(0)")
        srd(a, 84, 44, 2048 * 1024 * 2)
        wait_dbg(C_CONV, 64)
        Lf = a.newlabel("fl"); Lfp = a.newlabel("fp"); Lfd = a.newlabel("fd")
        XE = 32; ZE = 36; GE_ = 44; T = 48; PR = 64
        a.label(Lf)
        a.e(f"""
        s_lshl_b32 s57, s28, 16
        s_and_b32 s4, s28, 31
        s_lshl_b32 s4, s4, 4
        s_lshr_b32 s5, s28, 5
        s_lshl_b32 s5, s5, 11
        s_add_u32 s58, s4, s5
        s_add_u32 s58, s58, {WS_YT}
        s_lshl_b32 s59, s28, 7
        s_add_u32 s59, s59, {WS_G}
        buffer_load_dwordx4 {q4(XE)}, v13, s[12:15], s57 offen
        buffer_load_dword v{GE_}, v22, s[8:11], s59 offen
        """)
        for e_ in range(0 if 'y' in GE else 8): a.e(f"buffer_load_ushort v{ZE+e_}, v{14+e_}, s[8:11], s58 offen")
        a.e(f"""
        s_xor_b32 s48, s28, s38
        s_lshl_b32 s48, s48, 12
        s_add_u32 s48, s48, {WS_P}
        s_xor_b32 s49, s48, 0x101000
        s_add_u32 s50, s48, 0x200000
        s_add_u32 s51, s49, 0x200000
        s_cmp_gt_u32 s33, s28
        s_cbranch_scc1 {Lfd}
        s_mov_b32 s62, 0
        """)
        a.label(Lfp)
        a.e(f"""
        {POLL}
        s_add_u32 s62, s62, 1
        s_cmp_gt_u32 s62, {SPIN}
        s_cbranch_scc1 {Lend}
        s_waitcnt vmcnt(0)
        """)
        minred(4, 2)
        a.e(f"""
        v_readfirstlane_b32 s33, v4
        s_cmp_gt_u32 s33, s28
        s_cbranch_scc1 {Lfd}
        s_sleep {FS}
        s_add_u32 s4, s33, {FD}
        s_cmp_ge_u32 s4, s28
        s_cbranch_scc1 {Lfp}
        s_sleep {FS2}
        s_branch {Lfp}
        """)
        a.label(Lfd)
        for i in range(0 if 'w' in GE else 8): a.e(f"buffer_load_dwordx4 {q4(PR+4*i)}, v2, s[8:11], s{48+(i>>1)} offen offset:{1024*(i&1)}")
        a.e("s_waitcnt vmcnt(8)")
        for e_ in range(8):
            a.e(f"v_and_b32 v{T+e_}, 0xffff0000, v{XE+(e_>>1)}" if e_ & 1 else f"v_lshlrev_b32 v{T+e_}, 16, v{XE+(e_>>1)}")
            a.e(f"v_lshlrev_b32 v{ZE+e_}, 16, v{ZE+e_}")
        for e_ in range(8): a.e(f"v_mul_f32 v{T+e_}, v{T+e_}, v{ZE+e_}")
        for e_ in range(8): a.e(f"v_mul_f32 v{T+e_}, v{T+e_}, v{GE_}")
        a.e(f"v_sub_f32 v{GE_}, 1.0, v{GE_}\ns_waitcnt vmcnt(4)")
        for e_ in range(8): a.e(f"v_add_f32 v{PR+e_}, v{PR+e_}, v{PR+8+e_}")
        a.e("s_waitcnt vmcnt(0)")
        for e_ in range(8): a.e(f"v_add_f32 v{PR+16+e_}, v{PR+16+e_}, v{PR+24+e_}")
        for e_ in range(8): a.e(f"v_add_f32 v{PR+e_}, v{PR+e_}, v{PR+16+e_}")
        for e_ in range(8): a.e(f"v_fma_f32 v{PR+e_}, v{PR+e_}, v{GE_}, v{T+e_}")
        for e_ in range(4): a.e(f"v_cvt_pk_bf16_f32 v{T+8+e_}, v{PR+2*e_}, v{PR+2*e_+1}")
        if 'v' not in GE: a.e(f"buffer_store_dwordx4 {q4(T+8)}, v13, s[84:87], s57 offen {OUTF.replace('_', ' ')}")
        st()
        a.e(f"""
        s_add_u32 s28, s28, 4
        s_cmp_lt_u32 s28, 64
        s_cbranch_scc1 {Lf}
        """)
        if diag: a.e("s_waitcnt vmcnt(0)\ns_barrier")
        finish()
        return

    a.label(Lph2)
    st()
    if stop == 1: finish(); return
    a.e(f"""
    s_load_dwordx2 s[42:43], s[0:1], {KA['wo']}
    s_load_dwordx2 s[44:45], s[0:1], {KA['out']}
    s_load_dwordx2 s[40:41], s[0:1], {KA['q']}
    s_lshl_b32 s4, s99, 6
    s_lshl_b32 s5, s24, 21
    s_add_u32 s4, s4, s5
    """)
    wsetup(2048, "s4")
    a.e("s_waitcnt lgkmcnt(0)\ns_barrier")
    srd(a, 16, 42, 4096 * 1024 * 2)
    srd(a, 84, 44, 2048 * 1024 * 2)
    srd(a, 12, 40, 2048 * 1024 * 2)
    wdma(0, 2048); wdma(1, 2048)
    GA = 192; EP = 208; T = 216; R = 224
    a.e(f"""
    s_and_b32 s34, s24, 1
    s_lshr_b32 s35, s24, 1
    v_lshlrev_b32 v2, 4, v1
    s_lshl_b32 s4, s24, 10
    s_add_u32 s4, s4, {FL_O}
    """)
    ln.build(8, [(0, 3, 128)], 0, ["s4"])
    a.e("s_lshl_b32 s4, s24, 15\nv_add_u32 v9, s4, v2\nv_add_u32 v10, 0x20000, v9")
    a.e("s_lshl_b32 s4, s24, 12\nv_add_u32 v11, s4, v2")
    a.e("s_lshl_b32 s4, s35, 11\ns_lshl_b32 s5, s34, 7\ns_add_u32 s4, s4, s5")
    ln.build(12, [(0, 1, 1024), (1, 2, 256), (3, 3, 16)], 0, ["s4"])
    a.e("s_lshl_b32 s4, s24, 14\ns_lshl_b32 s5, s99, 6\ns_add_u32 s4, s4, s5")
    ln.build(13, [(3, 3, 2048), (0, 3, 8)], 0, ["s4"])
    a.e("s_lshl_b32 s4, s99, 17\ns_lshl_b32 s5, s24, 9\ns_add_u32 s4, s4, s5")
    ln.build(14, [(0, 3, 16384), (3, 3, 2)], 0, ["s4"])
    for e_ in range(1, 4): a.e(f"v_add_u32 v{14+e_}, {4096*e_}, v14")
    a.e("s_lshl_b32 s4, s24, 5")
    ln.build(18, [(3, 3, 4)], 0, ["s4"])
    a.e(f"s_and_b32 s4, s99, 7\ns_lshl_b32 s4, s4, 12\ns_lshl_b32 s5, s24, 15\ns_add_u32 s4, s4, s5\ns_add_u32 s4, s4, {WS_O}")
    ln.build(19, [(0, 5, 128), (5, 1, 0x20000)], 0, ["s4"])
    a.e(f"""
    s_lshl_b32 s4, s24, 8
    s_add_u32 s4, s4, 0x8000
    v_lshlrev_b32 v21, 2, v1
    v_add_u32 v21, s4, v21
    v_mov_b32 v22, 0x8000
    v_mov_b32 v23, 0
    s_lshl_b32 s4, s99, 7
    s_add_u32 s94, s4, {FL_TK}
    s_mov_b32 s33, 0
    s_waitcnt vmcnt(16)
    """)
    def draw(n):
        L = a.newlabel("dr"); D = a.newlabel("drd")
        a.e(f"""
        s_mov_b64 exec, 1
        s_cmp_lg_u32 s24, 0
        s_cbranch_scc1 {L}
        v_mov_b32 v20, {n}
        buffer_atomic_add v20, v23, s[8:11], s94 offen sc0 sc1
        s_branch {D}
        """)
        a.label(L)
        a.e("buffer_load_dword v20, v23, s[16:19], 0 offen")
        a.label(D)
        a.e("s_mov_b64 exec, -1")
    wtr(0); wdma(2, 2048)
    a.e("s_waitcnt vmcnt(16)")
    wtr(1); wdma(3, 2048)
    a.e("s_waitcnt vmcnt(16)")
    wtr(2)
    a.e("s_waitcnt vmcnt(0)")
    wtr(3)
    wait_dbg(C_CONV, 64)
    draw(2)
    Lgx = a.newlabel("gx")
    a.e(f"""
    s_barrier
    s_waitcnt vmcnt(0)
    ds_write_b32 v21, v20 offset:0x4000
    s_waitcnt lgkmcnt(0)
    s_barrier
    ds_read_b32 v20, v22 offset:0x4000
    s_waitcnt lgkmcnt(0)
    v_readfirstlane_b32 s31, v20
    s_add_u32 s30, s31, 1
    s_cmp_ge_u32 s31, 64
    s_cbranch_scc1 {Lgx}
    """)
    def bound():
        minred(4, 3)
        a.e("v_readfirstlane_b32 s33, v4")
    def side(blk):
        a.e(f"""
        s_lshl_b32 s57, {blk}, 16
        s_and_b32 s4, {blk}, 31
        s_lshl_b32 s4, s4, 4
        s_lshr_b32 s5, {blk}, 5
        s_lshl_b32 s5, s5, 11
        s_add_u32 s58, s4, s5
        s_add_u32 s58, s58, {WS_YT}
        s_lshl_b32 s59, {blk}, 7
        s_add_u32 s59, s59, {WS_G}
        s_lshl_b32 s48, {blk}, 18
        s_add_u32 s4, {blk}, 4
        s_min_u32 s4, s4, s33
        s_sub_u32 s4, s4, 1
        s_lshl_b32 s4, s4, 18
        {"s_mov_b32 s48, 0" if 'h' in GE else ""}
        {"s_mov_b32 s4, 0" if 'h' in GE else ""}
        buffer_load_dword v6, v19, s[8:11], s48 offen
        buffer_load_dword v7, v19, s[8:11], s4 offen
        buffer_load_dword v4, v8, s[8:11], 0 offen sc1
        buffer_load_dwordx2 v[{EP}:{EP+1}], v13, s[12:15], s57 offen
        buffer_load_dword v{EP+6}, v18, s[8:11], s59 offen
        s_add_u32 s48, s48, {WS_O}
        """)
        for e_ in range(4): a.e(f"buffer_load_ushort v{EP+2+e_}, v{14+e_}, s[8:11], s58 offen")
        draw(1)
        for i in range(1, 8): a.e(f"s_add_u32 s{48+i}, s48, {4096*i}")
    def oload(f):
        ks, qt = f >> 1, f & 1
        a.e(f"buffer_load_dwordx4 {q4(64 + 4*(f&31))}, v{9+qt}, s[8:11], s{48 + (ks>>2)} offen offset:{1024*(ks&3)}")
    def mm(f):
        ks, qt = f >> 1, f & 1
        for t in range(2):
            d = q4(GA + 8*qt + 4*t)
            a.e(f"v_mfma_f32_16x16x32_bf16 {d}, {a4((2*ks+t)*4)}, {q4(64 + 4*(f&31))}, {'0' if ks == 0 else d}")
    def epilogue():
        a.nop(6)
        for i in range(4): a.e(f"ds_write_b128 v11, {q4(GA+4*i)} offset:{1024*i}")
        a.e("s_waitcnt lgkmcnt(0)\ns_barrier")
        a.e("ds_read_b32 v24, v22")
        for i in range(4): a.e(f"ds_read_b128 {q4(R+4*i)}, v12 offset:{4096*i}")
        a.e(f"""
        v_xor_b32 v11, 0x4000, v11
        v_xor_b32 v12, 0x4000, v12
        v_xor_b32 v21, 0x4000, v21
        v_xor_b32 v22, 0x4000, v22
        s_waitcnt lgkmcnt(2)
        """)
        for r in range(4): a.e(f"v_add_f32 v{R+r}, v{R+r}, v{R+4+r}")
        a.e("s_waitcnt lgkmcnt(0)")
        for r in range(4): a.e(f"v_add_f32 v{R+8+r}, v{R+8+r}, v{R+12+r}")
        for r in range(4): a.e(f"v_add_f32 v{R+r}, v{R+r}, v{R+8+r}")
        for r in range(4): a.e(f"v_fma_f32 v{R+r}, v{R+r}, v{T+4}, v{T+r}")
        a.e(f"""
        v_cvt_pk_bf16_f32 v{R+4}, v{R}, v{R+1}
        v_cvt_pk_bf16_f32 v{R+5}, v{R+2}, v{R+3}
        buffer_store_dwordx2 v[{R+4}:{R+5}], v13, s[84:87], s56 offen
        s_mov_b32 s31, s30
        v_readfirstlane_b32 s30, v24
        """)
    Lcold = a.newlabel("cold"); Lmain = a.newlabel("main"); Ldrain = a.newlabel("drain"); Lgp = a.newlabel("gp"); Lgd = a.newlabel("gd")
    a.label(Lcold)
    st()
    a.e("s_mov_b32 s62, 0")
    a.label(Lgp)
    a.e(f"""
    buffer_load_dword v4, v8, s[8:11], 0 offen sc1
    s_add_u32 s62, s62, 1
    s_cmp_gt_u32 s62, {SPIN}
    s_cbranch_scc1 {Lend}
    s_waitcnt vmcnt(0)
    """)
    bound()
    a.e(f"""
    s_cmp_gt_u32 s33, s31
    s_cbranch_scc1 {Lgd}
    s_sleep {GS}
    s_cmp_eq_u32 s33, s31
    s_cbranch_scc1 {Lgp}
    s_sleep 24
    s_branch {Lgp}
    """)
    a.label(Lgd)
    side("s31")
    for f in range(32): oload(f)
    a.label(Lmain)
    st()
    pre = [f"v_lshlrev_b32 v{T}, 16, v{EP}", f"v_and_b32 v{T+1}, 0xffff0000, v{EP}", f"v_lshlrev_b32 v{T+2}, 16, v{EP+1}", f"v_and_b32 v{T+3}, 0xffff0000, v{EP+1}"]
    pre += [f"v_lshlrev_b32 v{EP+2+e_}, 16, v{EP+2+e_}" for e_ in range(4)]
    pre += [f"v_mul_f32 v{T+e_}, v{T+e_}, v{EP+2+e_}" for e_ in range(4)]
    pre += [f"v_mul_f32 v{T+e_}, v{T+e_}, v{EP+6}" for e_ in range(4)]
    pre += [f"v_sub_f32 v{T+4}, 1.0, v{EP+6}", "s_mov_b32 s56, s57", "ds_write_b32 v21, v20"]
    for f in range(32):
        a.e("s_waitcnt vmcnt(31)")
        mm(f); oload(f + 32)
        if f < len(pre): a.e(pre[f])
        if f == 24: bound()
    a.e(f"""
    s_cmp_gt_u32 s33, s30
    s_cbranch_scc0 {Ldrain}
    """)
    side("s30")
    for f in range(32, 64):
        a.e("s_waitcnt vmcnt(41)")
        mm(f); oload(f - 32)
    epilogue()
    a.e(f"s_branch {Lmain}")
    a.label(Ldrain)
    for f in range(32, 64):
        a.e(f"s_waitcnt vmcnt({63-f})")
        mm(f)
    epilogue()
    a.e(f"""
    s_cmp_lt_u32 s31, 64
    s_cbranch_scc1 {Lcold}
    """)
    a.label(Lgx)
    finish()
```

```python
from common import *

SENT_MIN = "0xfffffffe"
RQ = 0; RK = 4736; RC = 9472; RV = 14080; RVM = 18176
G = 24; AQ = 40; AK = 48; AV = 56; AC = 64; T = 72
KX = 104; VX = 136; QL = 144; QH = 160; KM = 176; S = 192; SM = 196; SI = 200; P = 204; PM = 208
VM0 = 212; VM1 = 216; ONE = 220; Z = 224; O0 = 228; O1 = 232; OUT = 236; E = 240
XQ = 144; PS = 148; XA = 156; ON1 = 164; RVB = RVM + 2048
DPQ = "quad_perm:[2,3,0,1] row_mask:0xf bank_mask:0xf"
DPP8 = "row_ror:8 row_mask:0xf bank_mask:0xf"
PFL = 0xc000
SPIN = "0x100000"

def q4(r): return f"v[{r}:{r+3}]"

def calib_measure(a, CJ=0):
    L = a.newlabel("nocal"); Lb = a.newlabel("calb")
    a.e(f"""
    s_lshl_b32 s4, s25, 4
    {"s_andn2_b32 s5, 8, s26" if CJ else "s_and_b32 s5, s26, 4"}
    s_or_b32 s4, s4, s5
    s_cbranch_scc1 {L}
    s_cmp_lg_u32 s24, 3
    s_cbranch_scc1 {Lb}
    s_lshr_b32 s4, s26, 1
    s_and_b32 s4, s4, {8 if CJ else 12}
    s_and_b32 s5, s26, {7 if CJ else 3}
    s_or_b32 s4, s4, s5             ; candidate
    s_lshl_b32 s5, s4, 11
    s_add_u32 s5, s5, s101
    s_mov_b64 exec, 1
    v_mov_b32 v4, -1
    v_mov_b32 v5, 0
    s_mov_b32 s7, 0xffff
    """)
    for t in range(2 if CJ == 2 else 3):
        a.e(f"""
        s_memtime s[72:73]
        s_waitcnt lgkmcnt(0)
        buffer_store_dword v4, v5, s[8:11], s5 offen sc1
        s_waitcnt vmcnt(0)
        s_memtime s[74:75]
        s_waitcnt lgkmcnt(0)
        s_sub_u32 s74, s74, s72
        s_min_u32 s7, s7, s74
        """)
    a.e(f"""
    s_lshl_b32 s5, s4, 1
    s_add_u32 s5, s5, {4*C_CAL}
    v_mov_b32 v4, s7
    buffer_store_short v4, v5, s[20:23], s5 offen sc1
    s_mov_b64 exec, -1
    """)
    a.label(Lb)
    a.e("s_barrier")
    a.label(L)

def calib_read(a, Lend):
    Lp = a.newlabel("cp"); Ld = a.newlabel("cd"); Lg = a.newlabel("cg")
    a.e(f"""
    s_mov_b32 s47, 0
    s_cmp_lg_u32 s27, 0
    s_cbranch_scc1 {Ld}
    s_mov_b32 s62, 0
    """)
    a.label(Lp)
    a.e(f"""
    v_and_b32 v18, 0xffff, v238
    v_lshrrev_b32 v19, 16, v238
    v_min_u32 v17, v18, v19
    v_cmp_eq_u32 vcc, 0, v17
    s_and_b32 s4, vcc_hi, {0xff << (C_CAL - 32)}
    s_cbranch_scc0 {Lg}
    s_add_u32 s62, s62, 1
    s_cmp_gt_u32 s62, {SPIN}
    s_cbranch_scc1 {Lend}
    s_sleep 16
    buffer_load_dword v238, v239, s[20:23], 0 offen sc1
    s_waitcnt vmcnt(0)
    s_branch {Lp}
    """)
    a.label(Lg)
    for c in range(16):
        a.e(f"v_readlane_b32 s{66+c}, v{18+(c&1)}, {C_CAL + (c>>1)}")
    def ssum(dst, regs):
        a.e(f"s_add_u32 s{dst}, s{regs[0]}, s{regs[1]}")
        for r in regs[2:]:
            a.e(f"s_add_u32 s{dst}, s{dst}, s{r}")
    a.nop(4)
    ssum(4, [66 + c for c in range(16) if not c & 4]); ssum(5, [66 + c for c in range(16) if c & 4])
    a.e("s_cmp_lt_u32 s5, s4\ns_cselect_b32 s47, 0x2000, 0")
    lo = [c for c in range(16) if not c & 4]
    for c in lo:
        a.e(f"s_cselect_b32 s{66+c}, s{66+c+4}, s{66+c}")
    for bit, val in ((1, 0x800), (2, 0x1000), (8, 0x4000)):
        ssum(4, [66 + c for c in lo if not c & bit]); ssum(5, [66 + c for c in lo if c & bit])
        a.e(f"s_cmp_lt_u32 s5, s4\ns_cselect_b32 s4, {val}, 0\ns_or_b32 s47, s47, s4")
    a.label(Ld)

def body_rec(a, Lend, verify_issue, verify_check, diag=False, nowait=False, IL='prio', tail=None, EXP='', XS=5, ZE=60, FZ=52, PH=1, WPOL='nt', AW=0, arm_signal=None, CP=2, RL=0, RP=0, KP=0, PF=0, lite=False, FM=3, HP=10, HQ=0, VA=0, VB=0, VC=0, PL=0, PPOL='', CJ=0, PB=0, MO='0123'):
    MO = [int(c) for c in '%04d' % int(MO)]; rx = [0]
    WPOL = WPOL.replace('_', ' ')
    ln = Lane(a)
    if 'z' in EXP: EXP += 'nl'
    if 'y' in EXP: EXP += 'enl'
    NL = 'n' in EXP and 'l' not in EXP
    WSTR = 64 if 'h' in EXP else 128
    PS5 = '5' in EXP
    VE = 'E' in EXP
    PS4 = '4' in EXP or PS5
    def rts(i):
        if not diag: return
        a.e(f"""
        s_memrealtime s[72:73]
        s_waitcnt lgkmcnt(0)
        v_writelane_b32 v250, s72, {i}
        """)
    a.e(f"""
    s_load_dwordx8 s[84:91], s[0:1], {KA['wq']}
    s_load_dwordx2 s[40:41], s[0:1], {KA['mem0']}
    v_and_b32 v1, 63, v0
    """)
    rts(0)
    if diag: a.e('v_writelane_b32 v250, s92, 9')
    calib_measure(a, CJ)
    a.e(f"""
    s_lshl_b32 s4, s25, 11
    s_lshl_b32 s5, s26, 6
    s_add_u32 s4, s4, s5
    s_lshl_b32 s6, s24, 21
    s_add_u32 s4, s4, s6
    s_lshl_b32 s7, s25, 21
    s_lshl_b32 s6, s24, 19
    s_add_u32 s7, s7, s6
    s_add_u32 s7, s7, s5
    s_lshl_b32 s6, s24, 15
    v_bfe_u32 v4, v1, 4, 1
    v_lshlrev_b32 v4, 1, v4
    v_and_b32 v5, 3, v1
    v_xor_b32 v4, v4, v5
    v_lshlrev_b32 v4, 4, v4         ; 16B chunk
    """)
    ln.build(5, [(2, 1, 1), (3, 1, 8), (4, 1, 4), (5, 1, 2)])
    a.e("""
    v_lshlrev_b32 v6, 13, v5
    v_add_u32 v6, v6, v4
    v_add_u32 v240, s4, v6
    v_lshlrev_b32 v6, 11, v5
    v_add_u32 v6, v6, v4
    v_add_u32 v241, s7, v6
    """)
    ROT = 'r' not in EXP
    if ROT: a.e("v_xor_b32 v241, 256, v241")
    ln.build(242, [(2, 2, 64), (4, 1, 256 + 32), (5, 1, 1024), (0, 2, 8)], sregs=["s6"])
    a.e("v_xor_b32 v243, 32, v242\ns_waitcnt lgkmcnt(0)")
    if PL:
        assert ROT and PS4
        a.e("""
        s_andn2_b32 s4, s4, 64
        s_andn2_b32 s7, s7, 64
        s_xor_b32 s7, s7, 256
        s_and_b32 s5, s26, 1
        s_lshl_b32 s98, s5, 16
        s_add_u32 s4, s4, s98
        s_lshl_b32 s98, s5, 14
        s_add_u32 s7, s7, s98
        """)
        ln.build(234, [(3, 3, 8192), (0, 3, 16)], 0, ["s4"])
        ln.build(235, [(3, 3, 2048), (0, 3, 16)], 0, ["s7"])
        a.e("v_xor_b32 v233, 128, v234")
    def pre(g):
        if not PL or g >= 64: return 0
        mat, i = g >> 4, g & 15
        if i == 0: srd(a, 76, 84 + 2 * mat, 1024 * 4096 * 2)
        a.e(f"""
        s_mov_b32 m0, 0x20000
        s_mov_b32 s5, {i*16*(8192 if mat < 3 else 2048)}
        buffer_load_dwordx4 v{(233, 233, 234, 235)[mat]}, s[76:79], s5 offen {PPOL} lds
        """)
        return 1
    def dma(mat, buf):
        mat = MO[mat]
        srd(a, 16, 84 + 2 * mat, 1024 * 4096 * 2)
        if 'C' in EXP or 'D' in EXP:
            a.e("s_lshl_b32 s4, s25, 5\ns_add_u32 s4, s4, s26\ns_lshl_b32 s4, s4, 2\ns_add_u32 s4, s4, s24\ns_lshl_b32 s4, s4, 14")
            if 'C' in EXP: a.e("v_lshlrev_b32 v240, 4, v1\nv_add_u32 v240, s4, v240")
            else:
                a.e("s_lshl_b32 s4, s25, 11\ns_and_b32 s5, s26, 7\ns_lshl_b32 s5, s5, 8\ns_add_u32 s4, s4, s5\ns_lshr_b32 s5, s26, 3\ns_lshl_b32 s5, s5, 21\ns_add_u32 s4, s4, s5\ns_lshl_b32 s5, s24, 19\ns_add_u32 s4, s4, s5")
                ln.build(240, [(0, 4, 16), (4, 2, 8192)], 0, ["s4"])
            for i in range(16):
                a.e(f"""
                s_add_u32 m0, s6, {buf*16384 + i*1024}
                s_mov_b32 s5, {i*1024 if 'C' in EXP else i*32768}
                buffer_load_dwordx4 v240, s[16:19], s5 offen nt lds
                """)
            return 16
        if ROT and mat < 3:
            x = ((128, 128, 0) if PS4 else (512, 128, 0))[mat]
            a.e(f"v_xor_b32 v240, {x ^ rx[0]}, v240"); rx[0] = x
        a.e(f"""
        s_and_b32 s4, s26, 1
        s_lshl_b32 s98, s4, {10 + PH}
        s_lshl_b32 s99, s4, {PH + (17 if mat < 3 else 15)}
        s_add_u32 s98, s98, s6
        """)
        n = 16
        for i in range(16):
            if PB == 0: n += pre(16 * mat + i + PL)
            elif i % PB == 0:
                for g in range(PB): n += pre(16 * mat + i + g + PL - PB) if mat or i else 0
            if PL and i % 8 == 0: a.e("s_waitcnt vmcnt(38)")
            a.e(f"""
            s_xor_b32 m0, s98, {buf*16384 + i*1024}
            s_xor_b32 s5, s99, {i*16*(8192 if mat < 3 else 2048)}
            buffer_load_dwordx4 v{240 if mat < 3 else 241}, s[16:19], s5 offen {WPOL} lds
            """)
        return n
    def tr(mat, buf):
        mat = MO[mat]
        for t in range(2):
            for p in range(4):
                for m in range(4):
                    r = ((mat * 2 + t) * 4 + p) * 8 + 2 * m
                    a.e(f"ds_read_b64_tr_b16 a[{r}:{r+1}], v{242+t} offset:{buf*16384 + (4*p + 2*(m>>1))*1024 + (m&1)*512}")
        a.e("s_waitcnt lgkmcnt(0)")
    if PL:
        for g in range(PL): pre(g)
        a.e(f"s_waitcnt vmcnt({PL})\ns_barrier"); arm_signal()
        dma(0, 0)
    else:
        dma(0, 0)
        a.e("s_waitcnt vmcnt(16)\ns_barrier"); arm_signal()
    nd = dma(1, 1)
    rts(1)
    a.e(f"""
    s_lshr_b32 s52, s26, 2          ; hl
    s_and_b32 s53, s26, 3           ; c
    s_lshl_b32 s54, s25, 14         ; X*16384
    s_lshl_b32 s55, s26, 9          ; j*512
    s_add_u32 s55, s55, s54
    s_lshl_b32 s56, s25, 3
    s_add_u32 s56, s56, s52         ; head
    s_lshl_b32 s57, s56, 12         ; head*4096
    s_lshl_b32 s58, s53, 9          ; c*512
    s_add_u32 s58, s58, s57
    s_mov_b32 s48, 0x00ff00ff
    s_mov_b32 s49, 0x00ff00ff
    s_mov_b32 s50, 0xff00ff00
    s_mov_b32 s51, 0xff00ff00
    v_mov_b32 v2, 0x4444
    v_mov_b32 v4, 0xeeee
    s_lshl_b32 s4, s24, 12
    s_add_u32 s4, s4, s54
    v_cndmask_b32 v2, v4, v2, s[48:49]
    """)
    ln.build(3, [(0, 6, 16)], sregs=["s4"])
    a.e("v_add_u32 v4, 0x10000, v3\ns_mul_i32 s4, s24, 1152")
    ln.build(5, [(4, 1, 576), (5, 1, 64), (0, 4, 4)], RQ, ["s4"])
    a.e(f"""
    v_add_u32 v6, {RK-RQ}, v5
    v_add_u32 v7, {RC-RQ}, v5
    s_lshl_b32 s4, s24, 10
    """)
    ln.build(8, [(0, 6, 16)], RV, ["s4"])
    a.e(f"""
    s_and_b32 s4, s24, 1
    s_lshr_b32 s5, s24, 1
    s_lshl_b32 s59, s4, 6
    s_mul_i32 s60, s5, {RK-RQ}
    s_add_u32 s59, s59, s60
    s_lshl_b32 s4, s4, 8
    s_add_u32 s60, s58, s4          ; head*4096 + c*512 + (w&1)*256
    s_lshl_b32 s5, s5, 11
    s_add_u32 s61, s60, s5
    """)
    if ROT: a.e("s_cmp_lt_u32 s24, 2\ns_cselect_b32 s5, 8, 1\ns_lshl_b32 s5, s5, 10\ns_xor_b32 s61, s61, s5")
    ln.build(9, [(2, 3, 144), (5, 1, 32), (0, 2, 8)], RQ, ["s59"])
    ln.build(10, [(0, 6, 4)], 0x20000, ["s61"])
    ln.build(11, [(0, 6, 4)], RVM, ["s4"])
    if VE:
        a.e("s_lshl_b32 s4, s24, 2")
        ln.build(255, [(2, 1, 1024), (4, 1, 512), (5, 1, 128), (3, 1, 64), (0, 2, 16)], RVB, ["s4"])
    for r in range(20, 24): a.e(f"v_mov_b32 v{r}, -1")
    for r in range(AQ, AC + 8): a.e(f"v_mov_b32 v{r}, 0")
    ln.build(244, [(0, 5, 16), (5, 1, 2048)], 0x20000, ["s58"])
    ln.build(245, [(0, 5, 16), (5, 1, 0x10000)], 0, ["s55"])
    if PS4:
        a.e("s_lshl_b32 s4, s53, 10\ns_add_u32 s4, s4, s57")
        ln.build(246, [(0, 6, 16)], 0x20000, ["s4"])
        a.e("v_subrev_u32 v237, 0x20000, v246\nv_lshrrev_b32 v237, 2, v237\nv_add_u32 v237, "+str(SMO)+", v237")
    else: a.e("v_mov_b32 v246, v244")
    a.e(f"s_waitcnt vmcnt({nd})")
    rts(2)
    tr(0, 0)
    nd = dma(2, 0)
    a.e(f"s_waitcnt vmcnt({nd})")
    rts(3)
    tr(1, 1)
    verify_issue()
    srd(a, 12, 40, 16384)
    a.e(f"s_xor_b32 s4, s26, {4 if ROT else 0}\ns_lshl_b32 s4, s4, 6")
    ln.build(247, [(1, 3, 2048), (4, 2, 16), (0, 1, 8)])
    a.e("buffer_load_dwordx2 v[248:249], v247, s[12:15], s4 offen")
    nd = dma(3, 1)
    a.e(f"s_waitcnt vmcnt({nd})")
    rts(4)
    verify_check()
    tr(2, 0)
    calib_read(a, Lend)

    def variant(sc):
        a.e(f"""
        s_mov_b32 s28, 0
        s_mov_b32 s30, {WS_RING}
        s_mov_b32 s31, {WS_RING + SLOT}
        s_mov_b32 s32, {WS_RING + 2*SLOT}
        s_mov_b32 s33, {WS_RING + 3*SLOT}
        s_mov_b32 s41, {WS_KVM - 0x20000 - (2048 if 'z' in EXP else 0)}
        s_lshl_b32 s42, s56, {19 if 'T' in EXP else 13}
        s_lshl_b32 s4, s53, 11
        s_add_u32 s44, s42, s4
        s_add_u32 s44, s44, {WS_VX}
        s_add_u32 s42, s42, {WS_KX}
        s_xor_b32 s4, s53, {2 if ROT else 0}
        s_lshl_b32 s4, s4, 10
        {"s_add_u32 s42, s42, s4" if PS4 else ""}
        s_add_u32 s43, s42, 4096
        s_add_u32 s96, s44, {33*8192 if 'T' in EXP else (1 if 'm' in EXP else 2)*32*8192}
        s_sub_u32 s95, s96, {WS_VX - WS_KX}
        s_mov_b32 s62, 0
        s_mov_b32 s45, 0x3e0293ee       ; 128^-0.5 * log2(e)
        s_mov_b32 s46, 0
        s_and_b32 s4, s25, 1
        s_lshl_b32 s4, s4, 14
        s_lshr_b32 s5, s25, 1
        s_lshl_b32 s5, s5, 12
        s_or_b32 s4, s4, s5
        s_xor_b32 s47, s47, s4
        s_and_b32 s5, s26, 1
        s_lshl_b32 s5, s5, 10
        s_lshr_b32 s4, s26, 1
        s_lshl_b32 s4, s4, 15
        s_or_b32 s5, s5, s4
        s_bfe_u32 s4, s26, 0x10004      ; b18 flips b11
        s_lshl_b32 s4, s4, 11
        s_xor_b32 s5, s5, s4
        s_xor_b32 s34, s5, s47
        s_xor_b32 s35, s34, 0x84000     ; b19 flips b14
        s_xor_b32 s36, s34, 0x101000    ; b20 flips b12
        s_xor_b32 s37, s34, 0x185000
        """)
        def wait_kv(need, once=False):
            if nowait: return
            L = a.newlabel("kv"); D = a.newlabel("kvd")
            a.e(f"""
            s_cmp_ge_u32 s46, {need}
            s_cbranch_scc1 {D}
            s_mov_b32 s62, 0
            """)
            a.label(L)
            a.e(f"""
            buffer_load_dword v18, v13, s[8:11], 0 offen sc1
            s_add_u32 s62, s62, 1
            s_cmp_gt_u32 s62, {SPIN}
            s_cbranch_scc1 {Lend}
            s_waitcnt vmcnt(0)
            v_min_u32_dpp v18, v18, v18 quad_perm:[1,0,3,2] row_mask:0xf bank_mask:0xf
            s_nop 1
            v_min_u32_dpp v18, v18, v18 quad_perm:[2,3,0,1] row_mask:0xf bank_mask:0xf
            s_nop 1
            v_min_u32_dpp v18, v18, v18 row_half_mirror row_mask:0xf bank_mask:0xf
            s_nop 0
            v_readfirstlane_b32 s46, v18
            """)
            if not once: a.e(f"s_cmp_lt_u32 s46, {need}\ns_cbranch_scc1 {L}")
            a.label(D)
        def pk(i): return f"buffer_load_dwordx4 {q4(KX + i*4)}, v15, s[8:11], s{42+(i>>2)} offen offset:{1024*(i&3)}"
        def prefetch(k=True):
            for i in ((0, 4) if PS4 else range((2 if 'j' in EXP else 8) if k else 0)): a.e(pk(i))
            for t in range(2):
                a.e(f"buffer_load_dwordx4 {q4(VX + 4*t)}, v15, s[8:11], s44 offen offset:{1024*t}")
            a.e(f"""
            s_add_u32 s42, s42, {32*8192}
            s_add_u32 s43, s43, {32*8192}
            s_add_u32 s44, s44, {32*8192}
            """)
        def warm(w, mid=False):
            lines = [(95, WSTR * i) for i in range(2048 // WSTR)] + [(96, WSTR * i) for i in range(2048 // WSTR)]
            if 'm' in EXP and w != 1 or 'W' in EXP: return
            if 'n' in EXP and not mid: return
            if 'z' in EXP: lines = {1: lines[0:11], 2: lines[11:26], 3: lines[26:]}[w]
            elif 'l' in EXP: lines = {1: lines[0:15], 3: lines[15:30], 2: lines[30:]}[w]
            for (sr, off) in (lines if 'l' in EXP else lines[w-1::3] if mid else lines if w == 1 else lines[{0: 0, 2: 1, 3: 2}[w]::3]):
                a.e(f"s_buffer_load_dword s97, s[8:11], s{sr} offset:{off}")
            a.e(f"s_add_u32 s95, s95, {8192 if 'T' in EXP else 32*8192}\ns_add_u32 s96, s96, {8192 if 'T' in EXP else 32*8192}")
        Lw = [a.newlabel(f"w{w}") for w in range(4)]
        a.e(f"""
        s_cmp_eq_u32 s24, 1
        s_cbranch_scc1 {Lw[1]}
        s_cmp_eq_u32 s24, 2
        s_cbranch_scc1 {Lw[2]}
        s_cmp_eq_u32 s24, 3
        s_cbranch_scc1 {Lw[3]}
        """)
        cold = []
        def smf(acc, p, wbase):
            a.e(f"v_smfmac_f32_16x16x64_bf16 {q4(acc)}, {q4(G+4*p)}, a[{wbase}:{wbase+7}], v2")
        def tiles_q(p): return [(AQ, p * 8), (AQ + 4, 32 + p * 8)]
        def tiles_k(p): return [(AK, 64 + p * 8), (AK + 4, 96 + p * 8)]
        def tiles_c(p): return [(AC, 192 + p * 8), (AC + 4, 224 + p * 8)]
        def gload(p, vaddr):
            a.e(f"buffer_load_dwordx4 {q4(G+4*p)}, v{vaddr}, s[8:11], s30 offen offset:{1024*p} sc1")
        def gather(vaddr, prim, sec, chkregs, cnt, spec=False):
            for p in range(4):
                if IL == 'prio': a.e(f"s_setprio {3-p}")
                gload(p, vaddr)
                if IL == 'bar' and p < 3: a.e("s_barrier")
            fill = []
            for p in range(4):
                Ls = a.newlabel("gs"); Lr = a.newlabel("gr"); Ll = a.newlabel("gl")
                g = G + 4 * p
                def check(g=g):
                    if chkregs == 1: a.e(f"v_cmp_eq_u32 vcc, -1, v{g+3}")
                    else: a.e(f"v_max_u32 v18, v{g+1}, v{g+3}\nv_cmp_eq_u32 vcc, -1, v18")
                def count():
                    if diag: a.e(f"s_add_u32 s{cnt}, s{cnt}, 1")
                    a.e(f"""
                    s_add_u32 s62, s62, 1
                    s_cmp_gt_u32 s62, {SPIN}
                    s_cbranch_scc1 {Lend}
                    """)
                if spec:
                    if fill: smf(*fill.pop(0))
                    a.e(f"s_waitcnt vmcnt({3-p})")
                    smf(prim(p)[0][0], p, prim(p)[0][1])
                    check()
                    smf(prim(p)[1][0], p, prim(p)[1][1])
                    a.e(f"s_cbranch_vccnz {Ls}")
                    a.label(Lr)
                    def slow(p=p, Ls=Ls, Lr=Lr, Ll=Ll, check=check, count=count):
                        Lc = a.newlabel("gc")
                        a.label(Ls)
                        for q in range(p, 4): gload(q, vaddr)
                        a.nop(3 + p)
                        zero(range(prim(0)[0][0], prim(0)[0][0] + 8))
                        a.nop(2)
                        for q in range(p):
                            for (acc, wb) in prim(q): smf(acc, q, wb)
                        a.e(f"s_branch {Lc}")
                        a.label(Ll)
                        for q in range(p, 4): gload(q, vaddr)
                        a.label(Lc)
                        count()
                        a.e(f"s_waitcnt vmcnt({3-p})")
                        check()
                        a.e(f"s_cbranch_vccnz {Ll}")
                        for (acc, wb) in prim(p): smf(acc, p, wb)
                        a.e(f"s_branch {Lr}")
                else:
                    a.e(f"s_waitcnt vmcnt({3-p})")
                    check()
                    if fill: smf(*fill.pop(0))
                    a.e(f"s_cbranch_vccnz {Ls}")
                    a.label(Lr)
                    for (acc, wb) in prim(p): smf(acc, p, wb)
                    def slow(p=p, Ls=Ls, Lr=Lr, check=check, count=count):
                        a.label(Ls)
                        for q in range(p, 4): gload(q, vaddr)
                        count()
                        a.e(f"s_waitcnt vmcnt({3-p})")
                        check()
                        a.e(f"s_cbranch_vccz {Lr}\ns_branch {Ls}")
                if fill: smf(*fill.pop(0))
                fill += [(acc, p, wb) for (acc, wb) in sec(p)]
                while 'G' in EXP and p < 3 and len(fill) > ('H' in EXP): smf(*fill.pop(0))
                cold.append(slow)
            return fill
        Lm = [a.newlabel("gm"), a.newlabel("gm")]
        def machine(Le, vaddr, tiles, chkregs, cnt):
            S = {}; F = {}
            def lab(d, Q, p):
                if Q not in d: d[Q] = a.newlabel(p)
                return d[Q]
            def probe(Q):
                g = G + 4 * Q[0]
                a.e(f"s_waitcnt vmcnt({len(Q)-1})")
                a.e(f"v_cmp_eq_u32 vcc, -1, v{g+3}" if chkregs == 1 else f"v_max_u32 v18, v{g+1}, v{g+3}\nv_cmp_eq_u32 vcc, -1, v18")
            done = set()
            def chain(Q):
                while True:
                    if Q in done:
                        a.e(f"s_branch {S[Q]}"); return
                    done.add(Q)
                    a.label(lab(S, Q, "ok"))
                    tl = tiles(Q[0]); h = len(tl) // 2; R = Q[1:]
                    for (acc, wb) in tl[:h]: smf(acc, Q[0], wb)
                    if R: probe(R)
                    for (acc, wb) in tl[h:]: smf(acc, Q[0], wb)
                    if not R:
                        a.e("s_setpc_b64 s[98:99]"); return
                    a.e(f"s_cbranch_vccnz {lab(F, R, 'nk')}")
                    Q = R
            a.raw(".p2align 6")
            a.label(Le)
            Q0 = (0, 1, 2, 3)
            probe(Q0)
            a.e(f"s_cbranch_vccnz {lab(F, Q0, 'nk')}")
            chain(Q0)
            fd = set()
            while len(fd) < len(F):
                Q = [x for x in F if x not in fd][0]; fd.add(Q)
                R = Q[1:] + Q[:1]
                a.label(F[Q])
                gload(Q[0], vaddr)
                if diag: a.e(f"s_add_u32 s{cnt}, s{cnt}, 1")
                a.e(f"s_add_u32 s62, s62, 1\ns_cmp_gt_u32 s62, {SPIN}\ns_cbranch_scc1 {Lend}")
                probe(R)
                a.e(f"s_cbranch_vccnz {lab(F, R, 'nk')}")
                lab(S, R, "ok")
                chain(R)
        def mgather(i, vaddr):
            for p in range(4):
                if IL == 'prio': a.e(f"s_setprio {3-p}")
                gload(p, vaddr)
            a.e(f"s_call_b64 s[98:99], {Lm[i]}")
        def addn(d, x, y, n, key='P'):
            if key in EXP:
                for r in range(0, n, 2): a.e(f"v_pk_add_f32 v[{d+r}:{d+r+1}], v[{x+r}:{x+r+1}], v[{y+r}:{y+r+1}]")
            else:
                for r in range(n): a.e(f"v_add_f32 v{d+r}, v{x+r}, v{y+r}")
        def merge(A, key='P'):
            for r in range(4): a.e(f"v_permlane32_swap_b32 v{A+r}, v{A+4+r}")
            addn(A, A, A + 4, 4, key)
        def write36(addr, A):
            a.e(f"ds_write2_b32 v{addr}, v{A}, v{A+1} offset0:0 offset1:36")
            a.e(f"ds_write2_b32 v{addr}, v{A+2}, v{A+3} offset0:72 offset1:108")
        def zero(regs):
            for r in regs: a.e(f"v_mov_b32 v{r}, 0")
        def rotate(w):
            a.e("""
            s_mov_b32 s4, s30
            s_mov_b32 s30, s31
            s_mov_b32 s31, s32
            s_mov_b32 s32, s33
            s_mov_b32 s33, s4
            s_add_u32 s28, s28, 1
            s_mov_b32 s62, 0
            """)
            if w in (1, 3):
                a.e("""
                s_mov_b32 s4, s34
                s_mov_b32 s34, s35
                s_mov_b32 s35, s36
                s_mov_b32 s36, s37
                s_mov_b32 s37, s4
                """)
            if w >= 2 and 'K' not in EXP: a.e("s_add_u32 s41, s41, 0x20000")

        def prewarm(w):
            if sc or 'R' not in EXP: return
            a.e(f"buffer_load_dwordx4 {q4(G)}, v246, s[8:11], s{30+w} offen sc1\nbuffer_load_dwordx4 {q4(G+4)}, v245, s[8:11], s{30+w} offen sc1")
            if PS4: a.e(f"buffer_load_dword v{G+8}, v237, s[8:11], s{30+w} offen sc1")

        def rearm(pos):
            if RP == pos: a.e("buffer_store_dwordx2 v[20:21], v15, s[8:11], s36 offen sc1" if 'J' in EXP else "buffer_store_dwordx4 v[20:23], v15, s[8:11], s36 offen sc1")
            if RL == pos:
                a.e(f"buffer_store_dwordx4 v[20:23], v246, s[8:11], s32 offen{sc}\nbuffer_store_dwordx4 v[20:23], v245, s[8:11], s32 offen{sc}")
                if PS4: a.e(f"buffer_store_dword v20, v237, s[8:11], s32 offen{sc}")
        KVST = f"buffer_store_dwordx4 {q4(T)}, v244, s[8:11], s41 offen sc1"
        for w in range(4):
            nst = [0]
            def st(i):
                if diag and not lite: a.e(f"s_memtime s[{66+2*i}:{67+2*i}]")
            def stflush():
                if not diag or lite: return
                a.e("s_waitcnt lgkmcnt(0)")
                for i in range(13): a.e(f"v_writelane_b32 v251, s{66+2*i}, {i}")
                for i in range(3): a.e(f"v_writelane_b32 v251, s{92+i}, {13+i}")
                a.e(f"""
                s_mov_b64 exec, 0xffff
                ds_write_b32 v253, v251
                s_mov_b64 exec, -1
                v_add_u32 v253, 64, v253
                """)
            a.label(Lw[w])
            if diag:
                a.e(f"""
                s_lshl_b32 s4, s25, 5
                s_add_u32 s4, s4, s26
                s_lshl_b32 s4, s4, 14
                s_add_u32 s4, s4, {WS_DIAG + w*4096}
                s_mov_b32 s92, 0
                s_mov_b32 s93, 0
                s_mov_b32 s94, 0
                """)
                ln.build(252, [(0, 6, 16)], 0, ["s4"])
                ln.build(253, [(0, 6, 4)], 32768 + w*4096 + (63*64 if lite else 0))
            if w == 1 and PS5:
                ln.build(9, [(0, 3, 144), (3, 1, 1152), (4, 2, 32)], RQ)
                ln.build(11, [(0, 1, 144), (2, 2, 288), (1, 1, 1152), (4, 2, 32)], RK)
                a.e("s_lshl_b32 s4, s56, 10\ns_lshl_b32 s5, s53, 2")
                ln.build(10, [(0, 6, 16)], SMO, ["s4", "s5"])
            if w == 0 and PS5:
                ln.build(9, [(0, 3, 144), (3, 1, 1152), (4, 2, 32)], RQ)
                a.e("s_lshl_b32 s4, s56, 10")
                ln.build(13, [(0, 6, 16)], SMO, ["s4"])
                for i in range(3): a.e(f"v_xor_b32 v{XA+i}, {1024*(i+1)}, v246")
                ln.build(14, [(4, 2, 128), (0, 4, 16)], 0x10000, ["s55"])
                ln.build(15, [(0, 6, 16)])
                ln.build(16, [(2, 2, 128), (0, 2, 16), (4, 2, 4)], RVM + 512)
                zero(range(PM, PM + 12))
                a.e("s_mov_b64 s[50:51], s[48:49]")
                zero(range(ON1, ON1 + 4)); a.e(f"v_mov_b32 v{ON1}, 0x3f803f80")
                for r in range(4): a.e(f"v_mov_b32 v{SI+r}, s45\nv_mov_b32 v{ONE+r}, 0x3f803f80")
            elif w == 0 and PS4:
                ln.build(12, [(0, 1, 144), (2, 2, 288), (4, 2, 32)], RK)
                ln.build(13, [(1, 1, RK - RQ)])
                a.e("v_sub_u32 v12, v12, v13\ns_lshl_b32 s4, s56, 10\ns_lshl_b32 s5, s53, 2")
                ln.build(13, [(0, 6, 16)], SMO, ["s4"])
                a.e("v_add_u32 v10, s5, v13")
                for i in range(3): a.e(f"v_xor_b32 v{XA+i}, {1024*(i+1)}, v246")
                ln.build(11, [(4, 2, 128), (2, 2, 32), (0, 1, 16), (1, 1, 1024)], RVM)
                ln.build(14, [(4, 2, 128), (2, 2, 32), (0, 1, 16)], 0x10000, ["s55"])
                ln.build(15, [(0, 6, 16)])
                ln.build(16, [(2, 2, 128), (0, 2, 16), (4, 2, 4)], RVM + 512)
                zero(range(PM, PM + 12))
                a.e("s_mov_b32 s50, 0xcccccccc\ns_mov_b32 s51, 0xcccccccc")
                for r in range(4): a.e(f"v_mov_b32 v{SI+r}, s45\nv_mov_b32 v{ONE+r}, 0x3f803f80")
            elif w == 0:
                ln.build(12, [(4, 2, 128), (0, 3, 16)], 0x20000, ["s57"])
                ln.build(13, [(4, 2, 128), (2, 2, 32), (0, 1, 16)], 0x20000 + 2048, ["s57"])
                ln.build(14, [(4, 2, 128), (0, 4, 16)], 0x10000, ["s55"])
                ln.build(15, [(0, 6, 16)])
                ln.build(16, [(2, 2, 128), (0, 2, 16), (4, 2, 4)], RVM + 512)
                zero(range(QL, QL + 32)); zero(range(PM, PM + 12))
                a.e("v_mov_b32 v18, 0xff800000")
                for r in range(4):
                    a.e(f"v_mov_b32 v{SI+r}, s45" if '1' in EXP else f"v_cndmask_b32 v{SI+r}, v18, 0, s[48:49]")
                    a.e(f"v_mov_b32 v{ONE+r}, 0x3f803f80")
            elif w == 1:
                ln.build(12, [(1, 3, 144), (4, 2, 32), (0, 1, 16)], RC)
                ln.build(13, [(0, 6, 8 if 'J' in EXP else 16)], 0, ["s101"])
                ln.build(14, [(0, 6, 8)], 0, ["s55"])
                if ROT: a.e("v_xor_b32 v14, 2048, v14")
                a.e(f"v_min_u32 v249, {SENT_MIN}, v249\nbuffer_store_dwordx2 v[248:249], v14, s[8:11], s30 offen{sc}")
                ln.build(15, [(0, 6, 16)])
                for i in range(3): a.e(f"s_add_u32 s{42+i}, s{42+i}, {32*8192}")
            elif w == 2:
                a.e(f"""
                s_lshl_b32 s4, s56, 9
                s_lshl_b32 s5, s53, 7
                s_add_u32 s4, s4, s5
                s_add_u32 s4, s4, {FL_REC}
                v_mov_b32 v14, s4
                """)
                ln.build(12, [(0, 6, 16)], RVM)
                ln.build(15, [(0, 6, 16)])
                for i in range(3): a.e(f"s_add_u32 s{42+i}, s{42+i}, {32*8192}")
                if ROT: a.e("s_mov_b32 exec_hi, 0\nv_xor_b32 v244, 1024, v244\ns_mov_b32 exec_hi, -1")
            else:
                ln.build(12, [(3, 1, 512), (5, 1, 256), (2, 1, 128), (0, 2, 16), (4, 1, 8)], RV)
                ln.build(14, [(2, 2, 128), (0, 2, 16), (4, 2, 4)], RVM + 512)
                ln.build(15, [(0, 6, 8 if 'J' in EXP else 16)], 0, ["s101"])
                ln.build(16, [(2, 2, 128), (0, 2, 16), (4, 2, 4)], 0x20000 + 4096, ["s58"])
                a.e(f"s_lshl_b32 s4, s56, 9\ns_add_u32 s4, s4, {FL_K}")
                ln.build(13, [(0, 2, 128), (2, 1, FL_V - FL_K)], 0, ["s4"])
                prewarm(w)
                a.e("s_waitcnt vmcnt(0)")
                tr(3, 1)
                wait_kv(3 if 'n' in EXP else 2 if 'm' in EXP else 1)
            if w != 3:
                prewarm(w)
                a.e("s_waitcnt vmcnt(0)")
                tr(3, 1)
            rts(5)
            a.e("s_barrier")
            if w == 0: prefetch()
            rts(6)
            Lstep = a.newlabel("step"); Lfin = a.newlabel("fin")
            a.raw(".p2align 6")
            a.label(Lstep)
            if w == 1 and 'N' not in EXP: a.e("s_waitcnt vmcnt(0)")
            a.e("s_barrier")
            st(0)
            if 'M' in EXP: mgather(0, 3)
            else:
                fill = gather(3, tiles_q, tiles_k, 2, 92, 'X' in EXP)
                smf(*fill[0])
            if 'G' in EXP: smf(*fill[1])
            st(1)
            if 'G' in EXP and not diag: a.nop(1)
            for r in range(4):
                a.e(f"v_permlane32_swap_b32 v{AQ+r}, v{AQ+4+r}")
                if r == 1 and 'G' not in EXP and 'M' not in EXP: smf(*fill[1])
            addn(AQ, AQ, AQ + 4, 4, 'Q')
            write36(5, AQ); merge(AK); write36(6, AK)
            def pka(d, x, y): a.e(f"v_pk_add_f32 v[{d}:{d+1}], v[{x}:{x+1}], v[{y}:{y+1}]\nv_pk_add_f32 v[{d+2}:{d+3}], v[{x+2}:{x+3}], v[{y+2}:{y+3}]")
            def half(r, addr):
                for i in range(4): a.e(f"ds_read_b128 {q4(r+4*i)}, v{addr} offset:{2304*(i&1) + 16*(i>>1)}")
            def hsum(d, r, n):
                for h in range(2):
                    a.e(f"s_waitcnt lgkmcnt({n+2-2*h})")
                    pka(r + 8*h, r + 8*h, r + 8*h + 4)
                    a.e(f"v_cvt_pk_bf16_f32 v{d+2*h}, v{r+8*h}, v{r+8*h+1}\nv_cvt_pk_bf16_f32 v{d+2*h+1}, v{r+8*h+2}, v{r+8*h+3}")
            def fold(d, x, y): a.e(f"v_add_f32_dpp v{d}, v{x}, v{x} row_ror:8 row_mask:0xf bank_mask:0x3\nv_add_f32_dpp v{d}, v{y}, v{y} row_ror:8 row_mask:0xf bank_mask:0xc")
            vq = [(AV + 4*(i & 1), i >> 1, 128 + 32*(i & 1) + 8*(i >> 1)) for i in range(8)]
            def vs(n):
                for _ in range(n): smf(*vq.pop(0))
            if PS5:
                a.e("s_waitcnt lgkmcnt(2)\ns_barrier")
                if w < 2: half(T, 9)
                if w < 2: vs(VA)
                a.e(f"s_waitcnt lgkmcnt({4 if w < 2 else 0})\ns_barrier")
                if w == 0:
                    vs(VB)
                    hsum(XQ, T, 0)
                    a.e(f"""
                    s_nop 1
                    v_mfma_f32_16x16x32_bf16 {q4(S)}, {q4(KX)}, {q4(XQ)}, 0
                    v_mfma_f32_16x16x32_bf16 {q4(QH)}, {q4(KX+16)}, {q4(XQ)}, 0
                    """)
                    if VC: vs(1)
                    else: a.nop(4)
                    for r in (3, 0, 1, 2): a.e(f"v_add_f32_dpp v{PS+r}, v{S+r}, v{S+r} row_ror:8 row_mask:0xf bank_mask:0x3")
                    for r in (3, 0, 1, 2): a.e(f"v_add_f32_dpp v{PS+r}, v{QH+r}, v{QH+r} row_ror:8 row_mask:0xf bank_mask:0xc")
                    a.e(f"""
                    v_min_u32 v{PS+3}, {SENT_MIN}, v{PS+3}
                    buffer_store_dwordx4 {q4(PS)}, v246, s[8:11], s30 offen{sc}
                    """)
                if w == 1:
                    half(T + 16, 11)
                    vs(VB)
                    hsum(XQ, T, 4)
                    hsum(XQ + 4, T + 16, 0)
                    a.e(f"s_nop 1\nv_mfma_f32_16x16x32_bf16 {q4(SM)}, {q4(XQ+4)}, {q4(XQ)}, 0")
                    if VC: vs(2)
                    else: a.nop(8)
                    a.e(f"""
                    v_pk_add_f32 v[{SM}:{SM+1}], v[{SM}:{SM+1}], v[{SM+2}:{SM+3}]
                    s_nop 1
                    v_add_f32_dpp v{SM+2}, v{SM}, v{SM} {DPP8}
                    v_add_f32_dpp v{SM+3}, v{SM+1}, v{SM+1} {DPP8}
                    v_cndmask_b32 v{SM+2}, v{SM+3}, v{SM+2}, s[48:49]
                    v_min_u32 v{SM+2}, {SENT_MIN}, v{SM+2}
                    buffer_store_dword v{SM+2}, v10, s[8:11], s30 offen{sc}
                    """)
            elif PS4:
                a.e("s_waitcnt lgkmcnt(0)\ns_barrier")
                if w == 0:
                    for i, (s_, h) in enumerate(((0, 0), (1, 0), (0, 1), (1, 1), (2, 0), (3, 0), (2, 1), (3, 1))):
                        a.e(f"ds_read_b128 {q4(T+4*i)}, v12 offset:{1152*s_ + 16*h}")
                    a.e("s_mov_b64 vcc, s[50:51]\ns_waitcnt lgkmcnt(6)")
                    pka(T, T, T + 4)
                    a.e("s_waitcnt lgkmcnt(4)")
                    pka(T + 8, T + 8, T + 12)
                    a.e("s_waitcnt lgkmcnt(3)")
                    pka(T, T, T + 16)
                    a.e("s_waitcnt lgkmcnt(2)")
                    pka(T, T, T + 20)
                    a.e("s_waitcnt lgkmcnt(1)")
                    pka(T + 8, T + 8, T + 24)
                    a.e(f"v_cvt_pk_bf16_f32 v{XQ}, v{T}, v{T+1}\nv_cvt_pk_bf16_f32 v{XQ+1}, v{T+2}, v{T+3}\ns_waitcnt lgkmcnt(0)")
                    pka(T + 8, T + 8, T + 28)
                    a.e(f"""
                    v_cvt_pk_bf16_f32 v{XQ+2}, v{T+8}, v{T+9}
                    v_cvt_pk_bf16_f32 v{XQ+3}, v{T+10}, v{T+11}
                    s_nop 1
                    v_mfma_f32_16x16x32_bf16 {q4(QH)}, {q4(KX+16)}, {q4(XQ)}, 0
                    v_mfma_f32_16x16x32_bf16 {q4(S)}, {q4(KX)}, {q4(XQ)}, 0
                    v_mfma_f32_16x16x32_bf16 {q4(SM)}, {q4(XQ)}, {q4(XQ)}, 0
                    ds_write_b128 v11, {q4(XQ)}
                    s_nop 2
                    """)
                    for r in (3, 0, 1, 2): a.e(f"v_cndmask_b32_dpp v{PS+r}, v{QH+r}, v{S+r}, vcc {DPQ}")
                    a.e(f"""
                    v_min_u32 v{PS+3}, {SENT_MIN}, v{PS+3}
                    v_cndmask_b32_dpp v{PS+4}, v{SM+1}, v{SM}, vcc {DPQ}
                    buffer_store_dwordx4 {q4(PS)}, v246, s[8:11], s30 offen{sc}
                    v_min_u32 v{PS+4}, {SENT_MIN}, v{PS+4}
                    buffer_store_dword v{PS+4}, v10, s[8:11], s30 offen{sc}
                    """)
            else:
                a.e("s_waitcnt lgkmcnt(2)\ns_barrier")
                if w >= 2: a.e("s_waitcnt lgkmcnt(0)\ns_barrier")
                for s_ in range(4): a.e(f"ds_read_b64 v[{T+2*s_}:{T+2*s_+1}], v9 offset:{1152*s_}")
                if w < 2: a.e("s_waitcnt lgkmcnt(4)\ns_barrier")
                a.e("s_waitcnt lgkmcnt(2)")
                addn(T, T, T + 2, 2)
                a.e("s_waitcnt lgkmcnt(0)")
                addn(T + 4, T + 4, T + 6, 2)
                addn(T, T, T + 4, 2)
                a.e(f"""
                v_cvt_pk_bf16_f32 v{T}, v{T}, v{T+1}
                v_min_u32 v{T}, {SENT_MIN}, v{T}
                buffer_store_dword v{T}, v10, s[8:11], s30 offen{sc}
                """)
            st(2)
            if w == 3: rearm(1)
            if w == 2 and 'g' in EXP:
                a.e(f"""
                v_mov_b32 v18, s28
                s_mov_b64 exec, 1
                buffer_store_dword v18, v14, s[8:11], 0 offen sc1
                s_mov_b64 exec, -1
                """)
            dm = []
            if w == 1 and 'y' in EXP:
                for i in range(10):
                    dm.append((f"s_mov_b32 m0, {PFL + 1024*i}\ns_nop 0\n" if i % 4 == 0 else "") +
                              f"buffer_load_dwordx4 v15, s[8:11], s{42+(i>>2)} offen offset:{1024*(i&3)} lds")
                a.e(dm.pop(0)); a.e(dm.pop(0))
            def h2loads():
                if PS4:
                    a.e(f"buffer_load_dwordx4 {q4(KM)}, v13, s[8:11], s30 offen sc1")
                    for i in range(3): a.e(f"buffer_load_dwordx4 {q4(KM+4+4*i)}, v{XA+i}, s[8:11], s30 offen sc1")
                else:
                    for c in range(4): a.e(f"buffer_load_dwordx4 {q4(QL+4*c)}, v12, s[8:11], s30 offen offset:{512*c} sc1")
                    for c in range(4): a.e(f"buffer_load_dwordx4 {q4(KM+4*c)}, v13, s[8:11], s30 offen offset:{512*c} sc1")
            while vq:
                if w == 0 and HP == 8 - len(vq): h2loads()
                vs(1)
                if dm: a.e(dm.pop(0))
            if w == 0 and HP == 8: h2loads()
            if w == 1 and 'y' in EXP:
                for i in range(3): a.e(f"s_add_u32 s{42+i}, s{42+i}, {32*8192}")
            if w >= 2 and PS5:
                for s_ in range(4): a.e(f"ds_read_b64 v[{T+2*s_}:{T+2*s_+1}], v9 offset:{1152*s_}")
                a.e("s_waitcnt lgkmcnt(0)")
                addn(T, T, T + 2, 2); addn(T + 4, T + 4, T + 6, 2); addn(T, T, T + 4, 2)
                a.e(f"v_cvt_pk_bf16_f32 v{T}, v{T}, v{T+1}")
            if w >= 2 and 'z' not in EXP and (PS5 or not PS4): a.e(f"ds_write_b32 v11, v{T}")
            def vpart():
                zero(range(AQ, AQ + 8))
                merge(AV)
                if VE: a.e(f"v_cvt_pk_bf16_f32 v{AV+4}, v{AV}, v{AV+1}\nv_cvt_pk_bf16_f32 v{AV+5}, v{AV+2}, v{AV+3}\nds_write2_b32 v255, v{AV+4}, v{AV+5} offset0:0 offset1:64")
                a.e(f"ds_write_b128 v8, {q4(AV)}")
            VL = w == 0 and 'V' in EXP
            if not VL: vpart()
            if w == 0 and PS4:
                Lmf = a.newlabel("mf"); Lre = a.newlabel("re")
                L0 = KM + 4; DX = DPP8 if PS5 else DPQ
                TWO = 'U' in EXP
                def sloads(B=KM):
                    a.e(f"buffer_load_dwordx4 {q4(B)}, v13, s[8:11], s30 offen sc1")
                    for i in range(3): a.e(f"buffer_load_dwordx4 {q4(B+4+4*i)}, v{XA+i}, s[8:11], s30 offen sc1")
                def ssum(B, Lf):
                    n = 4 if TWO else 0; L0 = B + 4
                    a.e(f"""
                    s_waitcnt vmcnt({n+3})
                    v_max3_u32 v18, v{B}, v{B+1}, v{B+2}
                    v_pk_add_f32 v[{SM}:{SM+1}], v[{B}:{B+1}], v[{B+2}:{B+3}]
                    s_waitcnt vmcnt({n+2})
                    v_max3_u32 v18, v18, v{B+3}, v{L0+3}
                    """)
                    pka(S, PS, L0)
                    a.e(f"v_add_f32 v{SM}, v{SM}, v{SM+1}\ns_waitcnt vmcnt({n+1})")
                    pka(S, S, L0 + 4)
                    a.e(f"s_waitcnt vmcnt({n})\nv_max3_u32 v18, v18, v{L0+7}, v{L0+11}")
                    pka(S, S, L0 + 8)
                    a.e(f"""
                    v_cmp_eq_u32 vcc, -1, v18
                    v_max3_f32 v19, v{S}, v{S+1}, v{SM}
                    v_max3_f32 v19, v19, v{S+2}, v{S+3}
                    s_cbranch_vccnz {Lf}
                    """)
                a.e(f"""
                s_cmp_eq_u32 s28, 63
                s_cbranch_scc1 {Lfin}
                {"s_waitcnt vmcnt(0)" if HP == 10 else ""}
                """)
                st(3)
                if HP >= 9: sloads()
                if TWO and HQ == 0: sloads(T)
                a.e("s_waitcnt lgkmcnt(0)\ns_barrier")
                if VE: a.e(f"ds_read_b128 {q4(VM0)}, v15 offset:{RVB}\nds_read_b128 {q4(VM1)}, v15 offset:{RVB+1024}")
                if TWO and HQ == 1: sloads(T)
                if TWO and HQ == 2:
                    zero(range(AK, AK + 16)); sloads(T)
                a.label(Lmf)
                ssum(KM, Lre)
                Lj = a.newlabel("sj"); Lr2 = a.newlabel("re")
                a.label(Lj)
                BC = f"s_barrier\nds_read_b32 v{VM0}, v16\nds_read_b32 v{VM1}, v16 offset:64"
                if VE: BC = "s_nop 1"
                a.e(BC if CP == 0 else "s_nop 0")
                PMX = f"v_cvt_pk_bf16_f32 v{PM+1}, v{E+4}, v{E+5}\nv_pk_mov_b32 v[{PM+2}:{PM+3}], v[{PM}:{PM+1}], v[{PM}:{PM+1}] op_sel:[0,1]" if VE else ""
                st(4)
                def re4():
                    a.label(Lre); sloads()
                    if TWO:
                        if diag: a.e("s_add_u32 s94, s94, 1")
                        ssum(T, Lr2)
                        a.e(f"s_branch {Lj}")
                        a.label(Lr2); sloads(T)
                    if diag: a.e("s_add_u32 s94, s94, 1")
                    a.e(f"""
                    s_add_u32 s62, s62, 1
                    s_cmp_gt_u32 s62, {SPIN}
                    s_cbranch_scc1 {Lend}
                    s_branch {Lmf}
                    """)
                cold.append(re4)
                def pf(d, x): return f"v_pk_fma_f32 v[{d}:{d+1}], v[{x}:{x+1}], v[{SI}:{SI+1}], v[18:19] op_sel_hi:[1,1,0] neg_lo:[0,0,1] neg_hi:[0,0,1]"
                a.e(f"""
                v_max_f32_dpp v18, v19, v19 {DX}
                v_max_f32_dpp v17, v19, v19 {DX}
                {BC if CP == 1 else "s_nop 1"}
                v_permlane16_swap_b32 v18, v17
                v_max_f32 v19, v18, v17
                v_max_f32 v18, v18, v17
                {BC if CP == 2 else "s_nop 1"}
                v_permlane32_swap_b32 v18, v19
                v_max_f32 v18, v18, v19
                v_mul_f32 v18, s45, v18
                v_fma_f32 v{E+4}, v{SM}, s45, -v18
                {pf(E, S)}
                v_exp_f32 v{E+4}, v{E+4}
                {pf(E+2, S+2)}
                v_exp_f32 v{E}, v{E}
                v_mov_b32_dpp v{E+5}, v{E+4} {DX}
                v_cvt_pk_bf16_f32 v{PM}, v{E+4}, v{E+5}
                {PMX}
                v_exp_f32 v{E+1}, v{E+1}
                s_waitcnt lgkmcnt(0)
                v_mfma_f32_16x16x32_bf16 {q4(O0)}, {q4(VM0)}, {q4(PM)}, 0
                v_exp_f32 v{E+2}, v{E+2}
                v_mfma_f32_16x16x32_bf16 {q4(Z)}, {q4(ON1 if VE else ONE)}, {q4(PM)}, 0
                v_exp_f32 v{E+3}, v{E+3}
                v_cvt_pk_bf16_f32 v{P}, v{E}, v{E+1}
                v_cvt_pk_bf16_f32 v{P+1}, v{E+2}, v{E+3}
                v_mfma_f32_16x16x32_bf16 {q4(O1)}, {q4(VM1)}, {q4(PM)}, 0
                v_mov_b32_dpp v{P+2}, v{P} {DX}
                v_mov_b32_dpp v{P+3}, v{P+1} {DX}
                s_nop 1
                v_mfma_f32_16x16x32_bf16 {q4(Z)}, {q4(ONE)}, {q4(P)}, {q4(Z)}
                v_mfma_f32_16x16x32_bf16 {q4(O0)}, {q4(VX)}, {q4(P)}, {q4(O0)}
                v_mfma_f32_16x16x32_bf16 {q4(O1)}, {q4(VX+4)}, {q4(P)}, {q4(O1)}
                s_mov_b64 exec, s[50:51]
                v_rcp_f32 v18, v{Z}
                s_nop 1
                """)
                for r in range(4): a.e(f"v_mul_f32 v{O0+r}, v18, v{O0+r}")
                a.e(f"""
                v_pk_mul_f32 v[{O1}:{O1+1}], v[18:19], v[{O1}:{O1+1}] op_sel_hi:[0,1]
                v_pk_mul_f32 v[{O1+2}:{O1+3}], v[18:19], v[{O1+2}:{O1+3}] op_sel_hi:[0,1]
                v_cvt_pk_bf16_f32 v{OUT}, v{O0}, v{O0+1}
                v_cvt_pk_bf16_f32 v{OUT+3}, v{O1+2}, v{O1+3}
                v_cvt_pk_bf16_f32 v{OUT+1}, v{O0+2}, v{O0+3}
                v_cvt_pk_bf16_f32 v{OUT+2}, v{O1}, v{O1+1}
                v_min_u32 v{OUT+3}, {SENT_MIN}, v{OUT+3}
                buffer_store_dwordx4 {q4(OUT)}, v14, s[8:11], s30 offen{sc}
                s_mov_b64 exec, -1
                """)
                st(5)
                zero(range(AK, AK + 16))
                if 'O' not in EXP: a.e("s_waitcnt vmcnt(0)")
            elif w == 0 and '1' in EXP:
                Lmf = a.newlabel("mf"); Lre = a.newlabel("re"); Lk2 = a.newlabel("mk"); Lrk = a.newlabel("rk"); Lf2 = a.newlabel("f2")
                S1 = QH
                def kloads():
                    for c in range(4): a.e(f"buffer_load_dwordx4 {q4(KM+4*c)}, v13, s[8:11], s30 offen offset:{512*c} sc1")
                def qkloads():
                    for c in range(4): a.e(f"buffer_load_dwordx4 {q4(QL+4*c)}, v12, s[8:11], s30 offen offset:{512*c} sc1")
                    kloads()
                def chk(g, first):
                    if first: a.e(f"v_max3_u32 v18, v{g}, v{g+1}, v{g+2}\nv_max_u32 v18, v18, v{g+3}")
                    else: a.e(f"v_max3_u32 v18, v18, v{g}, v{g+1}\nv_max3_u32 v18, v18, v{g+2}, v{g+3}")
                def mf(d, x, y, first): a.e(f"v_mfma_f32_16x16x32_bf16 {q4(d)}, {q4(x)}, {q4(y)}, {'0' if first else q4(d)}")
                def sel(r): a.e(f"v_cndmask_b32 v{S+r}, v{S1+r}, v{S+r}, s[48:49]")
                a.e(f"""
                s_cmp_eq_u32 s28, 63
                s_cbranch_scc1 {Lf2 if VL else Lfin}
                {"s_waitcnt vmcnt(0)" if HP == 10 else ""}
                """)
                st(3)
                if HP >= 9: qkloads()
                if VL:
                    vpart()
                    def f2():
                        a.label(Lf2); vpart(); a.e(f"s_branch {Lfin}")
                    cold.append(f2)
                a.e("s_waitcnt lgkmcnt(0)\ns_barrier")
                a.label(Lmf)
                a.e("s_waitcnt vmcnt(7)")
                for i in range(12):
                    if i < 8: mf(S1 if i & 1 else S, KX + 16*(i & 1) + 4*(i >> 1), QL + 4*(i >> 1), i < 2)
                    else: mf(SM, KM + 4*(i-8), QL + 4*(i-8), i == 8)
                    if 1 <= i <= 3: a.e(f"s_waitcnt vmcnt({7-i})")
                    if i <= 3: chk(QL + 4*i, i == 0)
                    if i == 4 or i == 9: a.e("v_cmp_eq_u32 vcc, -1, v18")
                    if i == 5: a.e(f"s_cbranch_vccnz {Lre}")
                    if i == 10: a.e(f"s_cbranch_vccnz {Lrk}")
                    if 5 <= i <= 8:
                        a.e(f"s_waitcnt vmcnt({8-i})")
                        chk(KM + 4*(i-5), i == 5)
                    if i == 10: sel(0); sel(1)
                a.label(Lk2)
                sel(2); sel(3)
                a.e(f"""
                v_max3_f32 v19, v{S}, v{S+1}, v{S+2}
                v_max_f32 v19, v19, v{S+3}
                s_barrier
                ds_read_b32 v{VM0}, v16
                ds_read_b32 v{VM1}, v16 offset:64
                v_max_f32_dpp v19, v19, v19 {DPP8}
                """)
                st(4)
                def cnt():
                    if diag: a.e("s_add_u32 s94, s94, 1")
                    a.e(f"""
                    s_add_u32 s62, s62, 1
                    s_cmp_gt_u32 s62, {SPIN}
                    s_cbranch_scc1 {Lend}
                    """)
                def re1():
                    a.label(Lre); qkloads(); cnt(); a.e(f"s_branch {Lmf}")
                def re2():
                    a.label(Lrk)
                    a.nop(4)
                    kloads(); cnt()
                    for c in range(4):
                        a.e(f"s_waitcnt vmcnt({3-c})")
                        mf(SM, KM + 4*c, QL + 4*c, c == 0)
                        chk(KM + 4*c, c == 0)
                    a.e(f"v_cmp_eq_u32 vcc, -1, v18\ns_cbranch_vccnz {Lrk}")
                    sel(0); sel(1)
                    a.e(f"s_branch {Lk2}")
                cold.append(re1); cold.append(re2)
                def pf(d, x): return f"v_pk_fma_f32 v[{d}:{d+1}], v[{x}:{x+1}], v[{SI}:{SI+1}], v[18:19] op_sel_hi:[1,1,0] neg_lo:[0,0,1] neg_hi:[0,0,1]"
                a.e(f"""
                v_max3_f32 v18, v19, v{SM}, v{SM+1}
                v_max3_f32 v17, v19, v{SM}, v{SM+1}
                s_nop 1
                v_permlane16_swap_b32 v18, v17
                v_max_f32 v19, v18, v17
                v_max_f32 v18, v18, v17
                s_nop 1
                v_permlane32_swap_b32 v18, v19
                v_max_f32 v18, v18, v19
                v_mul_f32 v18, s45, v18
                {pf(E+4, SM)}
                {pf(E, S)}
                {pf(E+2, S+2)}
                v_exp_f32 v{E+4}, v{E+4}
                v_exp_f32 v{E+5}, v{E+5}
                v_exp_f32 v{E}, v{E}
                v_cvt_pk_bf16_f32 v{PM}, v{E+4}, v{E+5}
                v_exp_f32 v{E+1}, v{E+1}
                v_exp_f32 v{E+2}, v{E+2}
                v_mfma_f32_16x16x32_bf16 {q4(Z)}, {q4(ONE)}, {q4(PM)}, 0
                v_exp_f32 v{E+3}, v{E+3}
                s_waitcnt lgkmcnt(0)
                v_mfma_f32_16x16x32_bf16 {q4(O0)}, {q4(VM0)}, {q4(PM)}, 0
                v_cvt_pk_bf16_f32 v{P}, v{E}, v{E+1}
                v_cvt_pk_bf16_f32 v{P+1}, v{E+2}, v{E+3}
                v_mfma_f32_16x16x32_bf16 {q4(O1)}, {q4(VM1)}, {q4(PM)}, 0
                v_mov_b32_dpp v{P+2}, v{P} {DPP8}
                v_mov_b32_dpp v{P+3}, v{P+1} {DPP8}
                s_nop 1
                v_mfma_f32_16x16x32_bf16 {q4(Z)}, {q4(ONE)}, {q4(P)}, {q4(Z)}
                v_mfma_f32_16x16x32_bf16 {q4(O0)}, {q4(VX)}, {q4(P)}, {q4(O0)}
                v_mfma_f32_16x16x32_bf16 {q4(O1)}, {q4(VX+4)}, {q4(P)}, {q4(O1)}
                s_mov_b64 exec, s[48:49]
                v_rcp_f32 v18, v{Z}
                s_nop 1
                """)
                for r in range(4): a.e(f"v_mul_f32 v{O0+r}, v18, v{O0+r}")
                a.e(f"""
                v_pk_mul_f32 v[{O1}:{O1+1}], v[18:19], v[{O1}:{O1+1}] op_sel_hi:[0,1]
                v_pk_mul_f32 v[{O1+2}:{O1+3}], v[18:19], v[{O1+2}:{O1+3}] op_sel_hi:[0,1]
                v_cvt_pk_bf16_f32 v{OUT}, v{O0}, v{O0+1}
                v_cvt_pk_bf16_f32 v{OUT+3}, v{O1+2}, v{O1+3}
                v_cvt_pk_bf16_f32 v{OUT+1}, v{O0+2}, v{O0+3}
                v_cvt_pk_bf16_f32 v{OUT+2}, v{O1}, v{O1+1}
                v_min_u32 v{OUT+3}, {SENT_MIN}, v{OUT+3}
                buffer_store_dwordx4 {q4(OUT)}, v14, s[8:11], s30 offen{sc}
                s_mov_b64 exec, -1
                """)
                st(5)
                zero(range(AK, AK + 16))
                if 'O' not in EXP: a.e("s_waitcnt vmcnt(0)")
            elif w == 0:
                Lmf = a.newlabel("mf"); Lre = a.newlabel("re"); Lmk = a.newlabel("mk"); Lrk = a.newlabel("rk")
                def kloads():
                    for c in range(4): a.e(f"buffer_load_dwordx4 {q4(KM+4*c)}, v13, s[8:11], s30 offen offset:{512*c} sc1")
                def qkloads():
                    a.e("s_mov_b64 exec, s[48:49]")
                    for c in range(4): a.e(f"buffer_load_dwordx4 {q4(QL+4*c)}, v12, s[8:11], s30 offen offset:{512*c} sc1")
                    a.e("s_mov_b64 exec, s[50:51]")
                    for c in range(4): a.e(f"buffer_load_dwordx4 {q4(QH+4*c)}, v12, s[8:11], s30 offen offset:{512*c} sc1")
                    a.e("s_mov_b64 exec, -1")
                    kloads()
                a.e(f"""
                s_cmp_eq_u32 s28, 63
                s_cbranch_scc1 {Lfin}
                s_waitcnt vmcnt(0)
                """)
                st(3)
                qkloads()
                a.e("s_waitcnt lgkmcnt(0)\ns_barrier")
                a.label(Lmf)
                for i in range(12):
                    if i == 8: a.label(Lmk)
                    a.e(f"s_waitcnt vmcnt({11-i})")
                    c = i & 3
                    if i < 8:
                        a.e(f"v_mfma_f32_16x16x32_bf16 {q4(S)}, {q4(KX+4*i)}, {q4((QL if i < 4 else QH)+4*c)}, {'0' if i == 0 else q4(S)}")
                    else:
                        a.e(f"v_mfma_f32_16x16x32_bf16 {q4(SM)}, {q4(KM+4*c)}, {q4(QL+4*c)}, {q4(SI) if i == 8 else q4(SM)}")
                    g = QL + 4 * c if i < 4 else KM + 4 * c
                    if i == 0 or i == 8:
                        a.e(f"v_max3_u32 v18, v{g}, v{g+1}, v{g+2}\nv_max_u32 v18, v18, v{g+3}")
                    elif i < 4 or i >= 8:
                        a.e(f"v_max3_u32 v18, v18, v{g}, v{g+1}\nv_max3_u32 v18, v18, v{g+2}, v{g+3}")
                    if i == 4: a.e("v_cmp_eq_u32 vcc, -1, v18")
                    if i == 5: a.e(f"s_cbranch_vccnz {Lre}")
                a.e(f"""
                v_cmp_eq_u32 vcc, -1, v18
                v_max3_f32 v19, v{S}, v{S+1}, v{S+2}
                s_cbranch_vccnz {Lrk}
                s_barrier
                ds_read_b32 v{VM0}, v16
                ds_read_b32 v{VM1}, v16 offset:64
                """)
                st(4)
                def retry(Lre, Lmf, loads):
                    a.label(Lre)
                    loads()
                    if diag: a.e("s_add_u32 s94, s94, 1")
                    a.e(f"""
                    s_add_u32 s62, s62, 1
                    s_cmp_gt_u32 s62, {SPIN}
                    s_cbranch_scc1 {Lend}
                    s_branch {Lmf}
                    """)
                cold.append(lambda: retry(Lre, Lmf, qkloads))
                cold.append(lambda: retry(Lrk, Lmk, kloads))
                NP = [pk(2*i) + "\n" + pk(2*i+1) if NL else "s_nop 1" for i in range(4)]
                a.e(f"""
                v_max3_f32 v18, v{S+3}, v{SM}, v{SM+1}
                v_max_f32 v18, v18, v19
                {NP[0]}
                v_max_f32_dpp v19, v18, v18 {DPP8}
                v_max_f32_dpp v17, v18, v18 {DPP8}
                {NP[1]}
                v_permlane16_swap_b32 v19, v17
                v_max_f32 v18, v19, v17
                v_max_f32 v19, v19, v17
                {NP[2]}
                v_permlane32_swap_b32 v18, v19
                v_max_f32 v18, v18, v19
                v_mul_f32 v18, s45, v18
                """)
                src = [S, S + 1, S + 2, S + 3, SM, SM + 1]
                for i in range(6): a.e(f"v_fma_f32 v{E+i}, v{src[i]}, s45, -v18")
                for i in range(6): a.e(f"v_exp_f32 v{E+i}, v{E+i}")
                a.e(f"""
                v_cvt_pk_bf16_f32 v{P}, v{E}, v{E+1}
                v_cvt_pk_bf16_f32 v{P+1}, v{E+2}, v{E+3}
                v_cvt_pk_bf16_f32 v{PM}, v{E+4}, v{E+5}
                s_waitcnt lgkmcnt(0)
                v_mov_b32_dpp v{P+2}, v{P} {DPP8}
                v_mov_b32_dpp v{P+3}, v{P+1} {DPP8}
                v_mfma_f32_16x16x32_bf16 {q4(Z)}, {q4(ONE)}, {q4(PM)}, 0
                v_mfma_f32_16x16x32_bf16 {q4(Z)}, {q4(ONE)}, {q4(P)}, {q4(Z)}
                v_mfma_f32_16x16x32_bf16 {q4(O0)}, {q4(VM0)}, {q4(PM)}, 0
                v_mfma_f32_16x16x32_bf16 {q4(O0)}, {q4(VX)}, {q4(P)}, {q4(O0)}
                v_mfma_f32_16x16x32_bf16 {q4(O1)}, {q4(VM1)}, {q4(PM)}, 0
                {NP[3] if NL else ""}
                v_rcp_f32 v18, v{Z}
                v_mfma_f32_16x16x32_bf16 {q4(O1)}, {q4(VX+4)}, {q4(P)}, {q4(O1)}
                s_mov_b64 exec, s[48:49]
                """)
                for O in (O0, O1):
                    for r in range(4): a.e(f"v_mul_f32 v{O+r}, v18, v{O+r}")
                    o = OUT + (0 if O == O0 else 2)
                    a.e(f"""
                    v_cvt_pk_bf16_f32 v{o}, v{O}, v{O+1}
                    v_cvt_pk_bf16_f32 v{o+1}, v{O+2}, v{O+3}
                    """)
                    a.e("s_nop 1" if O == O0 else f"v_min_u32 v{o+1}, {SENT_MIN}, v{o+1}")
                a.e(f"""
                buffer_store_dwordx4 {q4(OUT)}, v14, s[8:11], s30 offen{sc}
                s_mov_b64 exec, -1
                """)
                st(5)
                if NL: prefetch(False)
                zero(range(AK, AK + 16))
                a.e(f"s_waitcnt vmcnt({2 if NL else 0})")
            elif 'z' in EXP:
                FIN = f"s_cmp_eq_u32 s28, 63\ns_cbranch_scc1 {Lfin}"
                a.e("s_waitcnt lgkmcnt(0)\ns_barrier")
                if w >= 2: a.e(f"buffer_store_dword v{T}, v10, s[8:11], s41 offen sc1")
                if w == 1:
                    a.e(FIN)
                    for i in range(10):
                        if i % 4 == 0: a.e(f"s_mov_b32 m0, {PFL + 1024*i}\ns_nop 0")
                        a.e(f"buffer_load_dwordx4 v15, s[8:11], s{42+(i>>2)} offen offset:{1024*(i&3)} lds")
                    for i in range(3): a.e(f"s_add_u32 s{42+i}, s{42+i}, {32*8192}")
                    a.e("""
                    s_xor_b32 s38, s34, 0x4000
                    s_xor_b32 s39, s34, 0x1000
                    s_xor_b32 s40, s34, 0x5000
                    """)
                if w == 2:
                    a.e(FIN)
                    a.e(f"""
                    v_mov_b32 v18, s28
                    s_mov_b64 exec, 1
                    buffer_store_dword v18, v14, s[8:11], 0 offen sc1
                    s_mov_b64 exec, -1
                    """)
                if w == 3:
                    for t in range(2):
                        for s_ in range(4):
                            r = T + 2 + 2 * (4 * t + s_)
                            a.e(f"ds_read_b64 v[{r}:{r+1}], v12 offset:{1024*s_ + 64*t}")
                    for t in range(2):
                        r = T + 2 + 8 * t
                        a.e(f"""
                        s_waitcnt lgkmcnt({4-4*t})
                        v_add_f32 v{r}, v{r}, v{r+2}
                        v_add_f32 v{r+1}, v{r+1}, v{r+3}
                        v_add_f32 v{r+4}, v{r+4}, v{r+6}
                        v_add_f32 v{r+5}, v{r+5}, v{r+7}
                        v_add_f32 v{r}, v{r}, v{r+4}
                        v_add_f32 v{r+1}, v{r+1}, v{r+5}
                        v_cvt_pk_bf16_f32 v{r}, v{r}, v{r+1}
                        """)
                    a.e(f"""
                    ds_write_b32 v14, v{T+2}
                    ds_write_b32 v14, v{T+10} offset:64
                    buffer_store_dword v{T+2}, v16, s[8:11], s41 offen sc1
                    buffer_store_dword v{T+10}, v16, s[8:11], s41 offen offset:64 sc1
                    {FIN}
                    buffer_store_dwordx4 v[20:23], v15, s[8:11], s36 offen sc1
                    buffer_store_dwordx4 v[20:23], v244, s[8:11], s32 offen{sc}
                    buffer_store_dwordx4 v[20:23], v245, s[8:11], s32 offen{sc}
                    s_waitcnt lgkmcnt(0)
                    """)
                warm(w, True)
                zero(range(AK, AK + 16))
                a.e("s_barrier")
                if w == 3:
                    a.e(f"s_add_u32 s5, s28, 4\ns_min_u32 s5, s5, 64")
                    wait_kv("s5")
            else:
                a.e("s_waitcnt lgkmcnt(0)\ns_barrier")
                if w == 1 and 'l' in EXP: warm(w, True)
                if w == 3:
                    for t in range(2):
                        for s_ in range(4):
                            r = T + 2 * (4 * t + s_)
                            a.e(f"ds_read_b64 v[{r}:{r+1}], v12 offset:{1024*s_ + 64*t}")
                    for t in range(2):
                        r = T + 8 * t
                        a.e(f"""
                        s_waitcnt lgkmcnt({4-4*t})
                        v_add_f32 v{r}, v{r}, v{r+2}
                        v_add_f32 v{r+1}, v{r+1}, v{r+3}
                        v_add_f32 v{r+4}, v{r+4}, v{r+6}
                        v_add_f32 v{r+5}, v{r+5}, v{r+7}
                        v_add_f32 v{r}, v{r}, v{r+4}
                        v_add_f32 v{r+1}, v{r+1}, v{r+5}
                        v_cvt_pk_bf16_f32 v{r}, v{r}, v{r+1}
                        """)
                    a.e(f"""
                    ds_write_b32 v14, v{T}
                    ds_write_b32 v14, v{T+8} offset:64
                    s_waitcnt lgkmcnt(0)
                    """)
                    if 'l' in EXP: warm(w, True)
                if not VE: a.e("s_barrier")
                if w == 2 and not VE: a.e(f"ds_read_b128 {q4(T)}, v12")
                a.e(f"""
                s_cmp_eq_u32 s28, 63
                s_cbranch_scc1 {Lfin}
                """)
                if w == 1:
                    a.e("""
                    s_xor_b32 s38, s34, 0x4000
                    s_xor_b32 s39, s34, 0x1000
                    s_xor_b32 s40, s34, 0x5000
                    """)
                    if 'm' in EXP: warm(1)
                if w == 2 and 'e' in EXP:
                    a.e("s_waitcnt lgkmcnt(0)")
                    if KP == 0: a.e(KVST)
                if w == 2 and '3' in EXP:
                    a.e(f"""
                    v_mov_b32 v18, s28
                    s_mov_b64 exec, 1
                    buffer_store_dword v18, v14, s[8:11], 0 offen sc1
                    s_mov_b64 exec, -1
                    """)
                if w == 3: rearm(2)
                if w == 3:
                    a.e("s_add_u32 s5, s28, 2" if 'w' in EXP else f"s_add_u32 s5, s28, {4 if 'n' in EXP else 3}\ns_min_u32 s5, s5, 64")
                    wait_kv("s5")
                if 'n' in EXP and ('l' not in EXP or w == 2): warm(w, True)
                if 'l' in EXP and w == (1 if 'u' in EXP else 2) and 'y' not in EXP:
                    for i in range(10):
                        if i % 4 == 0: a.e(f"s_mov_b32 m0, {PFL + 1024*i}\ns_nop 0")
                        a.e(f"buffer_load_dwordx4 v15, s[8:11], s{42+(i>>2)} offen offset:{1024*(i&3)}{' sc1' if 'S' in EXP or 'T' in EXP else ''} lds")
                    for i in range(3): a.e(f"s_add_u32 s{42+i}, s{42+i}, {0 if 'S' in EXP else 8192 if 'T' in EXP else 32*8192}")
                zero(range(AK, AK + 16))
            a.e("s_barrier")
            st(6)
            if w == 2 and VE: a.e(f"ds_read_b128 {q4(T)}, v12")
            if 'M' in EXP: mgather(1, 4)
            else: gather(4, tiles_c, lambda p: [], 1, 93, 'Y' in EXP)
            st(7)
            if w == 2 and KP == 1: a.e("s_waitcnt lgkmcnt(0)\n" + KVST)
            if w == 3: rearm(3)
            if w == 0 and PF == 3: prefetch()
            else: a.nop((7 if 'Y' in EXP or 'M' in EXP else 8) - (w == 2 and KP == 1) - (w == 3) * ((RP == 3) + 3 * (RL == 3)))
            merge(AC); write36(7, AC)
            if w == 0 and PF == 4: prefetch()
            if w == 2 and KP == 4: a.e(KVST)
            if w == 3: rearm(4)
            a.e("s_waitcnt lgkmcnt(0)\ns_barrier")
            st(8)
            if w == 1:
                Lpl = a.newlabel("pl"); Lpr = a.newlabel("pr")
                for s_ in range(4): a.e(f"ds_read_b128 {q4(T+4*s_)}, v12 offset:{1152*s_}")
                a.e("s_waitcnt lgkmcnt(2)")
                addn(T, T, T + 4, 4)
                a.e("s_waitcnt lgkmcnt(0)")
                addn(T + 8, T + 8, T + 12, 4)
                addn(T, T, T + 8, 4)
                a.e(f"v_min_u32 v{T+3}, {SENT_MIN}, v{T+3}")
                a.e(f"buffer_store_dwordx2 v[{T+2}:{T+3}], v13, s[8:11], s34 offen sc1" if 'J' in EXP else f"buffer_store_dwordx4 {q4(T)}, v13, s[8:11], s34 offen sc1")
                st(9)
                if 'b' in EXP: a.e("s_barrier")
                zero(range(AC, AC + 8))
                a.e(f"s_sleep {XS}" if XS else "s_waitcnt vmcnt(0)")
                st(10)
                a.label(Lpl)
                for i in range(3): a.e(f"buffer_load_dwordx2 v[{T+6+4*i}:{T+7+4*i}], v13, s[8:11], s{38+i} offen sc1" if 'J' in EXP else f"buffer_load_dwordx4 {q4(T+4+4*i)}, v13, s[8:11], s{38+i} offen sc1")
                a.e("s_waitcnt vmcnt(2)")
                addn(T + 16, T, T + 4, 4)
                a.e(f"""
                s_waitcnt vmcnt(0)
                v_max3_u32 v18, v{T+7}, v{T+11}, v{T+15}
                v_cmp_eq_u32 vcc, -1, v18
                """)
                addn(T + 8, T + 8, T + 12, 4)
                addn(T + 16, T + 16, T + 8, 4)
                a.e(f"""
                v_cvt_pk_bf16_f32 v{T+20}, v{T+16}, v{T+17}
                v_cvt_pk_bf16_f32 v{T+21}, v{T+18}, v{T+19}
                v_min_u32 v{T+21}, {SENT_MIN}, v{T+21}
                s_cbranch_vccnz {Lpr}
                buffer_store_dwordx2 v[{T+20}:{T+21}], v14, s[8:11], s31 offen{sc}
                """)
                st(11)
                if 'o' in EXP: a.e("s_barrier")
                def pretry(Lpr=Lpr, Lpl=Lpl):
                    a.label(Lpr)
                    if diag: a.e("s_add_u32 s94, s94, 1")
                    a.e(f"""
                    s_add_u32 s62, s62, 1
                    s_cmp_gt_u32 s62, {SPIN}
                    s_cbranch_scc1 {Lend}
                    s_branch {Lpl}
                    """)
                cold.append(pretry)
                stflush()
                rotate(w)
            else:
                if 'o' in EXP or 'b' in EXP:
                    if 'w' not in EXP: warm(w)
                    zero(range(AC, AC + 8))
                    a.e("s_barrier")
                if w == 0 and 'f' not in EXP and 'n' not in EXP and PF == 0: prefetch()
                if w == 0 and 'l' in EXP:
                    for i in range(10): a.e(f"ds_read_b128 {q4(KX + 4*i)}, v15 offset:{PFL + 1024*i}")
                if w == 2 and ('z' in EXP or '3' in EXP):
                    Lnl = a.newlabel("nl")
                    a.e(f"""
                    s_cmp_lt_u32 s28, {ZE}
                    s_cbranch_scc1 {Lnl}
                    v_add_u32 v18, s28, v21
                    v_add_u32 v18, 2, v18
                    s_mov_b64 exec, 1
                    buffer_store_dword v18, v14, s[8:11], 0 offen sc1
                    s_mov_b64 exec, -1
                    """)
                    a.label(Lnl)
                elif w == 2:
                    if 'e' in EXP:
                        Lnl = a.newlabel("nl")
                        if KP == 2: a.e(KVST)
                        if 'F' in EXP:
                            a.e(f"""
                            s_cmp_lt_u32 s28, {FZ}
                            s_cselect_b32 s4, {FM}, 0
                            s_andn2_b32 s4, s4, s28
                            s_cbranch_scc1 {Lnl}
                            """)
                        a.e(f"""
                        v_mov_b32 v18, s28
                        v_add_u32 v18, 1, v18
                        s_mov_b64 exec, 1
                        s_waitcnt vmcnt(0)
                        buffer_store_dword v18, v14, s[8:11], 0 offen sc1
                        s_mov_b64 exec, -1
                        """)
                        a.label(Lnl)
                    elif 'g' in EXP:
                        a.e(f"buffer_store_dwordx4 {q4(T)}, v244, s[8:11], s41 offen sc1")
                    elif 'p' not in EXP:
                        Lnl = a.newlabel("nl")
                        a.e(f"""
                        buffer_store_dwordx4 {q4(T)}, v244, s[8:11], s41 offen sc1
                        v_mov_b32 v18, s28
                        s_mov_b64 exec, 1
                        buffer_store_dword v18, v14, s[8:11], 0 offen sc1
                        s_cmp_lt_u32 s28, {0 if 'a' in EXP else 59}
                        s_cbranch_scc1 {Lnl}
                        s_waitcnt vmcnt(0)
                        v_add_u32 v18, 1, v18
                        buffer_store_dword v18, v14, s[8:11], 0 offen sc1
                        """)
                        a.label(Lnl)
                        a.e("s_mov_b64 exec, -1")
                if w == 3 and 'z' not in EXP: rearm(0)
                if w == 3:
                    a.e(f"""
                    s_add_u32 s5, s28, {3 if 'w' in EXP else 5 if 'n' in EXP else 4}
                    s_min_u32 s5, s5, 64
                    """)
                    wait_kv("s5", True)
                stflush()
                if 'o' not in EXP and 'b' not in EXP:
                    if 'w' not in EXP: warm(w)
                    zero(range(AC, AC + 8))
                rotate(w)
            a.e(f"s_branch {Lstep}")
            a.label(Lfin)
            if w == 0: a.e("s_waitcnt lgkmcnt(0)\ns_barrier\ns_barrier")
            if w and VE: a.e("s_barrier")
            if w == 2 and VE: a.e(f"ds_read_b128 {q4(T)}, v12")
            if w == 1: a.e("s_waitcnt vmcnt(0)")
            if w and 'z' in EXP: a.e("s_waitcnt vmcnt(0)\ns_barrier")
            if w == 2 and 'z' not in EXP:
                a.e(f"""
                s_waitcnt lgkmcnt(0)
                buffer_store_dwordx4 {q4(T)}, v244, s[8:11], s41 offen sc1
                s_waitcnt vmcnt(0)
                """)
            if w == 2:
                a.e(f"""
                v_mov_b32 v18, 64
                s_mov_b64 exec, 1
                buffer_store_dword v18, v14, s[8:11], 0 offen sc1
                s_mov_b64 exec, -1
                """)
            if w == 3 and 'B' in EXP:
                Lnb = a.newlabel("nb")
                a.e(f"s_cmp_lg_u32 s26, 0\ns_cbranch_scc1 {Lnb}\nbuffer_wbl2 sc1\ns_waitcnt vmcnt(0)")
                a.label(Lnb)
            if diag:
                rts(7)
                a.e(f"""
                v_writelane_b32 v250, s47, 8
                s_mov_b64 exec, 0xffff
                ds_write_b32 v253, v250
                s_mov_b64 exec, -1
                v_lshlrev_b32 v253, 4, v1
                """)
                for i in range(4):
                    a.e(f"""
                    s_waitcnt lgkmcnt(0)
                    ds_read_b128 v[{100+4*i}:{103+4*i}], v253 offset:{32768 + w*4096 + 1024*i}
                    s_waitcnt lgkmcnt(0)
                    buffer_store_dwordx4 v[{100+4*i}:{103+4*i}], v252, s[8:11], 0 offen offset:{1024*i}
                    """)
            a.e("s_endpgm")
            for f in cold: f()
            cold.clear()
        if 'M' in EXP:
            machine(Lm[0], 3, lambda p: tiles_q(p) + tiles_k(p), 2, 92)
            machine(Lm[1], 4, tiles_c, 1, 93)

    Lslow = a.newlabel("slowv")
    a.e(f"""
    s_cmp_lg_u32 s27, 0
    s_cbranch_scc1 {Lslow}
    """)
    variant("")
    a.label(Lslow)
    variant(" sc1")
```
